```python
import torch

def _softmax(x, axis=-1):
    return torch.softmax(x, dim=axis)
def _gelu(x):
    return torch.nn.functional.gelu(x, approximate="tanh")
def _silu(x):
    return torch.nn.functional.silu(x)
def _sigmoid(x):
    return torch.sigmoid(x)
def _layernorm(x, axis=-1, eps=1e-5):
    m = x.mean(dim=axis, keepdim=True)
    v = x.var(dim=axis, keepdim=True, unbiased=False)
    return (x - m) / torch.sqrt(v + eps)
def _scatter_add(tgt, idx, src, axis=0):
    return tgt.clone().index_add_(axis, idx, src)
def _segment_sum(src, seg, n):
    out = torch.zeros((n,) + src.shape[1:], dtype=src.dtype)
    return out.index_add_(0, seg, src)
def _pad(x, pw):
    flat = tuple(v for pair in reversed(pw) for v in pair)
    return torch.nn.functional.pad(x, flat)

kernel_name = 'concat_heads__softmax_full_mha__grouped_kv_mqa__prompt'

def setup_inputs():

    _w = (lambda a: (lambda t: t.to(torch.bfloat16) if t.is_floating_point() else t)(torch.as_tensor(a)))
    def _A_setup():
        B, S, D = 1, 2048, 640
        return {
            "x": _w((lambda *s: torch.randn(*s, dtype=torch.bfloat16) * 0.2)(B, S, D)),
            "wqkv": _w((lambda *s: torch.randn(*s, dtype=torch.bfloat16) * 0.2)(D, 3 * D)),
            "wo": _w((lambda *s: torch.randn(*s, dtype=torch.bfloat16) * 0.05)(D, D)),
        }
    _A_in = _A_setup()

    def _B_setup():
        B, S, D, H = 1, 2048, 640, 32
        Dh = D // H
        return {
            "x": _w((lambda *s: torch.randn(*s, dtype=torch.bfloat16) * 0.05)(B, S, D)),
            "wq": _w((lambda *s: torch.randn(*s, dtype=torch.bfloat16) * 0.8)(D, H * Dh)),
            "wk": _w((lambda *s: torch.randn(*s, dtype=torch.bfloat16) * 0.8)(D, Dh)),
            "wv": _w((lambda *s: torch.randn(*s, dtype=torch.bfloat16) * 0.1)(D, Dh)),
            "wo": _w((lambda *s: torch.randn(*s, dtype=torch.bfloat16) * 0.1)(H * Dh, D)),
        }
    _B_in = _B_setup()

    return {
        "A_x": _A_in["x"],
        "A_wqkv": _A_in["wqkv"],
        "A_wo": _A_in["wo"],
        "B_x": _B_in["x"],
        "B_wq": _B_in["wq"],
        "B_wk": _B_in["wk"],
        "B_wv": _B_in["wv"],
        "B_wo": _B_in["wo"],
    }

def reference(A_x, A_wqkv, A_wo, B_x, B_wq, B_wk, B_wv, B_wo):
    def _A_ref(x, wqkv, wo):
        B, S, D = x.shape
        H = 32; Dh = D // H
        qkv = (lambda x, *d: x.permute(*d))((x @ wqkv).reshape(B, S, 3, H, Dh), 2, 0, 3, 1, 4)
        q, k, v = qkv[0], qkv[1], qkv[2]
        scale = Dh ** -0.5
        scores = torch.einsum("bhqd,bhkd->bhqk", q, k) * scale
        p = _softmax(scores, axis=-1)
        o = torch.einsum("bhqk,bhkd->bhqd", p, v)
        return (lambda x, *d: x.permute(*d))(o, 0, 2, 1, 3).reshape(B, S, D) @ wo

    def _B_ref(x, wq, wk, wv, wo):
        B, S, D = x.shape
        H = 32
        Dh = D // H
        q = (lambda x, *d: x.permute(*d))((x @ wq).reshape(B, S, H, Dh), 0, 2, 1, 3)
        k = x @ wk
        v = x @ wv
        scores = torch.einsum("bhqd,bkd->bhqk", q, k) * (Dh ** -0.5)
        p = _softmax(scores, axis=-1)
        o = torch.einsum("bhqk,bkd->bhqd", p, v)
        return (lambda x, *d: x.permute(*d))(o, 0, 2, 1, 3).reshape(B, S, H * Dh) @ wo

    a = _A_ref(A_x, A_wqkv, A_wo)
    b = _B_ref(B_x, B_wq, B_wk, B_wv, B_wo)
    return torch.concatenate([a, b], axis=-1)
```

```python
import math, struct, sys

NAME = "concat_heads__softmax_full_mha__grouped_kv_mqa__prompt"
K1 = "proj_kernel"
K2 = NAME + "_kernel"
K3 = "outp_kernel"

WS_Q = 0
QUNIT = 81920
WS_KV = 0x500000
KVUNIT = 163840
WS_O = 0xA40000
OBR = 0x280000
WS_SIZE = 0x1000000

def f32bits(x):
    return struct.unpack("<I", struct.pack("<f", x))[0]

QSCALE = (20.0 ** -0.5) * math.log2(math.e)


class Asm:
    def __init__(self):
        self.l = []
    def __call__(self, s):
        for line in s.strip("\n").split("\n"):
            self.l.append("  " + line.strip() if not line.strip().endswith(":") else line.strip())
    def c(self, s):
        self.l.append("  ; " + s)
    def text(self):
        return "\n".join(self.l) + "\n"


def vr(b, n):
    return f"v[{b}:{b+n-1}]"


def header(a, name):
    a.l.append(".text")
    a.l.append(f".globl {name}")
    a.l.append(".p2align 8")
    a.l.append(f".type {name},@function")
    a.l.append(f"{name}:")


def descriptor(a, name, vgpr, sgpr):
    acc = (vgpr + 3) // 4 * 4
    a.l.append('.section .rodata,"a"')
    a.l.append(".p2align 6")
    a.l.append(f".amdhsa_kernel {name}")
    a.l.append(f"  .amdhsa_next_free_vgpr {vgpr}")
    a.l.append(f"  .amdhsa_next_free_sgpr {sgpr}")
    a.l.append(f"  .amdhsa_accum_offset {acc}")
    a.l.append("  .amdhsa_group_segment_fixed_size 0")
    a.l.append("  .amdhsa_kernarg_size 88")
    a.l.append("  .amdhsa_user_sgpr_count 2")
    a.l.append("  .amdhsa_user_sgpr_kernarg_segment_ptr 1")
    a.l.append("  .amdhsa_system_sgpr_workgroup_id_x 1")
    a.l.append(".end_amdhsa_kernel")


M16 = "v_mfma_f32_32x32x16_bf16"
M8 = "v_mfma_f32_32x32x8_bf16"
SM = "v_smfmac_f32_32x32x32_bf16"
M1632 = "v_mfma_f32_16x16x32_bf16"

SLOT = 16384 + 20480 + 2560
K1_LDS = 4 * SLOT + 64


def gen_k1(a):
    header(a, K1)
    a(f"""
    s_cmp_ge_u32 s2, 256
    s_cbranch_scc1 K1_END
    s_load_dwordx16 s[16:31], s[0:1], 0
    s_load_dwordx2 s[4:5], s[0:1], 80
    v_and_b32 v1, 63, v0
    v_lshrrev_b32 v2, 6, v0
    s_and_b32 s50, s2, 7
    v_readfirstlane_b32 s12, v2
    s_lshr_b32 s51, s2, 3
    s_and_b32 s52, s51, 7
    s_lshr_b32 s53, s51, 3
    s_and_b32 s54, s50, 1
    s_lshr_b32 s55, s50, 1
    s_lshl_b32 s56, s54, 3
    s_add_u32 s56, s56, s52
    """)
    a.c("s50 xcd, s52 mt, s53 nt, s54 mhalf, s55 part(0 Q,1 K,2 V,3 B), s56 = m tile 0..15, s12 wave")
    a(f"""
    s_cmp_eq_u32 s55, 3
    s_cselect_b32 s57, 1, 0
    s_mov_b32 s58, 3840
    s_cselect_b32 s58, 1280, s58
    s_cselect_b32 s59, 0, s55
    s_mul_i32 s59, s59, 1280
    s_mul_i32 s60, s53, 320
    s_add_u32 s59, s59, s60
    s_waitcnt lgkmcnt(0)
    s_cmp_eq_u32 s57, 1
    s_cselect_b32 s32, s22, s16
    s_cselect_b32 s33, s23, s17
    s_mov_b32 s34, {2048*1280}
    s_mov_b32 s35, 0x00020000
    s_cselect_b32 s36, s24, s18
    s_cselect_b32 s37, s25, s19
    s_mov_b32 s38, {640*3840}
    s_cselect_b32 s38, {640*1280}, s38
    s_mov_b32 s39, 0x00020000
    s_cselect_b32 s42, {640*40}, 0
    s_mov_b32 s43, 0x00020000
    s_cmp_lt_u32 s53, 2
    s_cselect_b32 s40, s26, s28
    s_cselect_b32 s41, s27, s29
    s_mov_b32 s44, s4
    s_mov_b32 s45, s5
    s_mov_b32 s46, {WS_SIZE}
    s_mov_b32 s47, 0x00020000
    s_cmp_ge_u32 s12, 4
    s_cbranch_scc1 K1_LOADER
    """)
    a.c("s57 isB, s58 W row stride, s59 W col byte base")
    XREL = [4, 5, 6, 7]
    WREL, EREL = 8, 9
    XA = [10, 11, 12, 13]
    WA, EA = 14, 15
    T = [16, 17, 18, 19, 20]
    VBX = 21
    XF = [24, 28]
    WF = [32, 52]
    EF = [72, 76]
    ACC = 80
    EACC = 160
    a.c("---- compute wave setup")
    a(f"""
    v_and_b32 v2, 31, v1
    v_lshrrev_b32 v3, 5, v1
    s_lshl_b32 s61, s12, 12
    v_lshlrev_b32 v22, 7, v2
    v_add_u32 v22, s61, v22
    v_bfe_u32 v23, v2, 1, 3
    """)
    for ks in range(4):
        a(f"""
        v_add_u32 v{XREL[ks]}, {2*ks}, v3
        v_xor_b32 v{XREL[ks]}, v{XREL[ks]}, v23
        v_lshl_add_u32 v{XREL[ks]}, v{XREL[ks]}, 4, v22
        """)
    a(f"""
    v_bfe_u32 v22, v1, 2, 2
    v_lshl_add_u32 v22, v3, 3, v22
    v_bfe_u32 v23, v1, 4, 1
    v_lshlrev_b32 v23, 5, v23
    v_and_b32 v24, 3, v1
    v_lshl_add_u32 v23, v24, 3, v23
    v_mul_u32_u24 v{WREL}, 320, v22
    v_add_u32 v{WREL}, v{WREL}, v23
    v_add_u32 v{WREL}, 16384, v{WREL}
    v_mul_u32_u24 v{EREL}, 40, v22
    v_add_u32 v{EREL}, v{EREL}, v23
    v_add_u32 v{EREL}, 36864, v{EREL}
    """)
    for ks in range(4):
        a(f"v_mov_b32 v{XA[ks]}, v{XREL[ks]}")
    a(f"v_mov_b32 v{WA}, v{WREL}")
    a(f"v_mov_b32 v{EA}, v{EREL}")
    for i in range(96):
        a(f"v_mov_b32 v{ACC+i}, 0")
    a.c("store geometry: s62 unit size, s63 = base soffset (image base + head0*unit + tile*tilesz)")
    a(f"""
    s_lshl_b32 s64, s56, 2
    s_add_u32 s64, s64, s12
    s_lshl_b32 s65, s53, 3
    s_lshl_b32 s66, s57, 5
    s_add_u32 s66, s66, s65
    s_mul_i32 s67, s66, {QUNIT}
    s_mul_i32 s68, s64, 1280
    s_add_u32 s67, s67, s68
    s_add_u32 s67, s67, {WS_Q}
    s_mul_i32 s68, s65, {KVUNIT}
    s_mul_i32 s69, s64, 2560
    s_add_u32 s68, s68, s69
    s_add_u32 s68, s68, {WS_KV}
    s_add_u32 s70, s69, {WS_KV + 32*KVUNIT}
    s_sub_u32 s71, s55, 1
    s_cmp_lt_u32 s71, 2
    s_cselect_b32 s63, s68, s67
    s_mov_b32 s62, {QUNIT}
    s_cselect_b32 s62, {KVUNIT}, s62
    """)
    a.c("s64 token tile (0..63), s70 = B kv image base for this token tile")
    a(f"""
    v_lshlrev_b32 v{VBX}, 4, v2
    v_lshl_add_u32 v{VBX}, v3, 3, v{VBX}
    s_cmp_eq_u32 s55, 2
    s_cbranch_scc1 K1_SETUP_V
    v_cmp_lt_u32 vcc, 31, v1
    v_lshlrev_b32 v22, 4, v2
    v_lshlrev_b32 v23, 3, v2
    v_add_u32 v23, 1024, v23
    """)
    def intra(d):
        return (d >> 1) * 512 + (d & 1) * 8
    for d0 in range(5):
        d1 = (d0 + 1) % 5
        if d0 < 4:
            a(f"v_add_u32 v24, {intra(d0)}, v22")
        else:
            a(f"v_mov_b32 v24, v23")
        if d1 < 4:
            a(f"v_add_u32 v25, {intra(d1)}, v22")
        else:
            a(f"v_mov_b32 v25, v23")
        if d0 == 4:
            a(f"v_add_u32 v25, s62, v25")
        a(f"v_cndmask_b32 v{T[d0]}, v24, v25, vcc")
    a(f"""
    s_branch K1_SETUP_DONE
    K1_SETUP_V:
    s_mov_b32 s72, 0xCCCCCCCD
    s_mov_b32 s73, {KVUNIT}
    """)
    for n5 in range(5):
        a(f"""
        v_add_u32 v22, {32*n5}, v2
        v_mul_hi_u32 v23, v22, s72
        v_lshrrev_b32 v23, 4, v23
        v_mul_u32_u24 v24, 20, v23
        v_sub_u32 v24, v22, v24
        v_mul_lo_u32 v23, v23, s73
        v_lshl_add_u32 v23, v24, 4, v23
        v_lshl_add_u32 v{T[n5]}, v3, 3, v23
        """)
    a("K1_SETUP_DONE:")
    for k in range(8):
        if k == 0:
            a(f"s_mov_b32 s80, s63")
        else:
            a(f"s_add_u32 s{80+k}, s{80+k-1}, s62")
    a.c("s74: 0 QK, 1 V, 2 QK+Kextra, 3 QK+Vextra")
    a(f"""
    s_mov_b32 s74, 0
    s_cmp_eq_u32 s55, 2
    s_cselect_b32 s74, 1, s74
    s_lshr_b32 s75, s12, 1
    s_and_b32 s76, s53, 1
    s_xor_b32 s75, s75, s76
    s_xor_b32 s76, s57, 1
    s_or_b32 s75, s75, s76
    s_lshr_b32 s76, s53, 1
    s_add_u32 s76, s76, 2
    s_cmp_eq_u32 s75, 0
    s_cselect_b32 s74, s76, s74
    s_mov_b32 s77, 0
    s_mov_b32 s78, 0
    s_barrier
    """)

    def reads(ks, st, extra):
        r = [f"ds_read_b128 {vr(XF[st],4)}, v{XA[ks]}"]
        for n5 in range(5):
            for i in range(2):
                r.append(f"ds_read_b64_tr_b16 {vr(WF[st]+4*n5+2*i,2)}, v{WA} offset:{(16*ks+4*i)*320+n5*64}")
        if extra:
            for i in range(2):
                r.append(f"ds_read_b64_tr_b16 {vr(EF[st]+2*i,2)}, v{EA} offset:{(16*ks+4*i)*40}")
        return r

    def mfmas(st, orient, extra):
        m = []
        for n5 in range(5):
            w, x, d = vr(WF[st]+4*n5, 4), vr(XF[st], 4), vr(ACC+16*n5, 16)
            m.append(f"{M16} {d}, {w}, {x}, {d}" if orient == 0 else f"{M16} {d}, {x}, {w}, {d}")
        if extra:
            w, x, d = vr(EF[st], 4), vr(XF[st], 4), vr(EACC, 16)
            m.append(f"{M16} {d}, {w}, {x}, {d}" if extra == 1 else f"{M16} {d}, {x}, {w}, {d}")
        return m

    def kstep(st, nks, orient, extra):
        m = mfmas(st, orient, extra)
        r = reads(nks, 1 - st, extra)
        per = [4, 4, 5, 0, 0, 0]
        for i, mm in enumerate(m):
            a(mm)
            for _ in range(per[i]):
                if r:
                    a(r.pop(0))
        assert not r

    variants = [(0, 0), (1, 0), (0, 1), (0, 2)]
    a(f"""
    s_cmp_eq_u32 s74, 1
    s_cbranch_scc1 K1_V1
    s_cmp_eq_u32 s74, 2
    s_cbranch_scc1 K1_V2
    s_cmp_eq_u32 s74, 3
    s_cbranch_scc1 K1_V3
    """)
    for vi, (orient, extra) in enumerate(variants):
        a(f"K1_V{vi}:")
        for x in reads(0, 0, extra):
            a(x)
        a(f"K1_L{vi}:")
        for ks in range(3):
            a("s_waitcnt lgkmcnt(0)")
            kstep(ks & 1, ks + 1, orient, extra)
        a(f"""
        s_add_u32 s77, s77, {SLOT}
        s_cmp_eq_u32 s77, {4*SLOT}
        s_cselect_b32 s77, 0, s77
        s_waitcnt lgkmcnt(0)
        s_barrier
        """)
        for ks in range(4):
            a(f"v_add_u32 v{XA[ks]}, s77, v{XREL[ks]}")
        a(f"v_add_u32 v{WA}, s77, v{WREL}")
        a(f"v_add_u32 v{EA}, s77, v{EREL}")
        kstep(1, 0, orient, extra)
        a(f"""
        s_add_u32 s78, s78, 1
        s_cmp_lt_u32 s78, 10
        s_cbranch_scc1 K1_L{vi}
        """)
        if vi == 1:
            a("s_branch K1_EPI_V")
        elif vi < 3:
            a("s_branch K1_EPI_QK")
    a("K1_EPI_QK:")
    a("s_nop 15")
    a("s_waitcnt lgkmcnt(0)")
    a(f"""
    s_cmp_eq_u32 s55, 1
    s_cbranch_scc1 K1_NOSCALE
    s_mov_b32 s79, {hex(f32bits(QSCALE))}
    """)
    for i in range(80):
        a(f"v_mul_f32 v{ACC+i}, s79, v{ACC+i}")
    a("K1_NOSCALE:")
    tmp = 24
    for n5 in range(5):
        for rq in range(4):
            g4 = 8 * n5 + 2 * rq
            hl0, d0 = g4 // 5, g4 % 5
            b = ACC + 16 * n5 + 4 * rq
            t = tmp + 2 * ((n5 * 4 + rq) % 16)
            a(f"v_cvt_pk_bf16_f32 v{t}, v{b}, v{b+1}")
            a(f"v_cvt_pk_bf16_f32 v{t+1}, v{b+2}, v{b+3}")
            a(f"buffer_store_dwordx2 {vr(t,2)}, v{T[d0]}, s[44:47], s{80+hl0} offen")
    a(f"""
    s_cmp_lt_u32 s74, 2
    s_cbranch_scc1 K1_END
    s_cmp_eq_u32 s74, 3
    s_cbranch_scc1 K1_EPI_VX
    """)
    for rq in range(3):
        b = EACC + 4 * rq
        t = 60 + 2 * rq
        a(f"v_cvt_pk_bf16_f32 v{t}, v{b}, v{b+1}")
        a(f"v_cvt_pk_bf16_f32 v{t+1}, v{b+2}, v{b+3}")
        if rq == 2:
            a("s_mov_b32 exec_hi, 0")
        a(f"buffer_store_dwordx2 {vr(t,2)}, v{T[2*rq]}, s[44:47], s70 offen")
    a("s_endpgm")
    a("K1_EPI_VX:")
    a("s_mov_b32 s90, 0x000fffff")
    a("s_mov_b32 s91, 0x000fffff")
    for rq in range(4):
        b = EACC + 4 * rq
        t = 60 + 2 * rq
        a(f"v_cvt_pk_bf16_f32 v{t}, v{b}, v{b+1}")
        a(f"v_cvt_pk_bf16_f32 v{t+1}, v{b+2}, v{b+3}")
    a("s_mov_b64 exec, s[90:91]")
    for rq in range(4):
        t = 60 + 2 * rq
        a(f"buffer_store_dwordx2 {vr(t,2)}, v{VBX}, s[44:47], s70 offen offset:{1280+(rq>>1)*640+(rq&1)*320}")
    a("s_endpgm")
    a("K1_EPI_V:")
    a("s_nop 15")
    a("s_waitcnt lgkmcnt(0)")
    for n5 in range(5):
        for rq in range(4):
            b = ACC + 16 * n5 + 4 * rq
            t = tmp + 2 * ((n5 * 4 + rq) % 16)
            a(f"v_cvt_pk_bf16_f32 v{t}, v{b}, v{b+1}")
            a(f"v_cvt_pk_bf16_f32 v{t+1}, v{b+2}, v{b+3}")
            a(f"buffer_store_dwordx2 {vr(t,2)}, v{T[n5]}, s[44:47], s63 offen offset:{1280+(rq>>1)*640+(rq&1)*320}")
    a("s_endpgm")

    a("K1_LOADER:")
    XO = 4
    WO = [5, 6, 7, 8, 9]
    EO = 10
    a(f"""
    s_sub_u32 s12, s12, 4
    s_lshl_b32 s61, s56, 7
    s_lshl_b32 s62, s12, 3
    s_add_u32 s61, s61, s62
    v_lshrrev_b32 v2, 3, v1
    v_add_u32 v2, s61, v2
    v_mul_u32_u24 v2, 1280, v2
    s_and_b32 s62, s12, 1
    s_lshl_b32 s62, s62, 2
    v_lshrrev_b32 v3, 4, v1
    v_add_u32 v3, s62, v3
    v_and_b32 v11, 7, v1
    v_xor_b32 v3, v3, v11
    v_lshl_add_u32 v{XO}, v3, 4, v2
    s_mov_b32 s72, 0xCCCCCCCD
    s_lshl_b32 s63, s12, 4
    """)
    for t in range(5):
        a(f"""
        v_add_u32 v2, {64*t}, v1
        v_mul_hi_u32 v3, v2, s72
        v_lshrrev_b32 v3, 4, v3
        v_mul_u32_u24 v11, 20, v3
        v_sub_u32 v11, v2, v11
        v_add_u32 v3, s63, v3
        v_mul_lo_u32 v3, v3, s58
        v_lshl_add_u32 v3, v11, 4, v3
        v_add_u32 v{WO[t]}, s59, v3
        """)
    a(f"""
    s_mul_i32 s64, s12, 640
    v_lshlrev_b32 v{EO}, 4, v1
    v_add_u32 v{EO}, s64, v{EO}
    s_lshl_b32 s65, s12, 10
    s_mul_i32 s66, s12, 5120
    s_add_u32 s66, s66, 16384
    s_add_u32 s67, s64, 36864
    s_lshl_b32 s68, s58, 6
    s_mov_b32 s70, 0
    s_mov_b32 s71, 0
    s_mov_b32 s73, 0
    s_mov_b32 s74, 0
    s_mov_b32 s90, -1
    s_mov_b32 s91, 0xff
    """)
    a.c("s65/s66/s67 LDS rel bases; s70 x soff, s71 W soff, s73 E soff, s74 slot base")

    def issue_stage():
        for t in range(4):
            a(f"""
            s_add_u32 s75, s74, s65
            s_add_u32 m0, s75, {4096*t}
            s_add_u32 s76, s70, {40960*t}
            buffer_load_dwordx4 v{XO}, s[32:35], s76 offen lds
            """)
        for t in range(5):
            a(f"""
            s_add_u32 s75, s74, s66
            s_add_u32 m0, s75, {1024*t}
            s_nop 0
            buffer_load_dwordx4 v{WO[t]}, s[36:39], s71 offen lds
            """)
        a(f"""
        s_add_u32 m0, s74, s67
        s_mov_b64 exec, s[90:91]
        buffer_load_dwordx4 v{EO}, s[40:43], s73 offen lds
        s_mov_b64 exec, -1
        s_add_u32 s70, s70, 128
        s_add_u32 s71, s71, s68
        s_add_u32 s73, s73, 2560
        s_add_u32 s74, s74, {SLOT}
        s_cmp_eq_u32 s74, {4*SLOT}
        s_cselect_b32 s74, 0, s74
        """)
    a("s_mov_b32 s77, 0")
    a("K1_LP:")
    issue_stage()
    a(f"""
    s_add_u32 s77, s77, 1
    s_cmp_lt_u32 s77, 4
    s_cbranch_scc1 K1_LP
    s_cmp_gt_u32 s77, 4
    s_cbranch_scc1 K1_LP2
    s_waitcnt vmcnt(30)
    s_barrier
    K1_LP2:
    s_waitcnt vmcnt(20)
    s_barrier
    s_cmp_lt_u32 s77, 10
    s_cbranch_scc1 K1_LP
    s_waitcnt vmcnt(10)
    s_barrier
    s_waitcnt vmcnt(0)
    s_barrier
    K1_END:
    s_endpgm
    """)
    descriptor(a, K1, 176, 96)


K2_LDS = 163840


def gen_k2(a):
    header(a, K2)
    VL, L16, KA, KH, VA, IDX = 1, 2, 3, 4, 5, 6
    QA_LO, QA_HI, QB_HI, QB_LO = 12, 16, 18, 20
    KLO = [24, 32]
    KHI = [28, 30]
    VB = [36, 44]
    SA, SB, OA, OB = 52, 68, 84, 100
    MA, MB = 116, 117
    a(f"""
    s_cmp_ge_u32 s2, 256
    s_cbranch_scc1 K2_END
    s_load_dwordx2 s[4:5], s[0:1], 80
    v_and_b32 v{VL}, 63, v0
    v_lshrrev_b32 v7, 6, v0
    s_and_b32 s13, s2, 7
    v_readfirstlane_b32 s12, v7
    s_lshr_b32 s14, s2, 3
    s_lshr_b32 s15, s14, 4
    s_bfe_u32 s16, s14, 0x20002
    s_lshl_b32 s17, s13, 2
    s_add_u32 s17, s17, s16
    s_and_b32 s18, s14, 3
    s_lshl_b32 s19, s15, 5
    s_add_u32 s19, s19, s17
    s_cmp_eq_u32 s15, 0
    s_cselect_b32 s21, s17, 32
    """)
    a.c("s12 wave, s15 br, s17 head, s18 qb, s19 unit, s21 kv unit")
    a(f"""
    s_mul_i32 s25, s19, {QUNIT}
    s_mul_i32 s26, s18, 20480
    s_add_u32 s25, s25, s26
    s_mul_i32 s26, s12, 2560
    s_add_u32 s25, s25, s26
    s_mul_i32 s27, s21, {KVUNIT}
    s_lshl_b32 s28, s12, 10
    s_add_u32 s27, s27, s28
    s_add_u32 s27, s27, {WS_KV}
    v_lshlrev_b32 v{L16}, 4, v{VL}
    v_and_b32 v7, 31, v{VL}
    v_lshrrev_b32 v8, 5, v{VL}
    v_lshlrev_b32 v{KH}, 3, v7
    v_lshl_add_u32 v{KH}, v8, 2, v{KH}
    v_add_u32 v{KH}, 1024, v{KH}
    v_mul_u32_u24 v{VA}, 20, v8
    v_add_u32 v{VA}, v{VA}, v7
    v_lshlrev_b32 v{VA}, 4, v{VA}
    v_add_u32 v{VA}, 1280, v{VA}
    s_waitcnt lgkmcnt(0)
    s_mov_b32 s8, s4
    s_mov_b32 s9, s5
    s_mov_b32 s10, {WS_SIZE}
    s_mov_b32 s11, 0x00020000
    buffer_load_dwordx4 {vr(QA_LO,4)}, v{L16}, s[8:11], s25 offen
    buffer_load_dword v{QA_HI}, v{KH}, s[8:11], s25 offen
    buffer_load_dwordx4 {vr(QB_LO,4)}, v{L16}, s[8:11], s25 offen offset:1280
    s_mov_b32 m0, s28
    buffer_load_dword v{QB_HI}, v{KH}, s[8:11], s25 offen offset:1280
    """)
    for r in range(20):
        a(f"buffer_load_dwordx4 v{L16}, s[8:11], s27 offen lds")
        if r < 19:
            a(f"s_add_u32 m0, m0, 8192")
            a(f"s_add_u32 s27, s27, 8192")
    a(f"""
    v_mov_b32 v{KA}, v{L16}
    v_mov_b32 v{IDX}, 0xdddddddd
    v_mov_b32 v{QA_HI+1}, 0
    v_mov_b32 v{QB_HI+1}, 0
    v_mov_b32 v{KHI[0]+1}, 0
    v_mov_b32 v{KHI[1]+1}, 0
    v_and_b32 v9, 27, v7
    v_cmp_eq_u32 vcc, 24, v9
    v_mov_b32 v9, 0
    v_mov_b32 v10, 0x3f803f80
    s_mov_b32 s22, 0x000fffff
    s_mov_b32 s23, 0x000fffff
    v_cndmask_b32 v9, v9, v10, vcc
    """)
    for i in range(16):
        a(f"v_mov_b32 v{VB[0]+i}, v9")
    for i in range(16):
        a(f"v_mov_b32 v{SB+i}, 0")
    for i in range(32):
        a(f"v_mov_b32 v{OA+i}, 0")
    a(f"""
    s_mov_b32 s20, 0
    s_waitcnt vmcnt(16)
    s_barrier
    ds_read_b128 {vr(KLO[0],4)}, v{KA}
    ds_read_b32 v{KHI[0]}, v{KH}
    ds_read_b128 {vr(KLO[1],4)}, v{KA} offset:2560
    ds_read_b32 v{KHI[1]}, v{KH} offset:2560
    s_mov_b64 exec, s[22:23]
    ds_read_b128 {vr(VB[0],4)}, v{VA}
    ds_read_b128 {vr(VB[0]+4,4)}, v{VA} offset:640
    s_mov_b64 exec, -1
    s_waitcnt lgkmcnt(0)
    {M16} {vr(SA,16)}, {vr(KLO[0],4)}, {vr(QA_LO,4)}, 0
    {M8} {vr(SA,16)}, {vr(KHI[0],2)}, {vr(QA_HI,2)}, {vr(SA,16)}
    s_nop 15
    """)

    def ex(base, lo, hi):
        for i in range(lo, hi):
            a(f"v_exp_f32 v{base+i}, v{base+i}")

    a(".p2align 6")
    a("K2_LOOP:")
    for j in range(8):
        p = j & 1
        ex(SA, 0, 2)
        a(f"{SM} {vr(OB,16)}, {vr(VB[1-p]+4,4)}, {vr(SB+8,8)}, v{IDX}")
        ex(SA, 2, 4)
        a(f"{M16} {vr(SB,16)}, {vr(KLO[p],4)}, {vr(QB_LO,4)}, 0")
        ex(SA, 4, 8)
        a(f"{M8} {vr(SB,16)}, {vr(KHI[p],2)}, {vr(QB_HI,2)}, {vr(SB,16)}")
        a("s_waitcnt lgkmcnt(0)")
        a(f"ds_read_b128 {vr(KLO[p],4)}, v{KA} offset:{(j+2)*2560}")
        a(f"ds_read_b32 v{KHI[p]}, v{KH} offset:{(j+2)*2560}")
        ex(SA, 8, 12)
        a(f"{SM} {vr(OA,16)}, {vr(VB[p],4)}, {vr(SA,8)}, v{IDX}")
        ex(SA, 12, 16)
        ex(SB, 0, 2)
        a(f"{SM} {vr(OA,16)}, {vr(VB[p]+4,4)}, {vr(SA+8,8)}, v{IDX}")
        ex(SB, 2, 4)
        a(f"{M16} {vr(SA,16)}, {vr(KLO[1-p],4)}, {vr(QA_LO,4)}, 0")
        ex(SB, 4, 8)
        a(f"{M8} {vr(SA,16)}, {vr(KHI[1-p],2)}, {vr(QA_HI,2)}, {vr(SA,16)}")
        a("s_mov_b64 exec, s[22:23]")
        a(f"ds_read_b128 {vr(VB[1-p],4)}, v{VA} offset:{(j+1)*2560}")
        a(f"ds_read_b128 {vr(VB[1-p]+4,4)}, v{VA} offset:{(j+1)*2560+640}")
        a("s_mov_b64 exec, -1")
        ex(SB, 8, 12)
        a(f"{SM} {vr(OB,16)}, {vr(VB[p],4)}, {vr(SB,8)}, v{IDX}")
        ex(SB, 12, 16)
    a(f"""
    v_add_u32 v{KA}, 20480, v{KA}
    v_add_u32 v{KH}, 20480, v{KH}
    v_add_u32 v{VA}, 20480, v{VA}
    s_add_u32 s20, s20, 1
    s_cmp_gt_u32 s20, 2
    s_cbranch_scc1 K2_NOSYNC
    s_cmp_eq_u32 s20, 2
    s_cbranch_scc1 K2_SYNC2
    s_waitcnt vmcnt(14)
    s_barrier
    s_branch K2_LOOP
    K2_SYNC2:
    s_waitcnt vmcnt(0)
    s_barrier
    s_branch K2_LOOP
    K2_NOSYNC:
    s_cmp_lt_u32 s20, 8
    s_cbranch_scc1 K2_LOOP
    {SM} {vr(OB,16)}, {vr(VB[1]+4,4)}, {vr(SB+8,8)}, v{IDX}
    s_waitcnt lgkmcnt(0)
    s_nop 15
    """)
    a.c("---- safety check of the unshifted softmax: l within [2^-30, 2^60], all O finite; else redo with the true max")
    a(f"""
    s_mov_b32 s30, {hex(f32bits(2.0**-30))}
    s_mov_b32 s31, {hex(f32bits(2.0**60))}
    v_mul_f32 v7, 0, v{OA}
    """)
    for i in range(1, 12):
        a(f"v_fma_f32 v7, v{OA+i}, 0, v7")
    for i in range(12):
        a(f"v_fma_f32 v7, v{OB+i}, 0, v7")
    a(f"""
    v_min_f32 v8, v{OA+12}, v{OB+12}
    v_max_f32 v9, v{OA+12}, v{OB+12}
    v_add_f32 v7, v7, v{OA+12}
    v_add_f32 v7, v7, v{OB+12}
    v_cmp_le_f32 vcc, s30, v8
    v_cmp_ge_f32 s[32:33], s31, v9
    v_cmp_o_f32 s[34:35], v7, v7
    s_nop 3
    s_and_b64 vcc, vcc, s[32:33]
    s_and_b64 vcc, vcc, s[34:35]
    s_cmp_eq_u64 vcc, -1
    s_cbranch_scc0 K2_FALLBACK
    K2_STORE:
    """)
    a(f"""
    s_mul_i32 s36, s15, {OBR}
    s_lshl_b32 s37, s18, 5
    s_lshl_b32 s38, s12, 2
    s_add_u32 s37, s37, s38
    s_mul_i32 s37, s37, 20480
    s_add_u32 s36, s36, s37
    s_add_u32 s36, s36, {WS_O}
    s_lshr_b32 s37, s17, 1
    s_lshl_b32 s37, s37, 10
    s_and_b32 s38, s17, 1
    s_lshl_b32 s38, s38, 9
    s_add_u32 s37, s37, s38
    s_add_u32 s37, s37, s36
    s_lshr_b32 s38, s17, 3
    s_lshl_b32 s38, s38, 10
    s_add_u32 s38, s38, 16384
    s_bfe_u32 s39, s17, 0x10002
    s_lshl_b32 s39, s39, 9
    s_add_u32 s38, s38, s39
    s_and_b32 s39, s17, 1
    s_lshl_b32 s39, s39, 8
    s_add_u32 s38, s38, s39
    s_bfe_u32 s39, s17, 0x10001
    s_lshl_b32 s39, s39, 3
    s_add_u32 s38, s38, s39
    s_add_u32 s38, s38, s36
    v_and_b32 v7, 15, v{VL}
    v_lshlrev_b32 v7, 4, v7
    v_bfe_u32 v8, v{VL}, 4, 1
    v_mul_u32_u24 v8, 20480, v8
    v_add_u32 v7, v7, v8
    v_lshrrev_b32 v8, 5, v{VL}
    v_lshl_add_u32 v8, v8, 8, v7
    v_rcp_f32 v10, v{OA+12}
    v_rcp_f32 v11, v{OB+12}
    s_add_u32 s40, s37, 40960
    s_add_u32 s41, s38, 40960
    """)
    for (o, r, t) in ((OA, 10, SA), (OB, 11, SB)):
        for i in range(12):
            a(f"v_mul_f32 v{o+i}, v{o+i}, v{r}")
        for i in range(6):
            a(f"v_cvt_pk_bf16_f32 v{t+i}, v{o+2*i}, v{o+2*i+1}")
    a(f"""
    buffer_store_dwordx4 {vr(SA,4)}, v8, s[8:11], s37 offen
    buffer_store_dwordx4 {vr(SB,4)}, v8, s[8:11], s40 offen
    s_mov_b32 exec_hi, 0
    buffer_store_dwordx2 {vr(SA+4,2)}, v7, s[8:11], s38 offen
    buffer_store_dwordx2 {vr(SB+4,2)}, v7, s[8:11], s41 offen
    K2_END:
    s_endpgm
    """)
    a("K2_FALLBACK:")
    a(f"""
    v_mov_b32 v{MA}, 0xff800000
    v_mov_b32 v{MB}, 0xff800000
    v_subrev_u32 v{KA}, {8*20480}, v{KA}
    v_subrev_u32 v{KH}, {8*20480}, v{KH}
    v_subrev_u32 v{VA}, {8*20480}, v{VA}
    s_mov_b32 s20, 0
    K2_FB1:
    ds_read_b128 {vr(KLO[0],4)}, v{KA}
    ds_read_b32 v{KHI[0]}, v{KH}
    s_waitcnt lgkmcnt(0)
    {M16} {vr(SA,16)}, {vr(KLO[0],4)}, {vr(QA_LO,4)}, 0
    {M8} {vr(SA,16)}, {vr(KHI[0],2)}, {vr(QA_HI,2)}, {vr(SA,16)}
    {M16} {vr(SB,16)}, {vr(KLO[0],4)}, {vr(QB_LO,4)}, 0
    {M8} {vr(SB,16)}, {vr(KHI[0],2)}, {vr(QB_HI,2)}, {vr(SB,16)}
    v_add_u32 v{KA}, 2560, v{KA}
    v_add_u32 v{KH}, 2560, v{KH}
    s_nop 15
    """)
    for i in range(8):
        a(f"v_max3_f32 v{MA}, v{SA+2*i}, v{SA+2*i+1}, v{MA}")
        a(f"v_max3_f32 v{MB}, v{SB+2*i}, v{SB+2*i+1}, v{MB}")
    a(f"""
    s_add_u32 s20, s20, 1
    s_cmp_lt_u32 s20, 64
    s_cbranch_scc1 K2_FB1
    v_mov_b32 v7, v{MA}
    v_mov_b32 v8, v{MB}
    s_nop 1
    v_permlane32_swap_b32 v7, v{MA}
    v_permlane32_swap_b32 v8, v{MB}
    s_nop 1
    v_max_f32 v{MA}, v{MA}, v7
    v_max_f32 v{MB}, v{MB}, v8
    v_subrev_u32 v{KA}, {8*20480}, v{KA}
    v_subrev_u32 v{KH}, {8*20480}, v{KH}
    """)
    for i in range(32):
        a(f"v_mov_b32 v{OA+i}, 0")
    a(f"""
    s_mov_b32 s20, 0
    K2_FB2:
    ds_read_b128 {vr(KLO[0],4)}, v{KA}
    ds_read_b32 v{KHI[0]}, v{KH}
    s_mov_b64 exec, s[22:23]
    ds_read_b128 {vr(VB[0],4)}, v{VA}
    ds_read_b128 {vr(VB[0]+4,4)}, v{VA} offset:640
    s_mov_b64 exec, -1
    s_waitcnt lgkmcnt(0)
    {M16} {vr(SA,16)}, {vr(KLO[0],4)}, {vr(QA_LO,4)}, 0
    {M8} {vr(SA,16)}, {vr(KHI[0],2)}, {vr(QA_HI,2)}, {vr(SA,16)}
    {M16} {vr(SB,16)}, {vr(KLO[0],4)}, {vr(QB_LO,4)}, 0
    {M8} {vr(SB,16)}, {vr(KHI[0],2)}, {vr(QB_HI,2)}, {vr(SB,16)}
    v_add_u32 v{KA}, 2560, v{KA}
    v_add_u32 v{KH}, 2560, v{KH}
    v_add_u32 v{VA}, 2560, v{VA}
    s_nop 15
    """)
    for i in range(16):
        a(f"v_sub_f32 v{SA+i}, v{SA+i}, v{MA}")
        a(f"v_sub_f32 v{SB+i}, v{SB+i}, v{MB}")
    ex(SA, 0, 16)
    ex(SB, 0, 16)
    a(f"""
    s_nop 1
    {SM} {vr(OA,16)}, {vr(VB[0],4)}, {vr(SA,8)}, v{IDX}
    {SM} {vr(OA,16)}, {vr(VB[0]+4,4)}, {vr(SA+8,8)}, v{IDX}
    {SM} {vr(OB,16)}, {vr(VB[0],4)}, {vr(SB,8)}, v{IDX}
    {SM} {vr(OB,16)}, {vr(VB[0]+4,4)}, {vr(SB+8,8)}, v{IDX}
    s_add_u32 s20, s20, 1
    s_cmp_lt_u32 s20, 64
    s_cbranch_scc1 K2_FB2
    s_nop 15
    s_branch K2_STORE
    """)
    descriptor(a, K2, 120, 48)


K3_LDS = 102400


def gen_k3(a):
    header(a, K3)
    WF = [16, 36]
    ACC = 56
    OF = 96
    a(f"""
    s_cmp_ge_u32 s2, 256
    s_cbranch_scc1 K3_END
    s_load_dwordx2 s[4:5], s[0:1], 80
    s_load_dwordx2 s[6:7], s[0:1], 64
    s_load_dwordx2 s[16:17], s[0:1], 16
    s_load_dwordx2 s[18:19], s[0:1], 56
    v_and_b32 v1, 63, v0
    v_lshrrev_b32 v2, 6, v0
    s_and_b32 s13, s2, 7
    v_readfirstlane_b32 s12, v2
    s_lshr_b32 s14, s2, 3
    s_lshr_b32 s15, s13, 2
    s_and_b32 s20, s13, 3
    s_lshl_b32 s20, s20, 2
    s_and_b32 s21, s14, 3
    s_add_u32 s20, s20, s21
    s_lshr_b32 s21, s14, 2
    """)
    a.c("s12 wave, s15 br, s20 token tile(128), s21 col tile(80)")
    a(f"""
    s_mul_i32 s22, s15, {OBR}
    s_lshl_b32 s23, s20, 3
    s_lshl_b32 s24, s12, 1
    s_add_u32 s23, s23, s24
    s_mul_i32 s23, s23, 20480
    s_add_u32 s22, s22, s23
    s_add_u32 s22, s22, {WS_O}
    s_add_u32 s23, s22, 20480
    s_mul_i32 s24, s21, 160
    s_mul_i32 s25, s12, {40*1280}
    s_add_u32 s25, s25, s24
    s_mul_i32 s26, s12, {160*1280}
    s_add_u32 s26, s26, s24
    s_mul_i32 s27, s12, 5120
    s_mov_b32 s28, 0xCCCCCCCD
    v_lshlrev_b32 v3, 4, v1
    """)
    a.c("s22/s23 O image soffsets, s25 Wo soffset main, s26 Wo soffset leftover, s27 LDS base")
    VM = [16, 17, 18, 19, 20]
    VLf = [21, 22, 23, 24, 25]
    for t in range(5):
        a(f"""
        v_add_u32 v4, {64*t}, v1
        v_mul_hi_u32 v5, v4, s28
        v_lshrrev_b32 v5, 3, v5
        v_mul_u32_u24 v6, 10, v5
        v_sub_u32 v6, v4, v6
        v_lshrrev_b32 v7, 4, v5
        v_mul_u32_u24 v7, 20, v7
        v_and_b32 v8, 15, v5
        v_add_u32 v7, v7, v8
        v_mul_u32_u24 v7, 1280, v7
        v_lshl_add_u32 v{VM[t]}, v6, 4, v7
        v_lshrrev_b32 v7, 2, v5
        v_mul_u32_u24 v7, 20, v7
        v_and_b32 v8, 3, v5
        v_add3_u32 v7, v7, v8, 16
        v_mul_u32_u24 v7, 1280, v7
        v_lshl_add_u32 v{VLf[t]}, v6, 4, v7
        """)
    a(f"""
    s_waitcnt lgkmcnt(0)
    s_mov_b32 s8, s4
    s_mov_b32 s9, s5
    s_mov_b32 s10, {WS_SIZE}
    s_mov_b32 s11, 0x00020000
    s_cmp_eq_u32 s15, 0
    s_cselect_b32 s32, s16, s18
    s_cselect_b32 s33, s17, s19
    s_mov_b32 s34, {640*1280}
    s_mov_b32 s35, 0x00020000
    s_mov_b32 s36, s6
    s_mov_b32 s37, s7
    s_mov_b32 s38, {2048*2560}
    s_mov_b32 s39, 0x00020000
    """)
    for rho in range(5):
        for t in range(5):
            a(f"s_add_u32 m0, s27, {rho*20480 + t*1024}")
            if rho < 4:
                if t == 0 and rho > 0:
                    a(f"s_add_u32 s25, s25, {160*1280}")
                else:
                    a("s_nop 0")
                a(f"buffer_load_dwordx4 v{VM[t]}, s[32:35], s25 offen lds")
            else:
                a("s_nop 0")
                a(f"buffer_load_dwordx4 v{VLf[t]}, s[32:35], s26 offen lds")
        for kk in range(4):
            kap = 4 * rho + kk
            for tt in range(2):
                r = OF + (tt * 20 + kap) * 4
                a(f"buffer_load_dwordx4 {vr(r,4)}, v3, s[8:11], s{22+tt} offen offset:{kk*1024}")
        if rho < 4:
            a("s_add_u32 s22, s22, 4096")
            a("s_add_u32 s23, s23, 4096")
    a(f"""
    v_lshrrev_b32 v4, 5, v1
    v_lshlrev_b32 v4, 4, v4
    v_bfe_u32 v5, v1, 4, 1
    v_lshl_add_u32 v4, v5, 2, v4
    v_bfe_u32 v5, v1, 2, 2
    v_add_u32 v4, v4, v5
    v_mul_u32_u24 v4, 160, v4
    v_and_b32 v5, 3, v1
    v_mul_u32_u24 v5, 40, v5
    v_add_u32 v4, v4, v5
    v_add_u32 v5, {10*5120}, v4
    """)
    for i in range(40):
        a(f"v_mov_b32 v{ACC+i}, 0")
    a(f"""
    s_lshl_b32 s40, s20, 7
    s_lshl_b32 s41, s12, 5
    s_add_u32 s40, s40, s41
    s_mul_i32 s40, s40, 2560
    s_mul_i32 s41, s15, 1280
    s_add_u32 s40, s40, s41
    s_add_u32 s40, s40, s24
    s_add_u32 s41, s40, {16*2560}
    v_and_b32 v6, 15, v1
    v_mul_u32_u24 v6, 2560, v6
    v_lshrrev_b32 v7, 4, v1
    v_mul_u32_u24 v7, 40, v7
    v_add_u32 v6, v6, v7
    """)

    def reads(kap, st):
        r = []
        base, off = (4, kap * 5120) if kap < 10 else (5, (kap - 10) * 5120)
        for j in range(5):
            for i in range(2):
                r.append(f"ds_read_b64_tr_b16 {vr(WF[st]+4*j+2*i,2)}, v{base} offset:{off+i*1280+8*j}")
        return r
    a("s_waitcnt vmcnt(52)")
    a("s_barrier")
    for x in reads(0, 0):
        a(x)
    for kap in range(20):
        st = kap & 1
        nxt = kap + 1
        a("s_waitcnt lgkmcnt(0)")
        if nxt < 20 and nxt % 4 == 0:
            a(f"s_waitcnt vmcnt({13*(4-nxt//4)})")
            a("s_barrier")
        r = reads(nxt, 1 - st) if nxt < 20 else []
        n = 0
        for j in range(5):
            for tt in range(2):
                d = vr(ACC + (tt * 5 + j) * 4, 4)
                a(f"{M1632} {d}, {vr(WF[st]+4*j,4)}, {vr(OF+(tt*20+kap)*4,4)}, {d}")
                for _ in range(2):
                    if r:
                        a(r.pop(0))
    a("s_nop 15")
    for tt in range(2):
        t = 16 + tt * 12
        for j in range(5):
            b = ACC + (tt * 5 + j) * 4
            a(f"v_cvt_pk_bf16_f32 v{t+2*j}, v{b}, v{b+1}")
            a(f"v_cvt_pk_bf16_f32 v{t+2*j+1}, v{b+2}, v{b+3}")
        a(f"buffer_store_dwordx4 {vr(t,4)}, v6, s[36:39], s{40+tt} offen")
        a(f"buffer_store_dwordx4 {vr(t+4,4)}, v6, s[36:39], s{40+tt} offen offset:16")
        a(f"buffer_store_dwordx2 {vr(t+8,2)}, v6, s[36:39], s{40+tt} offen offset:32")
    a("K3_END:")
    a("s_endpgm")
    descriptor(a, K3, 256, 48)


def main(path):
    a = Asm()
    a.l += [
        "; Fused MHA (branch A) + MQA (branch B) attention block, three launches:",
        ";   proj_kernel : Q/K/V projections -> workspace images laid out as MFMA fragments",
        ";   attention   : softmax(QK^T)V per (head, 512 queries), K/V image resident in LDS",
        ";   outp_kernel : output projections, concatenated into d_out",
        "; Generated by dev/gen.py (hand-written generator).",
        f"; @launch kernel={K1} grid=(256,1,1) block=(512,1,1) lds={K1_LDS}",
        f"; @launch kernel={K2} grid=(256,1,1) block=(512,1,1) lds={K2_LDS}",
        f"; @launch kernel={K3} grid=(256,1,1) block=(256,1,1) lds={K3_LDS}",
        '.amdgcn_target "amdgcn-amd-amdhsa--gfx950"',
    ]
    gen_k1(a)
    gen_k2(a)
    gen_k3(a)
    open(path, "w").write(a.text())
    print(f"{K1} 256 512 {K1_LDS} {K2} 256 512 {K2_LDS} {K3} 256 256 {K3_LDS}")


if __name__ == "__main__":
    main(sys.argv[1] if len(sys.argv) > 1 else f"cdna_kernels/{NAME}.s")
```

```python
import math, os, re, struct, sys

NAME = "concat_heads__softmax_full_mha__grouped_kv_mqa__prompt"
KN = NAME + "_kernel"

WS_Q = 0
QUNIT = 81920
WS_KV = 0x500000
KVUNIT = 163840
WS_O = 0xA40000
OBR = 0x280000
WS_FLAG = WS_O + 2 * OBR
WS_ST = 0xF80000
WS_SIZE = 0x1000000
LDS = 163840
NV = 168

env = lambda k, d: os.environ.get(k, d)
STAMP = int(env("STAMP", "0"))
ROT_MASK = int(env("ROT_MASK", "3"))
ROT_MUL = int(env("ROT_MUL", "10"))
ROT_P = int(env("ROT_P", "0"))
ROT_H = int(env("ROT_H", "0"))
POLL_SLEEP = int(env("POLL_SLEEP", "4"))
NPOLL = int(env("NPOLL", "1"))
LA = int(env("K3_LA", "7"))
STMOD = env("STMOD", "sc1")
OUTMOD = env("OUTMOD", "nt")
LOWJ = int(env("LOWJ", "5"))
SPIN_MAX = 1 << 16
STV = 166


def f32bits(x):
    return struct.unpack("<I", struct.pack("<f", x))[0]


QSCALE = (20.0 ** -0.5) * math.log2(math.e)


class Asm:
    def __init__(self):
        self.l = []

    def __call__(self, s):
        for line in s.strip("\n").split("\n"):
            t = line.strip()
            if t:
                self.l.append(t if t.endswith(":") else "  " + t)

    def c(self, s):
        self.l.append("  ; " + s)

    def text(self):
        return "\n".join(self.l) + "\n"


def vr(b, n):
    return f"v[{b}:{b+n-1}]"


def stamp(a, first=False, lvl=1):
    if STAMP < lvl:
        return
    if first:
        a(f"v_mov_b32 v{STV}, 0")
        a("s_mov_b32 s91, 0")
    a(f"""
    s_memtime s[96:97]
    s_memrealtime s[98:99]
    s_waitcnt lgkmcnt(0)
    s_mov_b32 s90, m0
    s_mov_b32 m0, s91
    s_nop 0
    v_writelane_b32 v{STV}, s96, m0
    s_add_u32 m0, s91, 1
    s_nop 0
    v_writelane_b32 v{STV}, s98, m0
    s_add_u32 s91, s91, 2
    s_mov_b32 m0, s90
    """)


def stamp_store(a):
    if not STAMP:
        return
    a(f"""
    s_mov_b32 exec_lo, -1
    s_mov_b32 exec_hi, 0
    s_lshl_b32 s92, s2, 3
    s_add_u32 s92, s92, s3
    s_lshl_b32 s92, s92, 7
    s_add_u32 s92, s92, {WS_ST}
    v_mbcnt_lo_u32_b32 v{STV+1}, -1, 0
    v_lshlrev_b32 v{STV+1}, 2, v{STV+1}
    buffer_store_dword v{STV}, v{STV+1}, s[8:11], s92 offen
    """)


M16 = "v_mfma_f32_32x32x16_bf16"
M8 = "v_mfma_f32_32x32x8_bf16"
SM = "v_smfmac_f32_32x32x32_bf16"
M1632 = "v_mfma_f32_16x16x32_bf16"

WOFF = 16384
EOFF = WOFF + 4 * 5184
SLOT = EOFF + 2560 + 64
NSLOT = 4
assert NSLOT * SLOT <= LDS


def phase1(a):
    a(f"""
    s_cmp_ge_u32 s2, 256
    s_cbranch_scc1 KEND
    """)
    stamp(a, True)
    a(f"""
    s_load_dwordx16 s[16:31], s[0:1], 0
    s_load_dwordx2 s[8:9], s[0:1], 80
    s_memrealtime s[6:7]
    v_and_b32 v1, 63, v0
    v_lshrrev_b32 v2, 6, v0
    s_and_b32 s50, s2, 7
    v_readfirstlane_b32 s3, v2
    s_lshr_b32 s51, s2, 3
    s_and_b32 s52, s51, 7
    s_lshr_b32 s53, s51, 3
    s_and_b32 s54, s50, 1
    s_lshr_b32 s55, s50, 1
    s_lshl_b32 s56, s54, 3
    s_add_u32 s56, s56, s52
    s_mov_b32 s10, {WS_SIZE}
    s_mov_b32 s11, 0x00020000
    """)
    a.c("s3 wave, s[8:11] ws SRD, s[6:7] start time; s52 mt, s53 nt, s54 mhalf, s55 part(0 Q,1 K,2 V,3 B), s56 m tile 0..15")
    a(f"""
    s_cmp_eq_u32 s55, 3
    s_cselect_b32 s57, 1, 0
    s_mov_b32 s58, 3840
    s_cselect_b32 s58, 1280, s58
    s_cselect_b32 s59, 0, s55
    s_mul_i32 s59, s59, 1280
    s_mul_i32 s60, s53, 320
    s_add_u32 s59, s59, s60
    s_cmp_ge_u32 s3, 4
    s_cbranch_scc1 P1_LOADER
    """)
    a.c("s57 isB, s58 W row stride, s59 W col byte base")
    XA = [4, 5, 6, 7]
    WA, EA = 8, 9
    T = [10, 11, 12, 13, 14]
    XF = [16, 32]
    WF = 48
    EF = 68
    ACC = 72
    EACC = 152
    a.c("---- compute wave setup: s61 wm, s62 wn, s63 flip (B WGs with nt odd)")
    a(f"""
    s_and_b32 s61, s3, 1
    s_lshr_b32 s62, s3, 1
    s_and_b32 s63, s53, s57
    v_and_b32 v2, 15, v1
    v_lshrrev_b32 v3, 4, v1
    s_cmp_eq_u32 s55, 2
    s_cselect_b64 s[64:65], -1, 0
    v_bfe_u32 v22, v2, 1, 3
    v_bfe_u32 v23, v2, 1, 1
    v_lshrrev_b32 v24, 2, v2
    v_lshl_or_b32 v23, v24, 1, v23
    v_cndmask_b32 v22, v22, v23, s[64:65]
    v_and_b32 v23, 3, v2
    v_lshl_add_u32 v23, v24, 3, v23
    v_cndmask_b32 v23, v2, v23, s[64:65]
    s_lshl_b32 s66, s61, 13
    s_lshl_b32 s67, s63, 12
    s_add_u32 s68, s66, s67
    s_xor_b32 s67, s67, 4096
    s_add_u32 s69, s66, s67
    v_lshlrev_b32 v23, 7, v23
    """)
    for ks in range(2):
        a(f"""
        v_add_u32 v24, {4*ks}, v3
        v_xor_b32 v24, v24, v22
        v_lshl_add_u32 v24, v24, 4, v23
        v_add_u32 v{XA[2*ks]}, s68, v24
        v_add_u32 v{XA[2*ks+1]}, s69, v24
        """)
    a(f"""
    v_bfe_u32 v22, v1, 2, 2
    v_lshl_add_u32 v22, v3, 3, v22
    v_and_b32 v24, 3, v1
    v_mul_u32_u24 v{WA}, 320, v22
    v_and_b32 v25, 1, v3
    v_lshl_add_u32 v{WA}, v25, 5, v{WA}
    v_lshrrev_b32 v25, 1, v3
    v_lshl_add_u32 v{WA}, v25, 6, v{WA}
    v_mul_u32_u24 v25, 40, v24
    v_lshlrev_b32 v26, 3, v24
    v_cndmask_b32 v25, v25, v26, s[64:65]
    s_mul_i32 s66, s62, 160
    s_add_u32 s66, s66, {WOFF}
    v_add3_u32 v{WA}, v{WA}, v25, s66
    v_mul_u32_u24 v{EA}, 40, v22
    s_lshl_b32 s66, s62, 5
    s_add_u32 s66, s66, {EOFF}
    v_add3_u32 v{EA}, v{EA}, v26, s66
    """)
    for i in range(88):
        a(f"v_mov_b32 v{ACC+i}, 0")
    a.c("store geometry: s70 unit size, s71 tile size, s72/s73 soffset for slot pair 0/1, s74 extra soffset")
    a(f"""
    s_sub_u32 s66, s55, 1
    s_cmp_lt_u32 s66, 2
    s_mov_b32 s70, {QUNIT}
    s_cselect_b32 s70, {KVUNIT}, s70
    s_mov_b32 s71, 1280
    s_cselect_b32 s71, 2560, s71
    s_cselect_b32 s72, {WS_KV}, {WS_Q}
    s_lshl_b32 s66, s53, 3
    s_lshl_b32 s67, s57, 5
    s_add_u32 s66, s66, s67
    s_lshl_b32 s67, s62, 2
    s_add_u32 s66, s66, s67
    s_mul_i32 s66, s66, s70
    s_add_u32 s72, s72, s66
    s_lshl_b32 s66, s56, 2
    s_lshl_b32 s67, s61, 1
    s_add_u32 s66, s66, s67
    s_add_u32 s67, s66, s63
    s_xor_b32 s76, s63, 1
    s_add_u32 s66, s66, s76
    s_mul_i32 s76, s66, s71
    s_add_u32 s73, s72, s76
    s_mul_i32 s76, s67, s71
    s_add_u32 s72, s72, s76
    s_mul_i32 s74, s67, 2560
    s_add_u32 s74, s74, {WS_KV + 32*KVUNIT}
    v_mul_lo_u32 v22, v3, s70
    v_lshl_add_u32 v{T[0]}, v2, 4, v22
    v_lshl_add_u32 v{T[1]}, v2, 3, v22
    v_add_u32 v{T[1]}, 1024, v{T[1]}
    v_mov_b32 v{T[2]}, 0
    v_mov_b32 v{T[3]}, 0
    v_mov_b32 v{T[4]}, 0
    s_cmp_eq_u32 s55, 2
    s_cbranch_scc0 P1_SETUP_DONE
    s_mov_b32 s76, 0xCCCCCCCD
    v_lshrrev_b32 v25, 1, v3
    v_mul_u32_u24 v25, 640, v25
    v_and_b32 v26, 1, v3
    v_mul_u32_u24 v26, 320, v26
    v_add3_u32 v25, v25, v26, s71
    v_subrev_u32 v25, 1280, v25
    """)
    for n5 in range(5):
        a(f"""
        v_add_u32 v22, {16*n5}, v2
        v_mul_hi_u32 v23, v22, s76
        v_lshrrev_b32 v23, 4, v23
        v_mul_u32_u24 v24, 20, v23
        v_sub_u32 v24, v22, v24
        v_mul_lo_u32 v23, v23, s70
        v_lshl_add_u32 v23, v24, 4, v23
        v_add_u32 v{T[n5]}, v23, v25
        """)
    a("P1_SETUP_DONE:")
    a.c("s76: variant 0 QK, 1 V, 2 QK+Kextra, 3 QK+Vextra; s78 stage counter")
    a(f"""
    s_mov_b32 s76, 0
    s_cmp_eq_u32 s55, 2
    s_cselect_b32 s76, 1, s76
    s_lshr_b32 s66, s53, 1
    s_add_u32 s66, s66, 2
    s_cmp_eq_u32 s57, 1
    s_cselect_b32 s76, s66, s76
    s_mov_b32 s78, 0
    s_mov_b32 s79, {SLOT}
    s_waitcnt lgkmcnt(0)
    s_barrier
    """)
    stamp(a)

    def rgroup(g, ks, xs, orient):
        if g < 5:
            r = [f"ds_read_b64_tr_b16 {vr(WF+4*g+2*i,2)}, v{WA} offset:{ks*(320*32+128)+i*1280+g*(32 if orient else 8)}" for i in range(2)]
        else:
            r = [f"ds_read_b64_tr_b16 {vr(EF+2*i,2)}, v{EA} offset:{(32*ks+4*i)*40}" for i in range(2)]
        if g == 0:
            r += [f"ds_read_b128 {vr(XF[xs]+4*s_,4)}, v{XA[2*ks+(s_>>1)]} offset:{(s_&1)*(512 if orient else 2048)}" for s_ in range(4)]
        return r

    def mgroup(g, xs, orient, extra):
        m = []
        if g < 5:
            for s_ in range(4):
                w, x, d = vr(WF+4*g, 4), vr(XF[xs]+4*s_, 4), vr(ACC+(s_*5+g)*4, 4)
                m.append(f"{M1632} {d}, {w}, {x}, {d}" if orient == 0 else f"{M1632} {d}, {x}, {w}, {d}")
        else:
            for s_ in range(2):
                w, x, d = vr(EF, 4), vr(XF[xs]+4*s_, 4), vr(EACC+4*s_, 4)
                m.append(f"{M1632} {d}, {w}, {x}, {d}" if extra == 1 else f"{M1632} {d}, {x}, {w}, {d}")
        return m

    variants = [(0, 0), (1, 0), (0, 1), (0, 2)]
    a(f"""
    s_cmp_eq_u32 s76, 1
    s_cbranch_scc1 P1_V1
    s_cmp_eq_u32 s76, 2
    s_cbranch_scc1 P1_V2
    s_cmp_eq_u32 s76, 3
    s_cbranch_scc1 P1_V3
    """)
    for vi, (orient, extra) in enumerate(variants):
        G = 6 if extra else 5
        a(f"P1_V{vi}:")
        for g in range(G):
            for x in rgroup(g, 0, 0, orient):
                a(x)
        a(f"P1_L{vi}:")
        for g in range(G):
            a(f"s_waitcnt lgkmcnt({2*(G-1) if g == 0 else 2*G+2})")
            for m in mgroup(g, 0, orient, extra):
                a(m)
            for x in rgroup(g, 1, 1, orient):
                a(x)
        for g in range(G):
            if g == 0:
                a(f"s_waitcnt lgkmcnt({2*(G-1)})")
            for m in mgroup(g, 1, orient, extra):
                a(m)
            if g == 0:
                a(f"""
                s_and_b32 s77, s78, 3
                s_cmp_eq_u32 s77, 3
                s_cselect_b32 s77, {(-3*SLOT) & 0xffffffff}, s79
                s_waitcnt lgkmcnt(0)
                s_barrier
                """)
                for k in range(4):
                    a(f"v_add_u32 v{XA[k]}, s77, v{XA[k]}")
                a(f"v_add_u32 v{WA}, s77, v{WA}")
                if extra:
                    a(f"v_add_u32 v{EA}, s77, v{EA}")
            for x in rgroup(g, 0, 0, orient):
                a(x)
        stamp(a, lvl=2)
        a(f"""
        s_add_u32 s78, s78, 1
        s_cmp_lt_u32 s78, 10
        s_cbranch_scc1 P1_L{vi}
        """)
        if vi == 1:
            a("s_branch P1_EPI_V")
        elif vi < 3:
            a("s_branch P1_EPI_QK")
    a("P1_EPI_QK:")
    stamp(a)
    a(f"""
    s_nop 7
    s_waitcnt lgkmcnt(0)
    s_cmp_eq_u32 s55, 1
    s_cbranch_scc1 P1_NOSCALE
    s_mov_b32 s80, {hex(f32bits(QSCALE))}
    s_mov_b32 s81, {hex(f32bits(QSCALE))}
    """)
    for i in range(0, 80, 2):
        a(f"v_pk_mul_f32 {vr(ACC+i,2)}, s[80:81], {vr(ACC+i,2)}")
    a("P1_NOSCALE:")
    for s_ in range(4):
        t = 16 + 12 * s_
        for n5 in range(5):
            b = ACC + (s_ * 5 + n5) * 4
            a(f"v_cvt_pk_bf16_f32 v{t+2*n5}, v{b}, v{b+1}")
            a(f"v_cvt_pk_bf16_f32 v{t+2*n5+1}, v{b+2}, v{b+3}")
        so = f"s{72+(s_>>1)}"
        a(f"buffer_store_dwordx4 {vr(t,4)}, v{T[0]}, s[8:11], {so} offen offset:{(s_&1)*256} {STMOD}")
        a(f"buffer_store_dwordx4 {vr(t+4,4)}, v{T[0]}, s[8:11], {so} offen offset:{(s_&1)*256+512} {STMOD}")
        a(f"buffer_store_dwordx2 {vr(t+8,2)}, v{T[1]}, s[8:11], {so} offen offset:{(s_&1)*128} {STMOD}")
    TX = 70
    a(f"""
    s_cmp_lt_u32 s76, 2
    s_cbranch_scc1 P1_DONE
    v_cvt_pk_bf16_f32 v64, v{EACC}, v{EACC+1}
    v_cvt_pk_bf16_f32 v65, v{EACC+2}, v{EACC+3}
    v_cvt_pk_bf16_f32 v66, v{EACC+4}, v{EACC+5}
    v_cvt_pk_bf16_f32 v67, v{EACC+6}, v{EACC+7}
    v_lshrrev_b32 v68, 1, v3
    v_and_b32 v69, 1, v3
    s_cmp_eq_u32 s76, 3
    s_cbranch_scc1 P1_EPI_VX
    s_cmp_eq_u32 s62, 1
    s_cbranch_scc1 P1_EPI_KX1
    v_lshlrev_b32 v{TX}, 9, v68
    v_lshl_add_u32 v{TX}, v69, 3, v{TX}
    v_lshl_add_u32 v{TX}, v2, 4, v{TX}
    buffer_store_dwordx2 v[64:65], v{TX}, s[8:11], s74 offen {STMOD}
    buffer_store_dwordx2 v[66:67], v{TX}, s[8:11], s74 offen offset:256 {STMOD}
    s_branch P1_DONE
    P1_EPI_KX1:
    v_lshlrev_b32 v{TX}, 3, v2
    s_mov_b32 exec_lo, 0xffff
    s_mov_b32 exec_hi, 0
    buffer_store_dwordx2 v[64:65], v{TX}, s[8:11], s74 offen offset:1024 {STMOD}
    buffer_store_dwordx2 v[66:67], v{TX}, s[8:11], s74 offen offset:1152 {STMOD}
    s_mov_b64 exec, -1
    s_branch P1_DONE
    P1_EPI_VX:
    v_mul_u32_u24 v{TX}, 320, v68
    v_lshl_add_u32 v{TX}, v69, 3, v{TX}
    v_lshl_add_u32 v{TX}, v2, 4, v{TX}
    s_lshl_b32 s66, s62, 8
    s_add_u32 s74, s74, s66
    s_cmp_eq_u32 s62, 1
    s_mov_b32 s66, 0x000f000f
    s_cselect_b32 s66, s66, -1
    s_mov_b32 exec_lo, s66
    s_mov_b32 exec_hi, s66
    buffer_store_dwordx2 v[64:65], v{TX}, s[8:11], s74 offen offset:1280 {STMOD}
    buffer_store_dwordx2 v[66:67], v{TX}, s[8:11], s74 offen offset:1920 {STMOD}
    s_mov_b64 exec, -1
    s_branch P1_DONE
    P1_EPI_V:
    """)
    stamp(a)
    a("s_nop 7")
    a("s_waitcnt lgkmcnt(0)")
    for pr in range(2):
        for n5 in range(5):
            t = 16 + 4 * (pr * 5 + n5)
            for h in range(2):
                b = ACC + ((2 * pr + h) * 5 + n5) * 4
                a(f"v_cvt_pk_bf16_f32 v{t+2*h}, v{b}, v{b+1}")
                a(f"v_cvt_pk_bf16_f32 v{t+2*h+1}, v{b+2}, v{b+3}")
            a(f"buffer_store_dwordx4 {vr(t,4)}, v{T[n5]}, s[8:11], s{72+pr} offen {STMOD}")
    a("s_branch P1_DONE")

    XO, WO, EO = 4, 5, 6
    NPS = 11
    a(f"""
    P1_LOADER:
    s_cmp_eq_u32 s3, 8
    s_cbranch_scc1 P1_IDLE
    s_sub_u32 s12, s3, 4
    s_lshl_b32 s61, s56, 7
    s_lshl_b32 s62, s12, 3
    s_add_u32 s61, s61, s62
    v_lshrrev_b32 v2, 3, v1
    v_add_u32 v2, s61, v2
    v_mul_u32_u24 v2, 1280, v2
    s_and_b32 s62, s12, 1
    s_lshl_b32 s62, s62, 2
    v_lshrrev_b32 v3, 4, v1
    v_add_u32 v3, s62, v3
    s_lshl_b32 s62, s12, 1
    v_bfe_u32 v11, v1, 4, 1
    v_or_b32 v11, s62, v11
    s_cmp_eq_u32 s55, 2
    s_cselect_b64 vcc, -1, 0
    s_lshl_b32 s65, s12, 10
    v_cndmask_b32 v3, v3, v11, vcc
    v_and_b32 v11, 7, v1
    v_xor_b32 v3, v3, v11
    v_lshl_add_u32 v{XO}, v3, 4, v2
    s_mov_b32 s72, 0xCCCCCCCD
    s_lshl_b32 s63, s12, 4
    v_mul_hi_u32 v3, v1, s72
    v_lshrrev_b32 v3, 4, v3
    v_mul_u32_u24 v11, 20, v3
    v_sub_u32 v11, v1, v11
    v_add_u32 v3, s63, v3
    v_mul_lo_u32 v3, v3, s58
    v_lshl_add_u32 v3, v11, 4, v3
    v_add_u32 v{WO}, s59, v3
    s_mul_i32 s64, s12, 640
    v_lshlrev_b32 v{EO}, 4, v1
    v_add_u32 v{EO}, s64, v{EO}
    s_mul_i32 s66, s12, 5184
    s_add_u32 s66, s66, {WOFF}
    s_add_u32 s67, s64, {EOFF}
    s_mul_i32 s68, s58, 50
    s_mul_i32 s69, s58, 3
    s_lshl_b32 s79, s58, 1
    s_add_u32 s80, s52, s53
    s_and_b32 s80, s80, {ROT_MASK}
    s_mul_i32 s80, s80, {ROT_MUL}
    s_lshr_b32 s80, s80, 2
    s_mul_i32 s81, s55, {ROT_P}
    s_add_u32 s80, s80, s81
    s_mul_i32 s81, s54, {ROT_H}
    s_add_u32 s80, s80, s81
    s_cmp_ge_u32 s80, 10
    s_cselect_b32 s81, 10, 0
    s_sub_u32 s80, s80, s81
    s_lshl_b32 s70, s80, 7
    s_lshl_b32 s71, s58, 6
    s_mul_i32 s71, s71, s80
    s_mul_i32 s73, s80, 2560
    s_mov_b32 s74, 0
    s_mov_b32 s34, {2048*1280}
    s_mov_b32 s35, 0x00020000
    s_mov_b32 s39, 0x00020000
    s_mov_b32 s43, 0x00020000
    s_mov_b32 s77, 0
    s_cmp_eq_u32 s57, 1
    s_mov_b32 s38, {640*3840}
    s_cselect_b32 s38, {640*1280}, s38
    s_cselect_b32 s42, {640*40}, 0
    s_waitcnt lgkmcnt(0)
    s_cselect_b32 s32, s22, s16
    s_cselect_b32 s33, s23, s17
    s_cselect_b32 s36, s24, s18
    s_cselect_b32 s37, s25, s19
    s_cmp_lt_u32 s53, 2
    s_cselect_b32 s40, s26, s28
    s_cselect_b32 s41, s27, s29
    """)
    a.c("k order is rotated per WG (s80) so that a cold start spreads over the whole K range")
    a.c("s65/s66/s67 LDS rel bases; s70 x soff, s71 W soff, s73 E soff, s74 slot base")
    a("P1_LP:")
    a("s_add_u32 s75, s74, s65")
    for t in range(4):
        a(f"""
        s_add_u32 m0, s75, {4096*t}
        s_add_u32 s76, s70, {40960*t}
        buffer_load_dwordx4 v{XO}, s[32:35], s76 offen lds
        """)
    a("s_add_u32 s75, s74, s66")
    for t, r0 in enumerate([0, 3, 6, 8, 11, 14]):
        a(f"s_add_u32 m0, s75, {320*r0 + (32 if r0 >= 8 else 0)}")
        a(f"s_mov_b32 exec_hi, {'0xff' if t % 3 == 2 else '0x0fffffff'}")
        a(f"buffer_load_dwordx4 v{WO}, s[36:39], s71 offen lds")
        a(f"s_add_u32 s71, s71, {'s69' if t % 3 < 2 else ('s79' if t == 2 else 's68')}")
    a(f"""
    s_add_u32 m0, s74, s67
    s_add_u32 s70, s70, 128
    buffer_load_dwordx4 v{EO}, s[40:43], s73 offen lds
    s_mov_b32 exec_hi, -1
    s_add_u32 s73, s73, 2560
    s_add_u32 s74, s74, {SLOT}
    s_cmp_eq_u32 s74, {NSLOT*SLOT}
    s_cselect_b32 s74, 0, s74
    s_cmp_eq_u32 s70, 1280
    s_cselect_b32 s70, 0, s70
    s_cselect_b32 s71, 0, s71
    s_cselect_b32 s73, 0, s73
    s_add_u32 s77, s77, 1
    s_cmp_lt_u32 s77, 2
    s_cbranch_scc1 P1_LP
    s_waitcnt vmcnt({NPS})
    s_barrier
    s_cmp_lt_u32 s77, 10
    s_cbranch_scc1 P1_LP
    s_waitcnt vmcnt(0)
    """)
    stamp(a)
    a(f"""
    s_barrier
    s_barrier
    s_branch P1_DONE
    P1_IDLE:
    s_mov_b32 s77, 0
    s_waitcnt lgkmcnt(0)
    P1_IDLE1:
    s_barrier
    s_add_u32 s77, s77, 1
    s_cmp_lt_u32 s77, 11
    s_cbranch_scc1 P1_IDLE1
    P1_DONE:
    """)
    stamp(a)


def handoff(a, tag, ph, delta, idcode, HT):
    a(f"""
    s_cmp_lg_u32 s3, 0
    s_cbranch_scc1 {tag}_PRE
    s_memrealtime s[44:45]
    """)
    a(idcode)
    a(f"""
    v_lshlrev_b32 v9, 7, v9
    v_lshlrev_b32 v7, 4, v1
    s_lshl_b32 s48, s2, 7
    s_add_u32 s48, s48, {WS_FLAG + ph*0x8000}
    s_mov_b32 s49, {WS_FLAG + ph*0x8000}
    s_sub_u32 s46, s6, {delta}
    s_subb_u32 s47, s7, 0
    s_waitcnt lgkmcnt(0)
    v_mov_b32 v{HT}, s44
    v_mov_b32 v{HT+1}, s45
    v_mov_b32 v{HT+2}, s44
    v_mov_b32 v{HT+3}, s45
    v_mov_b32 v11, s47
    {tag}_PRE:
    s_waitcnt vmcnt(0)
    """)
    stamp(a)
    a(f"""
    s_barrier
    s_cmp_lg_u32 s3, 0
    s_cbranch_scc1 {tag}_WAIT
    s_mov_b64 exec, 0xff
    buffer_store_dwordx4 {vr(HT,4)}, v7, s[8:11], s48 offen sc1
    s_mov_b64 exec, s[50:51]
    s_mov_b32 s48, 0
    """)
    P = HT + 4
    for k in range(NPOLL - 1):
        a(f"buffer_load_dwordx2 {vr(P+2*k,2)}, v9, s[8:11], s49 offen sc1")
        a(f"s_sleep {POLL_SLEEP}")
    a(f"{tag}_POLL:")
    for k in range(NPOLL):
        n = (k + NPOLL - 1) % NPOLL
        a(f"""
        buffer_load_dwordx2 {vr(P+2*n,2)}, v9, s[8:11], s49 offen sc1
        s_waitcnt vmcnt({NPOLL-1})
        v_subrev_co_u32 v10, vcc, s46, v{P+2*k}
        s_nop 1
        v_subb_co_u32 v7, vcc, v{P+2*k+1}, v11, vcc
        v_lshrrev_b32 v10, 24, v10
        v_or_b32 v10, v10, v7
        v_cmp_eq_u32 vcc, 0, v10
        s_nop 3
        s_cmp_eq_u64 vcc, s[50:51]
        s_cbranch_scc1 {tag}_OUT
        s_sleep {POLL_SLEEP}
        """)
    a(f"""
    s_add_u32 s48, s48, 1
    s_cmp_lt_u32 s48, {SPIN_MAX}
    s_cbranch_scc1 {tag}_POLL
    {tag}_OUT:
    s_mov_b64 exec, -1
    s_waitcnt vmcnt(0)
    {tag}_WAIT:
    """)


def phase2(a):
    VL, L16, KA, KH, VA, IDX = 1, 2, 3, 4, 5, 6
    QA_LO, QA_HI, QB_HI, QB_LO = 12, 16, 18, 20
    KLO = [24, 32]
    KHI = [28, 30]
    VB = [36, 44]
    SA, SB, OA, OB = 52, 68, 84, 100
    MA, MB = 116, 117
    a(f"""
    s_and_b32 s13, s2, 7
    s_lshr_b32 s14, s2, 3
    s_lshr_b32 s15, s14, 4
    s_bfe_u32 s16, s14, 0x20002
    s_lshl_b32 s17, s13, 2
    s_add_u32 s17, s17, s16
    s_and_b32 s18, s14, 3
    s_lshl_b32 s19, s15, 5
    s_add_u32 s19, s19, s17
    s_cmp_eq_u32 s15, 0
    s_cselect_b32 s21, s17, 32
    """)
    a.c("s15 br, s17 head, s18 qb, s19 unit, s21 kv unit")
    a(f"""
    s_mul_i32 s25, s19, {QUNIT}
    s_mul_i32 s26, s18, 20480
    s_add_u32 s25, s25, s26
    s_mul_i32 s26, s3, 2560
    s_add_u32 s25, s25, s26
    s_mul_i32 s27, s21, {KVUNIT}
    s_lshl_b32 s28, s3, 10
    s_add_u32 s27, s27, s28
    s_add_u32 s27, s27, {WS_KV}
    v_lshlrev_b32 v{L16}, 4, v{VL}
    s_cmp_eq_u32 s3, 8
    s_cbranch_scc1 P2_LOADER
    v_and_b32 v7, 31, v{VL}
    v_lshrrev_b32 v8, 5, v{VL}
    v_lshlrev_b32 v{KH}, 3, v7
    v_lshl_add_u32 v{KH}, v8, 2, v{KH}
    v_add_u32 v{KH}, 1024, v{KH}
    v_mul_u32_u24 v{VA}, 20, v8
    v_add_u32 v{VA}, v{VA}, v7
    v_lshlrev_b32 v{VA}, 4, v{VA}
    v_add_u32 v{VA}, 1280, v{VA}
    v_mov_b32 v{KA}, v{L16}
    v_mov_b32 v{IDX}, 0xdddddddd
    v_mov_b32 v{QA_HI+1}, 0
    v_mov_b32 v{QB_HI+1}, 0
    v_mov_b32 v{KHI[0]+1}, 0
    v_mov_b32 v{KHI[1]+1}, 0
    v_and_b32 v9, 27, v7
    v_cmp_eq_u32 vcc, 24, v9
    v_mov_b32 v9, 0
    v_mov_b32 v10, 0x3f803f80
    s_mov_b32 s22, 0x000fffff
    s_mov_b32 s23, 0x000fffff
    s_mov_b32 s24, 0x95
    v_cndmask_b32 v9, v9, v10, vcc
    """)
    for i in range(16):
        a(f"v_mov_b32 v{VB[0]+i}, v9")
    for i in range(16):
        a(f"v_mov_b32 v{SB+i}, 0")
    for i in range(32):
        a(f"v_mov_b32 v{OA+i}, 0")
    handoff(a, "H1", 0, 1000, f"""
    s_lshr_b32 s49, s17, 3
    s_lshl_b32 s49, s49, 6
    v_add_u32 v9, s49, v1
    v_and_b32 v10, 7, v1
    v_cmp_gt_u32 s[50:51], 6, v10
    v_lshrrev_b32 v10, 1, v1
    v_lshlrev_b32 v10, 3, v10
    v_and_b32 v11, 1, v1
    v_add3_u32 v10, v10, v11, 6
    s_cmp_eq_u32 s15, 0
    s_cselect_b64 vcc, -1, 0
    s_cselect_b64 s[50:51], s[50:51], -1
    v_cndmask_b32 v9, v10, v9, vcc
    """, 120)
    a(f"""
    s_mov_b32 m0, s28
    s_barrier
    """)
    stamp(a)
    a(f"""
    buffer_load_dwordx4 v{L16}, s[8:11], s27 offen lds
    buffer_load_dwordx4 {vr(QA_LO,4)}, v{L16}, s[8:11], s25 offen
    buffer_load_dword v{QA_HI}, v{KH}, s[8:11], s25 offen
    buffer_load_dwordx4 {vr(QB_LO,4)}, v{L16}, s[8:11], s25 offen offset:1280
    buffer_load_dword v{QB_HI}, v{KH}, s[8:11], s25 offen offset:1280
    s_setprio 1
    s_mov_b64 vcc, -1
    s_mov_b32 s20, 0
    """)
    for r in range(1, 4):
        a(f"s_add_u32 m0, m0, 8192")
        a(f"s_add_u32 s27, s27, 8192")
        a(f"buffer_load_dwordx4 v{L16}, s[8:11], s27 offen lds")
    a(f"""
    s_waitcnt vmcnt(3)
    s_barrier
    """)
    stamp(a)
    a(f"""
    ds_read_b128 {vr(KLO[0],4)}, v{KA}
    ds_read_b32 v{KHI[0]}, v{KH}
    ds_read_b128 {vr(KLO[1],4)}, v{KA} offset:2560
    ds_read_b32 v{KHI[1]}, v{KH} offset:2560
    s_mov_b64 exec, s[22:23]
    ds_read_b128 {vr(VB[0],4)}, v{VA}
    ds_read_b128 {vr(VB[0]+4,4)}, v{VA} offset:640
    s_mov_b64 exec, -1
    s_waitcnt lgkmcnt(4)
    {M16} {vr(SA,16)}, {vr(KLO[0],4)}, {vr(QA_LO,4)}, 0
    {M8} {vr(SA,16)}, {vr(KHI[0],2)}, {vr(QA_HI,2)}, {vr(SA,16)}
    s_nop 15
    """)

    def ex(base, lo, hi):
        for i in range(lo, hi):
            a(f"v_exp_f32 v{base+i}, v{base+i}")

    a(".p2align 6")
    a("P2_LOOP:")
    for j in range(8):
        p = j & 1
        ex(SA, 0, 2)
        a(f"{SM} {vr(OB,16)}, {vr(VB[1-p]+4,4)}, {vr(SB+8,8)}, v{IDX}")
        ex(SA, 2, 4)
        a(f"{M16} {vr(SB,16)}, {vr(KLO[p],4)}, {vr(QB_LO,4)}, 0")
        ex(SA, 4, 8)
        a(f"{M8} {vr(SB,16)}, {vr(KHI[p],2)}, {vr(QB_HI,2)}, {vr(SB,16)}")
        a("s_waitcnt lgkmcnt(0)")
        if j in (1, 4):
            a(f"s_cbranch_vccnz P2_SY{j}")
            a(f"P2_SY{j}_RET:")
        a(f"ds_read_b128 {vr(KLO[p],4)}, v{KA} offset:{(j+2)*2560}")
        a(f"ds_read_b32 v{KHI[p]}, v{KH} offset:{(j+2)*2560}")
        if j == LOWJ:
            a("s_bitcmp1_b32 s24, s20")
            a(f"s_cbranch_scc1 P2_LOWP")
            a(f"P2_LOWP_RET:")
        ex(SA, 8, 12)
        a(f"{SM} {vr(OA,16)}, {vr(VB[p],4)}, {vr(SA,8)}, v{IDX}")
        ex(SA, 12, 16)
        ex(SB, 0, 2)
        a(f"{SM} {vr(OA,16)}, {vr(VB[p]+4,4)}, {vr(SA+8,8)}, v{IDX}")
        ex(SB, 2, 4)
        a(f"{M16} {vr(SA,16)}, {vr(KLO[1-p],4)}, {vr(QA_LO,4)}, 0")
        ex(SB, 4, 8)
        a(f"{M8} {vr(SA,16)}, {vr(KHI[1-p],2)}, {vr(QA_HI,2)}, {vr(SA,16)}")
        a("s_mov_b64 exec, s[22:23]")
        a(f"ds_read_b128 {vr(VB[1-p],4)}, v{VA} offset:{(j+1)*2560}")
        a(f"ds_read_b128 {vr(VB[1-p]+4,4)}, v{VA} offset:{(j+1)*2560+640}")
        a("s_mov_b64 exec, -1")
        ex(SB, 8, 12)
        a(f"{SM} {vr(OB,16)}, {vr(VB[p],4)}, {vr(SB,8)}, v{IDX}")
        ex(SB, 12, 16)
    stamp(a, lvl=2)
    a.c("chunk boundary: barriers before chunks 1,3,5; priority falls as a wave advances so the SIMD's two waves stay level")
    a(f"""
    v_add_u32 v{KA}, 20480, v{KA}
    v_add_u32 v{KH}, 20480, v{KH}
    v_add_u32 v{VA}, 20480, v{VA}
    s_add_u32 s20, s20, 1
    s_mov_b64 vcc, 0
    s_bitcmp1_b32 s20, 0
    s_cbranch_scc0 P2_EVEN
    s_setprio 1
    s_cmp_eq_u32 s20, 7
    s_cbranch_scc1 P2_LOOP
    s_barrier
    s_setprio 3
    s_branch P2_LOOP
    P2_LOWP:
    s_setprio 0
    s_branch P2_LOWP_RET
    P2_SY1:
    s_waitcnt vmcnt(2)
    s_barrier
    s_branch P2_SY1_RET
    P2_SY4:
    s_waitcnt vmcnt(0)
    s_barrier
    s_branch P2_SY4_RET
    P2_LOADER:
    """)
    a.c("wave 8: rounds 4..19 of the K/V image, then (once chunks 0-4 are dead) the phase-3 wo slice")
    a(f"""
    s_load_dwordx2 s[52:53], s[0:1], 16
    s_load_dwordx2 s[54:55], s[0:1], 56
    s_mov_b32 s60, 0xCCCCCCCD
    v_mul_hi_u32 v9, v1, s60
    v_lshrrev_b32 v9, 3, v9
    v_mul_u32_u24 v10, 10, v9
    v_sub_u32 v10, v1, v10
    v_mul_u32_u24 v9, 1280, v9
    v_lshl_add_u32 v8, v10, 4, v9
    s_lshr_b32 s56, s14, 2
    s_mul_i32 s56, s56, 160
    s_mov_b32 s34, {640*1280}
    s_mov_b32 s35, 0x00020000
    s_cmp_lt_u32 s13, 4
    s_waitcnt lgkmcnt(0)
    s_cselect_b32 s32, s52, s54
    s_cselect_b32 s33, s53, s55
    s_add_u32 s27, s27, {32768-8192}
    s_mov_b32 m0, 32768
    s_mov_b32 s20, 1
    s_barrier
    s_barrier
    s_barrier
    P2_LD1:
    """)
    for r in range(8):
        a(f"buffer_load_dwordx4 v{L16}, s[8:11], s27 offen lds")
        a(f"s_add_u32 m0, m0, 1024")
        a(f"s_add_u32 s27, s27, 1024")
    a(f"""
    s_add_u32 s20, s20, 1
    s_bitcmp1_b32 0x24, s20
    s_cbranch_scc0 P2_LD2
    s_barrier
    P2_LD2:
    s_cmp_eq_u32 s20, 9
    s_cbranch_scc0 P2_LD3
    s_waitcnt vmcnt(24)
    s_barrier
    P2_LD3:
    s_cmp_lt_u32 s20, 17
    s_cbranch_scc1 P2_LD1
    s_waitcnt vmcnt(0)
    s_barrier
    s_mov_b32 s57, 0
    s_mov_b32 s58, s56
    s_barrier
    P2_LW1:
    """)
    rows = [0, 6, 12, 16, 22, 28]
    src = [0, 6, 12, 20, 26, 32]
    for t in range(6):
        a(f"""
        s_add_u32 m0, s57, {rows[t]*160}
        s_add_u32 s62, s58, {src[t]*1280}
        s_mov_b32 exec_hi, {'0xff' if t % 3 == 2 else '0x0fffffff'}
        buffer_load_dwordx4 v8, s[32:35], s62 offen lds
        """)
    a(f"""
    s_add_u32 s57, s57, 5120
    s_add_u32 s58, s58, {40*1280}
    s_cmp_lt_u32 s57, {16*5120}
    s_cbranch_scc1 P2_LW1
    s_add_u32 s58, s56, {16*1280}
    P2_LW2:
    s_mov_b32 m0, s57
    s_add_u32 s57, s57, 640
    buffer_load_dwordx4 v8, s[32:35], s58 offen lds
    s_add_u32 s58, s58, {20*1280}
    s_cmp_lt_u32 s57, {20*5120}
    s_cbranch_scc1 P2_LW2
    s_waitcnt vmcnt(0)
    s_barrier
    s_endpgm
    P2_EVEN:
    s_setprio 1
    s_cmp_lt_u32 s20, 6
    s_cbranch_scc1 P2_LOOP
    s_setprio 2
    s_cmp_lt_u32 s20, 8
    s_cbranch_scc1 P2_LOOP
    s_setprio 0
    {SM} {vr(OB,16)}, {vr(VB[1]+4,4)}, {vr(SB+8,8)}, v{IDX}
    s_waitcnt lgkmcnt(0)
    s_nop 15
    """)
    stamp(a)
    a.c("---- safety check of the unshifted softmax: l within [2^-30, 2^110], all O finite; else redo with the true max")
    a(f"""
    s_mov_b32 s30, {hex(f32bits(2.0**-30))}
    s_mov_b32 s31, {hex(f32bits(2.0**110))}
    v_mul_f32 v7, 0, v{OA}
    """)
    for i in range(1, 12):
        a(f"v_fma_f32 v7, v{OA+i}, 0, v7")
    for i in range(12):
        a(f"v_fma_f32 v7, v{OB+i}, 0, v7")
    a(f"""
    v_min_f32 v8, v{OA+12}, v{OB+12}
    v_max_f32 v9, v{OA+12}, v{OB+12}
    v_add_f32 v7, v7, v{OA+12}
    v_add_f32 v7, v7, v{OB+12}
    v_cmp_le_f32 vcc, s30, v8
    v_cmp_ge_f32 s[32:33], s31, v9
    v_cmp_o_f32 s[34:35], v7, v7
    s_nop 3
    s_and_b64 vcc, vcc, s[32:33]
    s_and_b64 vcc, vcc, s[34:35]
    s_cmp_eq_u64 vcc, -1
    s_cbranch_scc0 P2_FALLBACK
    P2_STORE:
    s_mul_i32 s36, s15, {OBR}
    s_lshl_b32 s37, s18, 5
    s_lshl_b32 s38, s3, 2
    s_add_u32 s37, s37, s38
    s_mul_i32 s37, s37, 20480
    s_add_u32 s36, s36, s37
    s_add_u32 s36, s36, {WS_O}
    s_lshr_b32 s37, s17, 1
    s_lshl_b32 s37, s37, 10
    s_and_b32 s38, s17, 1
    s_lshl_b32 s38, s38, 9
    s_add_u32 s37, s37, s38
    s_add_u32 s37, s37, s36
    s_lshr_b32 s38, s17, 3
    s_lshl_b32 s38, s38, 10
    s_add_u32 s38, s38, 16384
    s_bfe_u32 s39, s17, 0x10002
    s_lshl_b32 s39, s39, 9
    s_add_u32 s38, s38, s39
    s_and_b32 s39, s17, 1
    s_lshl_b32 s39, s39, 8
    s_add_u32 s38, s38, s39
    s_bfe_u32 s39, s17, 0x10001
    s_lshl_b32 s39, s39, 3
    s_add_u32 s38, s38, s39
    s_add_u32 s38, s38, s36
    v_and_b32 v7, 15, v{VL}
    v_lshlrev_b32 v7, 4, v7
    v_bfe_u32 v8, v{VL}, 4, 1
    v_mul_u32_u24 v8, 20480, v8
    v_add_u32 v7, v7, v8
    v_lshrrev_b32 v8, 5, v{VL}
    v_lshl_add_u32 v8, v8, 8, v7
    v_rcp_f32 v10, v{OA+12}
    v_rcp_f32 v11, v{OB+12}
    s_add_u32 s40, s37, 40960
    s_add_u32 s41, s38, 40960
    """)
    for (o, r, t) in ((OA, 10, SA), (OB, 11, SB)):
        for i in range(12):
            a(f"v_mul_f32 v{o+i}, v{o+i}, v{r}")
        for i in range(6):
            a(f"v_cvt_pk_bf16_f32 v{t+i}, v{o+2*i}, v{o+2*i+1}")
    a(f"""
    buffer_store_dwordx4 {vr(SA,4)}, v8, s[8:11], s37 offen {STMOD}
    buffer_store_dwordx4 {vr(SB,4)}, v8, s[8:11], s40 offen {STMOD}
    s_mov_b32 exec_hi, 0
    buffer_store_dwordx2 {vr(SA+4,2)}, v7, s[8:11], s38 offen {STMOD}
    buffer_store_dwordx2 {vr(SB+4,2)}, v7, s[8:11], s41 offen {STMOD}
    s_mov_b64 exec, -1
    """)
    stamp(a)
    a("s_branch P2_DONE")
    a.c("---- fallback: textbook two-pass softmax with the true row max, K/V fragments straight from the workspace image")
    a(f"""
    P2_FALLBACK:
    v_mov_b32 v{MA}, 0xff800000
    v_mov_b32 v{MB}, 0xff800000
    v_subrev_u32 v{KH}, {8*20480}, v{KH}
    v_subrev_u32 v{VA}, {8*20480}, v{VA}
    s_mul_i32 s27, s21, {KVUNIT}
    s_add_u32 s27, s27, {WS_KV}
    s_mov_b32 s26, s27
    s_mov_b32 s20, 0
    P2_FB1:
    buffer_load_dwordx4 {vr(KLO[0],4)}, v{L16}, s[8:11], s26 offen
    buffer_load_dword v{KHI[0]}, v{KH}, s[8:11], s26 offen
    s_add_u32 s26, s26, 2560
    s_waitcnt vmcnt(0)
    {M16} {vr(SA,16)}, {vr(KLO[0],4)}, {vr(QA_LO,4)}, 0
    {M8} {vr(SA,16)}, {vr(KHI[0],2)}, {vr(QA_HI,2)}, {vr(SA,16)}
    {M16} {vr(SB,16)}, {vr(KLO[0],4)}, {vr(QB_LO,4)}, 0
    {M8} {vr(SB,16)}, {vr(KHI[0],2)}, {vr(QB_HI,2)}, {vr(SB,16)}
    s_nop 15
    """)
    for i in range(8):
        a(f"v_max3_f32 v{MA}, v{SA+2*i}, v{SA+2*i+1}, v{MA}")
        a(f"v_max3_f32 v{MB}, v{SB+2*i}, v{SB+2*i+1}, v{MB}")
    a(f"""
    s_add_u32 s20, s20, 1
    s_cmp_lt_u32 s20, 64
    s_cbranch_scc1 P2_FB1
    v_mov_b32 v7, v{MA}
    v_mov_b32 v8, v{MB}
    s_nop 1
    v_permlane32_swap_b32 v7, v{MA}
    v_permlane32_swap_b32 v8, v{MB}
    s_nop 1
    v_max_f32 v{MA}, v{MA}, v7
    v_max_f32 v{MB}, v{MB}, v8
    """)
    for i in range(32):
        a(f"v_mov_b32 v{OA+i}, 0")
    a(f"""
    s_mov_b32 s20, 0
    P2_FB2:
    buffer_load_dwordx4 {vr(KLO[0],4)}, v{L16}, s[8:11], s27 offen
    buffer_load_dword v{KHI[0]}, v{KH}, s[8:11], s27 offen
    s_mov_b64 exec, s[22:23]
    buffer_load_dwordx4 {vr(VB[0],4)}, v{VA}, s[8:11], s27 offen
    buffer_load_dwordx4 {vr(VB[0]+4,4)}, v{VA}, s[8:11], s27 offen offset:640
    s_mov_b64 exec, -1
    s_add_u32 s27, s27, 2560
    s_waitcnt vmcnt(0)
    {M16} {vr(SA,16)}, {vr(KLO[0],4)}, {vr(QA_LO,4)}, 0
    {M8} {vr(SA,16)}, {vr(KHI[0],2)}, {vr(QA_HI,2)}, {vr(SA,16)}
    {M16} {vr(SB,16)}, {vr(KLO[0],4)}, {vr(QB_LO,4)}, 0
    {M8} {vr(SB,16)}, {vr(KHI[0],2)}, {vr(QB_HI,2)}, {vr(SB,16)}
    s_nop 15
    """)
    for i in range(16):
        a(f"v_sub_f32 v{SA+i}, v{SA+i}, v{MA}")
        a(f"v_sub_f32 v{SB+i}, v{SB+i}, v{MB}")
    ex(SA, 0, 16)
    ex(SB, 0, 16)
    a(f"""
    s_nop 1
    {SM} {vr(OA,16)}, {vr(VB[0],4)}, {vr(SA,8)}, v{IDX}
    {SM} {vr(OA,16)}, {vr(VB[0]+4,4)}, {vr(SA+8,8)}, v{IDX}
    {SM} {vr(OB,16)}, {vr(VB[0],4)}, {vr(SB,8)}, v{IDX}
    {SM} {vr(OB,16)}, {vr(VB[0]+4,4)}, {vr(SB+8,8)}, v{IDX}
    s_add_u32 s20, s20, 1
    s_cmp_lt_u32 s20, 64
    s_cbranch_scc1 P2_FB2
    s_nop 15
    s_branch P2_STORE
    P2_DONE:
    """)


P3_TR = 102400


def phase3(a):
    WF = [16, 36]
    ACC = 56
    OF = 96
    NR = LA + 1
    assert OF + 8 * NR <= STV
    SA_ = [6, 8, 12, 13, 14]
    a(f"""
    s_load_dwordx2 s[36:37], s[0:1], 64
    s_lshr_b32 s15, s13, 2
    s_and_b32 s20, s13, 3
    s_lshl_b32 s20, s20, 2
    s_and_b32 s21, s14, 3
    s_add_u32 s20, s20, s21
    s_lshr_b32 s21, s14, 2
    """)
    a.c("s15 br, s20 token tile(128), s21 col tile(80)")
    a(f"""
    s_mul_i32 s22, s15, {OBR}
    s_lshl_b32 s23, s20, 3
    s_lshl_b32 s24, s3, 1
    s_add_u32 s23, s23, s24
    s_mul_i32 s23, s23, 20480
    s_add_u32 s22, s22, s23
    s_add_u32 s22, s22, {WS_O}
    s_add_u32 s23, s22, 20480
    s_mul_i32 s24, s21, 160
    s_mov_b32 s28, 0xCCCCCCCD
    s_mov_b32 s38, {2048*2560}
    s_mov_b32 s39, 0x00020000
    v_lshrrev_b32 v4, 5, v1
    v_lshlrev_b32 v4, 4, v4
    v_bfe_u32 v5, v1, 4, 1
    v_lshl_add_u32 v4, v5, 2, v4
    v_bfe_u32 v5, v1, 2, 2
    v_add_u32 v4, v4, v5
    v_mul_u32_u24 v4, 160, v4
    v_and_b32 v5, 3, v1
    v_mul_u32_u24 v5, 40, v5
    v_add_u32 v4, v4, v5
    v_add_u32 v5, {10*5120}, v4
    s_lshl_b32 s40, s20, 7
    s_lshl_b32 s41, s3, 5
    s_add_u32 s40, s40, s41
    s_mul_i32 s40, s40, 2560
    s_mul_i32 s41, s15, 1280
    s_add_u32 s40, s40, s41
    s_add_u32 s40, s40, s24
    s_mul_i32 s42, s3, 5120
    s_add_u32 s42, s42, {P3_TR}
    """)
    for t in range(5):
        a(f"""
        v_add_u32 v20, {64*t}, v1
        v_mul_hi_u32 v21, v20, s28
        v_lshrrev_b32 v21, 3, v21
        v_mul_u32_u24 v22, 10, v21
        v_sub_u32 v22, v20, v22
        v_mul_u32_u24 v21, 2560, v21
        v_lshl_add_u32 v{SA_[t]}, v22, 4, v21
        """)
    a(f"""
    v_and_b32 v3, 15, v1
    v_mul_u32_u24 v3, 160, v3
    v_lshrrev_b32 v20, 4, v1
    v_mul_u32_u24 v20, 40, v20
    v_add3_u32 v3, v3, v20, s42
    v_add_u32 v15, s42, v2
    """)
    for i in range(40):
        a(f"v_mov_b32 v{ACC+i}, 0")
    a("s_waitcnt lgkmcnt(0)")
    handoff(a, "H2", 1, 0, f"""
    s_lshl_b32 s49, s15, 4
    s_lshr_b32 s50, s20, 2
    s_add_u32 s49, s49, s50
    s_lshl_b32 s49, s49, 3
    v_bfe_u32 v10, v1, 3, 2
    v_lshlrev_b32 v10, 5, v10
    v_and_b32 v9, 7, v1
    v_add3_u32 v9, v9, v10, s49
    s_mov_b32 s50, -1
    s_mov_b32 s51, 0
    """, 120)
    a("""
    s_cmp_lt_u32 s3, 4
    s_cbranch_scc1 P3_GO
    """)
    stamp_store(a)
    a("s_endpgm")
    a("P3_GO:")

    def reads(kap, st):
        base, off = (4, kap * 5120) if kap < 10 else (5, (kap - 10) * 5120)
        return [f"ds_read_b64_tr_b16 {vr(WF[st]+4*j+2*i,2)}, v{base} offset:{off+i*1280+8*j}" for j in range(5) for i in range(2)]

    def ofr(kap, tt):
        return OF + (kap % NR) * 8 + tt * 4

    def oloads(kap):
        r = []
        for tt in range(2):
            x = f"buffer_load_dwordx4 {vr(ofr(kap,tt),4)}, v2, s[8:11], s{22+tt} offen offset:{(kap&3)*1024}"
            if kap & 3 == 3:
                x += f"\ns_add_u32 s{22+tt}, s{22+tt}, 4096"
            r.append(x)
        return r
    for x in reads(0, 0):
        a(x)
    a("s_barrier")
    stamp(a)
    issued = 0
    for k in range(LA):
        for x in oloads(k):
            a(x)
            issued += 1
    for kap in range(20):
        st = kap & 1
        nxt = kap + 1
        pend = oloads(kap + LA) if kap + LA < 20 else []
        a(f"s_waitcnt vmcnt({issued - 2*(kap+1)}) lgkmcnt(0)")
        for x in pend:
            a(x)
            issued += 1
        r = reads(nxt, 1 - st) if nxt < 20 else []
        for j in range(5):
            for tt in range(2):
                d = vr(ACC + (tt * 5 + j) * 4, 4)
                a(f"{M1632} {d}, {vr(WF[st]+4*j,4)}, {vr(ofr(kap,tt),4)}, {d}")
                for _ in range(2):
                    if r:
                        a(r.pop(0))
    stamp(a)
    a.c("---- epilogue: pack, transpose through LDS so each store covers whole row segments")
    a("s_nop 7")
    for tt in range(2):
        t = 16 + tt * 10
        for j in range(5):
            b = ACC + (tt * 5 + j) * 4
            a(f"v_cvt_pk_bf16_f32 v{t+2*j}, v{b}, v{b+1}")
            a(f"v_cvt_pk_bf16_f32 v{t+2*j+1}, v{b+2}, v{b+3}")
            a(f"ds_write_b64 v3, {vr(t+2*j,2)} offset:{tt*2560+8*j}")
    a("s_waitcnt lgkmcnt(0)")
    for t in range(5):
        a(f"ds_read_b128 {vr(OF+4*t,4)}, v15 offset:{t*1024}")
    for t in range(5):
        a(f"s_waitcnt lgkmcnt({4-t})")
        a(f"buffer_store_dwordx4 {vr(OF+4*t,4)}, v{SA_[t]}, s[36:39], s40 offen {OUTMOD}")
    stamp(a)
    if STAMP:
        a("s_waitcnt vmcnt(0)")
    stamp(a)
    stamp_store(a)
    a("KEND:")
    a("s_endpgm")


def main(path):
    a = Asm()
    a.l += [
        "; Fused MHA (branch A) + MQA (branch B) attention block in one launch: 256 workgroups (one per CU) x 9 waves.",
        ";   phase 1: Q/K/V projections -> workspace images laid out as MFMA fragments",
        ";   phase 2: softmax(QK^T)V per (head, 512 queries), K/V image resident in LDS, P fed to a sparse MFMA as raw fp32",
        ";   phase 3: output projections, concatenated into d_out",
        "; Hand-offs between phases: write-through stores + one time-stamped flag line per workgroup in the workspace.",
        "; Generated by dev/gen9.py (hand-written generator).",
        f"; @launch grid=(256,1,1) block=(576,1,1) lds={LDS}",
        '.amdgcn_target "amdgcn-amd-amdhsa--gfx950"',
        ".text",
        f".globl {KN}",
        ".p2align 8",
        f".type {KN},@function",
        f"{KN}:",
    ]
    phase1(a)
    phase2(a)
    phase3(a)
    a.l += [
        '.section .rodata,"a"',
        ".p2align 6",
        f".amdhsa_kernel {KN}",
        f"  .amdhsa_next_free_vgpr {NV}",
        "  .amdhsa_next_free_sgpr 102",
        f"  .amdhsa_accum_offset {NV}",
        "  .amdhsa_group_segment_fixed_size 0",
        "  .amdhsa_kernarg_size 88",
        "  .amdhsa_user_sgpr_count 2",
        "  .amdhsa_user_sgpr_kernarg_segment_ptr 1",
        "  .amdhsa_system_sgpr_workgroup_id_x 1",
        ".end_amdhsa_kernel",
    ]
    open(path, "w").write(a.text())
    print(f"{KN} 256 576 {LDS}")


if __name__ == "__main__":
    main(sys.argv[1] if len(sys.argv) > 1 else f"cdna_kernels/{NAME}.s")
```

```python
import math, os, re, struct, sys

NAME = "concat_heads__softmax_full_mha__grouped_kv_mqa__prompt"
KN = NAME + "_kernel"

WS_Q = 0
QUNIT = 81920
WS_KV = 0x500000
KVUNIT = 163840
WS_O = 0xA40000
OBR = 0x280000
WS_FLAG = WS_O + 2 * OBR
WS_ST = 0xF80000
WS_SIZE = 0x1000000
LDS = 163840
NV = 168

env = lambda k, d: os.environ.get(k, d)
STAMP = int(env("STAMP", "0"))
ROT_MASK = int(env("ROT_MASK", "3"))
ROT_MUL = int(env("ROT_MUL", "10"))
ROT_P = int(env("ROT_P", "0"))
ROT_H = int(env("ROT_H", "0"))
POLL_SLEEP = int(env("POLL_SLEEP", "4"))
NPOLL = int(env("NPOLL", "1"))
LA = int(env("K3_LA", "7"))
STMOD = env("STMOD", "sc1")
OUTMOD = env("OUTMOD", "nt")
LOWJ = int(env("LOWJ", "5"))
SPIN_MAX = 1 << 16
STV = 166


def f32bits(x):
    return struct.unpack("<I", struct.pack("<f", x))[0]


QSCALE = (20.0 ** -0.5) * math.log2(math.e)


class Asm:
    def __init__(self):
        self.l = []

    def __call__(self, s):
        for line in s.strip("\n").split("\n"):
            t = line.strip()
            if t:
                self.l.append(t if t.endswith(":") else "  " + t)

    def c(self, s):
        self.l.append("  ; " + s)

    def text(self):
        return "\n".join(self.l) + "\n"


def vr(b, n):
    return f"v[{b}:{b+n-1}]"


def stamp(a, first=False, lvl=1):
    if STAMP < lvl:
        return
    if first:
        a(f"v_mov_b32 v{STV}, 0")
        a("s_mov_b32 s91, 0")
    a(f"""
    s_memtime s[96:97]
    s_memrealtime s[98:99]
    s_waitcnt lgkmcnt(0)
    s_mov_b32 s90, m0
    s_mov_b32 m0, s91
    s_nop 0
    v_writelane_b32 v{STV}, s96, m0
    s_add_u32 m0, s91, 1
    s_nop 0
    v_writelane_b32 v{STV}, s98, m0
    s_add_u32 s91, s91, 2
    s_mov_b32 m0, s90
    """)


def stamp_store(a):
    if not STAMP:
        return
    a(f"""
    s_mov_b32 exec_lo, -1
    s_mov_b32 exec_hi, 0
    s_lshl_b32 s92, s2, 3
    s_add_u32 s92, s92, s3
    s_lshl_b32 s92, s92, 7
    s_add_u32 s92, s92, {WS_ST}
    v_mbcnt_lo_u32_b32 v{STV+1}, -1, 0
    v_lshlrev_b32 v{STV+1}, 2, v{STV+1}
    buffer_store_dword v{STV}, v{STV+1}, s[8:11], s92 offen
    """)


DIAG = env("DIAG", "")
def dpt(a, k):
    if DIAG:
        a(f"s_memrealtime s[{82+2*k}:{83+2*k}]")
        a("s_waitcnt lgkmcnt(0)")
def dfin(a):
    if not DIAG:
        return
    if DIAG == "xcc":
        a("""
        s_getreg_b32 s92, hwreg(HW_REG_XCC_ID)
        s_and_b32 s92, s92, 7
        s_and_b32 s93, s2, 7
        s_cmp_eq_u32 s92, s93
        s_cselect_b32 s92, 0, 3000
        """)
    else:
        A, B = DIAG.split("-")
        ra = "s6" if A == "s" else f"s{82+2*int(A)}"
        a(f"""
        s_or_b32 s92, s2, s3
        s_cmp_lg_u32 s92, 0
        s_cbranch_scc1 KEND
        s_sub_u32 s92, s{82+2*int(B)}, {ra}
        s_lshl_b32 s92, s92, 2
        """)
    a("""
    s_memrealtime s[94:95]
    s_waitcnt lgkmcnt(0)
    s_add_u32 s92, s92, s94
    DSPIN:
    s_memrealtime s[94:95]
    s_waitcnt lgkmcnt(0)
    s_sub_u32 s93, s94, s92
    s_cmp_lt_i32 s93, 0
    s_cbranch_scc1 DSPIN
    """)

M16 = "v_mfma_f32_32x32x16_bf16"
M8 = "v_mfma_f32_32x32x8_bf16"
SM = "v_smfmac_f32_32x32x32_bf16"
M1632 = "v_mfma_f32_16x16x32_bf16"

WOFF = 16384
EOFF = WOFF + 4 * 5184
SLOT = EOFF + 2560 + 64
NSLOT = 4
assert NSLOT * SLOT <= LDS


def phase1(a):
    a(f"""
    s_cmp_ge_u32 s2, 256
    s_cbranch_scc1 KEND
    """)
    stamp(a, True)
    a(f"""
    s_load_dwordx16 s[16:31], s[0:1], 0
    s_load_dwordx2 s[8:9], s[0:1], 80
    s_memrealtime s[6:7]
    v_and_b32 v1, 63, v0
    v_lshrrev_b32 v2, 6, v0
    s_and_b32 s50, s2, 7
    v_readfirstlane_b32 s3, v2
    s_lshr_b32 s51, s2, 3
    s_and_b32 s52, s51, 7
    s_lshr_b32 s53, s51, 3
    s_and_b32 s54, s50, 1
    s_lshr_b32 s55, s50, 1
    s_lshl_b32 s56, s54, 3
    s_add_u32 s56, s56, s52
    s_mov_b32 s10, {WS_SIZE}
    s_mov_b32 s11, 0x00020000
    """)
    a.c("s3 wave, s[8:11] ws SRD, s[6:7] start time; s52 mt, s53 nt, s54 mhalf, s55 part(0 Q,1 K,2 V,3 B), s56 m tile 0..15")
    a(f"""
    s_cmp_eq_u32 s55, 3
    s_cselect_b32 s57, 1, 0
    s_mov_b32 s58, 3840
    s_cselect_b32 s58, 1280, s58
    s_cselect_b32 s59, 0, s55
    s_mul_i32 s59, s59, 1280
    s_mul_i32 s60, s53, 320
    s_add_u32 s59, s59, s60
    s_cmp_ge_u32 s3, 4
    s_cbranch_scc1 P1_LOADER
    """)
    a.c("s57 isB, s58 W row stride, s59 W col byte base")
    XA = [4, 5, 6, 7]
    WA, EA = 8, 9
    T = [10, 11, 12, 13, 14]
    XF = [16, 32]
    WF = 48
    EF = 68
    ACC = 72
    EACC = 152
    a.c("---- compute wave setup: s61 wm, s62 wn, s63 flip (B WGs with nt odd)")
    a(f"""
    s_and_b32 s61, s3, 1
    s_lshr_b32 s62, s3, 1
    s_and_b32 s63, s53, s57
    v_and_b32 v2, 15, v1
    v_lshrrev_b32 v3, 4, v1
    s_cmp_eq_u32 s55, 2
    s_cselect_b64 s[64:65], -1, 0
    v_bfe_u32 v22, v2, 1, 3
    v_bfe_u32 v23, v2, 1, 1
    v_lshrrev_b32 v24, 2, v2
    v_lshl_or_b32 v23, v24, 1, v23
    v_cndmask_b32 v22, v22, v23, s[64:65]
    v_and_b32 v23, 3, v2
    v_lshl_add_u32 v23, v24, 3, v23
    v_cndmask_b32 v23, v2, v23, s[64:65]
    s_lshl_b32 s66, s61, 13
    s_lshl_b32 s67, s63, 12
    s_add_u32 s68, s66, s67
    s_xor_b32 s67, s67, 4096
    s_add_u32 s69, s66, s67
    v_lshlrev_b32 v23, 7, v23
    """)
    for ks in range(2):
        a(f"""
        v_add_u32 v24, {4*ks}, v3
        v_xor_b32 v24, v24, v22
        v_lshl_add_u32 v24, v24, 4, v23
        v_add_u32 v{XA[2*ks]}, s68, v24
        v_add_u32 v{XA[2*ks+1]}, s69, v24
        """)
    a(f"""
    v_bfe_u32 v22, v1, 2, 2
    v_lshl_add_u32 v22, v3, 3, v22
    v_and_b32 v24, 3, v1
    v_mul_u32_u24 v{WA}, 320, v22
    v_and_b32 v25, 1, v3
    v_lshl_add_u32 v{WA}, v25, 5, v{WA}
    v_lshrrev_b32 v25, 1, v3
    v_lshl_add_u32 v{WA}, v25, 6, v{WA}
    v_mul_u32_u24 v25, 40, v24
    v_lshlrev_b32 v26, 3, v24
    v_cndmask_b32 v25, v25, v26, s[64:65]
    s_mul_i32 s66, s62, 160
    s_add_u32 s66, s66, {WOFF}
    v_add3_u32 v{WA}, v{WA}, v25, s66
    v_mul_u32_u24 v{EA}, 40, v22
    s_lshl_b32 s66, s62, 5
    s_add_u32 s66, s66, {EOFF}
    v_add3_u32 v{EA}, v{EA}, v26, s66
    """)
    for i in range(88):
        a(f"v_mov_b32 v{ACC+i}, 0")
    a.c("store geometry: s70 unit size, s71 tile size, s72/s73 soffset for slot pair 0/1, s74 extra soffset")
    a(f"""
    s_sub_u32 s66, s55, 1
    s_cmp_lt_u32 s66, 2
    s_mov_b32 s70, {QUNIT}
    s_cselect_b32 s70, {KVUNIT}, s70
    s_mov_b32 s71, 1280
    s_cselect_b32 s71, 2560, s71
    s_cselect_b32 s72, {WS_KV}, {WS_Q}
    s_lshl_b32 s66, s53, 3
    s_lshl_b32 s67, s57, 5
    s_add_u32 s66, s66, s67
    s_lshl_b32 s67, s62, 2
    s_add_u32 s66, s66, s67
    s_mul_i32 s66, s66, s70
    s_add_u32 s72, s72, s66
    s_lshl_b32 s66, s56, 2
    s_lshl_b32 s67, s61, 1
    s_add_u32 s66, s66, s67
    s_add_u32 s67, s66, s63
    s_xor_b32 s76, s63, 1
    s_add_u32 s66, s66, s76
    s_mul_i32 s76, s66, s71
    s_add_u32 s73, s72, s76
    s_mul_i32 s76, s67, s71
    s_add_u32 s72, s72, s76
    s_mul_i32 s74, s67, 2560
    s_add_u32 s74, s74, {WS_KV + 32*KVUNIT}
    v_mul_lo_u32 v22, v3, s70
    v_lshl_add_u32 v{T[0]}, v2, 4, v22
    v_lshl_add_u32 v{T[1]}, v2, 3, v22
    v_add_u32 v{T[1]}, 1024, v{T[1]}
    v_mov_b32 v{T[2]}, 0
    v_mov_b32 v{T[3]}, 0
    v_mov_b32 v{T[4]}, 0
    s_cmp_eq_u32 s55, 2
    s_cbranch_scc0 P1_SETUP_DONE
    s_mov_b32 s76, 0xCCCCCCCD
    v_lshrrev_b32 v25, 1, v3
    v_mul_u32_u24 v25, 640, v25
    v_and_b32 v26, 1, v3
    v_mul_u32_u24 v26, 320, v26
    v_add3_u32 v25, v25, v26, s71
    v_subrev_u32 v25, 1280, v25
    """)
    for n5 in range(5):
        a(f"""
        v_add_u32 v22, {16*n5}, v2
        v_mul_hi_u32 v23, v22, s76
        v_lshrrev_b32 v23, 4, v23
        v_mul_u32_u24 v24, 20, v23
        v_sub_u32 v24, v22, v24
        v_mul_lo_u32 v23, v23, s70
        v_lshl_add_u32 v23, v24, 4, v23
        v_add_u32 v{T[n5]}, v23, v25
        """)
    a("P1_SETUP_DONE:")
    a.c("s76: variant 0 QK, 1 V, 2 QK+Kextra, 3 QK+Vextra; s78 stage counter")
    a(f"""
    s_mov_b32 s76, 0
    s_cmp_eq_u32 s55, 2
    s_cselect_b32 s76, 1, s76
    s_lshr_b32 s66, s53, 1
    s_add_u32 s66, s66, 2
    s_cmp_eq_u32 s57, 1
    s_cselect_b32 s76, s66, s76
    s_mov_b32 s78, 0
    s_mov_b32 s79, {SLOT}
    s_waitcnt lgkmcnt(0)
    s_barrier
    """)
    stamp(a)

    def rgroup(g, ks, xs, orient):
        if g < 5:
            r = [f"ds_read_b64_tr_b16 {vr(WF+4*g+2*i,2)}, v{WA} offset:{ks*(320*32+128)+i*1280+g*(32 if orient else 8)}" for i in range(2)]
        else:
            r = [f"ds_read_b64_tr_b16 {vr(EF+2*i,2)}, v{EA} offset:{(32*ks+4*i)*40}" for i in range(2)]
        if g == 0:
            r += [f"ds_read_b128 {vr(XF[xs]+4*s_,4)}, v{XA[2*ks+(s_>>1)]} offset:{(s_&1)*(512 if orient else 2048)}" for s_ in range(4)]
        return r

    def mgroup(g, xs, orient, extra):
        m = []
        if g < 5:
            for s_ in range(4):
                w, x, d = vr(WF+4*g, 4), vr(XF[xs]+4*s_, 4), vr(ACC+(s_*5+g)*4, 4)
                m.append(f"{M1632} {d}, {w}, {x}, {d}" if orient == 0 else f"{M1632} {d}, {x}, {w}, {d}")
        else:
            for s_ in range(2):
                w, x, d = vr(EF, 4), vr(XF[xs]+4*s_, 4), vr(EACC+4*s_, 4)
                m.append(f"{M1632} {d}, {w}, {x}, {d}" if extra == 1 else f"{M1632} {d}, {x}, {w}, {d}")
        return m

    variants = [(0, 0), (1, 0), (0, 1), (0, 2)]
    a(f"""
    s_cmp_eq_u32 s76, 1
    s_cbranch_scc1 P1_V1
    s_cmp_eq_u32 s76, 2
    s_cbranch_scc1 P1_V2
    s_cmp_eq_u32 s76, 3
    s_cbranch_scc1 P1_V3
    """)
    for vi, (orient, extra) in enumerate(variants):
        G = 6 if extra else 5
        a(f"P1_V{vi}:")
        for g in range(G):
            for x in rgroup(g, 0, 0, orient):
                a(x)
        a(f"P1_L{vi}:")
        for g in range(G):
            a(f"s_waitcnt lgkmcnt({2*(G-1) if g == 0 else 2*G+2})")
            for m in mgroup(g, 0, orient, extra):
                a(m)
            for x in rgroup(g, 1, 1, orient):
                a(x)
        for g in range(G):
            if g == 0:
                a(f"s_waitcnt lgkmcnt({2*(G-1)})")
            for m in mgroup(g, 1, orient, extra):
                a(m)
            if g == 0:
                a(f"""
                s_and_b32 s77, s78, 3
                s_cmp_eq_u32 s77, 3
                s_cselect_b32 s77, {(-3*SLOT) & 0xffffffff}, s79
                s_waitcnt lgkmcnt(0)
                s_barrier
                """)
                for k in range(4):
                    a(f"v_add_u32 v{XA[k]}, s77, v{XA[k]}")
                a(f"v_add_u32 v{WA}, s77, v{WA}")
                if extra:
                    a(f"v_add_u32 v{EA}, s77, v{EA}")
            for x in rgroup(g, 0, 0, orient):
                a(x)
        stamp(a, lvl=2)
        a(f"""
        s_add_u32 s78, s78, 1
        s_cmp_lt_u32 s78, 10
        s_cbranch_scc1 P1_L{vi}
        """)
        if vi == 1:
            a("s_branch P1_EPI_V")
        elif vi < 3:
            a("s_branch P1_EPI_QK")
    a("P1_EPI_QK:")
    stamp(a)
    a(f"""
    s_nop 7
    s_waitcnt lgkmcnt(0)
    s_cmp_eq_u32 s55, 1
    s_cbranch_scc1 P1_NOSCALE
    s_mov_b32 s80, {hex(f32bits(QSCALE))}
    s_mov_b32 s81, {hex(f32bits(QSCALE))}
    """)
    for i in range(0, 80, 2):
        a(f"v_pk_mul_f32 {vr(ACC+i,2)}, s[80:81], {vr(ACC+i,2)}")
    a("P1_NOSCALE:")
    for s_ in range(4):
        t = 16 + 12 * s_
        for n5 in range(5):
            b = ACC + (s_ * 5 + n5) * 4
            a(f"v_cvt_pk_bf16_f32 v{t+2*n5}, v{b}, v{b+1}")
            a(f"v_cvt_pk_bf16_f32 v{t+2*n5+1}, v{b+2}, v{b+3}")
        so = f"s{72+(s_>>1)}"
        a(f"buffer_store_dwordx4 {vr(t,4)}, v{T[0]}, s[8:11], {so} offen offset:{(s_&1)*256} {STMOD}")
        a(f"buffer_store_dwordx4 {vr(t+4,4)}, v{T[0]}, s[8:11], {so} offen offset:{(s_&1)*256+512} {STMOD}")
        a(f"buffer_store_dwordx2 {vr(t+8,2)}, v{T[1]}, s[8:11], {so} offen offset:{(s_&1)*128} {STMOD}")
    TX = 70
    a(f"""
    s_cmp_lt_u32 s76, 2
    s_cbranch_scc1 P1_DONE
    v_cvt_pk_bf16_f32 v64, v{EACC}, v{EACC+1}
    v_cvt_pk_bf16_f32 v65, v{EACC+2}, v{EACC+3}
    v_cvt_pk_bf16_f32 v66, v{EACC+4}, v{EACC+5}
    v_cvt_pk_bf16_f32 v67, v{EACC+6}, v{EACC+7}
    v_lshrrev_b32 v68, 1, v3
    v_and_b32 v69, 1, v3
    s_cmp_eq_u32 s76, 3
    s_cbranch_scc1 P1_EPI_VX
    s_cmp_eq_u32 s62, 1
    s_cbranch_scc1 P1_EPI_KX1
    v_lshlrev_b32 v{TX}, 9, v68
    v_lshl_add_u32 v{TX}, v69, 3, v{TX}
    v_lshl_add_u32 v{TX}, v2, 4, v{TX}
    buffer_store_dwordx2 v[64:65], v{TX}, s[8:11], s74 offen {STMOD}
    buffer_store_dwordx2 v[66:67], v{TX}, s[8:11], s74 offen offset:256 {STMOD}
    s_branch P1_DONE
    P1_EPI_KX1:
    v_lshlrev_b32 v{TX}, 3, v2
    s_mov_b32 exec_lo, 0xffff
    s_mov_b32 exec_hi, 0
    buffer_store_dwordx2 v[64:65], v{TX}, s[8:11], s74 offen offset:1024 {STMOD}
    buffer_store_dwordx2 v[66:67], v{TX}, s[8:11], s74 offen offset:1152 {STMOD}
    s_mov_b64 exec, -1
    s_branch P1_DONE
    P1_EPI_VX:
    v_mul_u32_u24 v{TX}, 320, v68
    v_lshl_add_u32 v{TX}, v69, 3, v{TX}
    v_lshl_add_u32 v{TX}, v2, 4, v{TX}
    s_lshl_b32 s66, s62, 8
    s_add_u32 s74, s74, s66
    s_cmp_eq_u32 s62, 1
    s_mov_b32 s66, 0x000f000f
    s_cselect_b32 s66, s66, -1
    s_mov_b32 exec_lo, s66
    s_mov_b32 exec_hi, s66
    buffer_store_dwordx2 v[64:65], v{TX}, s[8:11], s74 offen offset:1280 {STMOD}
    buffer_store_dwordx2 v[66:67], v{TX}, s[8:11], s74 offen offset:1920 {STMOD}
    s_mov_b64 exec, -1
    s_branch P1_DONE
    P1_EPI_V:
    """)
    stamp(a)
    a("s_nop 7")
    a("s_waitcnt lgkmcnt(0)")
    for pr in range(2):
        for n5 in range(5):
            t = 16 + 4 * (pr * 5 + n5)
            for h in range(2):
                b = ACC + ((2 * pr + h) * 5 + n5) * 4
                a(f"v_cvt_pk_bf16_f32 v{t+2*h}, v{b}, v{b+1}")
                a(f"v_cvt_pk_bf16_f32 v{t+2*h+1}, v{b+2}, v{b+3}")
            a(f"buffer_store_dwordx4 {vr(t,4)}, v{T[n5]}, s[8:11], s{72+pr} offen {STMOD}")
    a("s_branch P1_DONE")

    XO, WO, EO = 4, 5, 6
    NPS = 11
    a(f"""
    P1_LOADER:
    s_cmp_eq_u32 s3, 8
    s_cbranch_scc1 P1_IDLE
    s_sub_u32 s12, s3, 4
    s_lshl_b32 s61, s56, 7
    s_lshl_b32 s62, s12, 3
    s_add_u32 s61, s61, s62
    v_lshrrev_b32 v2, 3, v1
    v_add_u32 v2, s61, v2
    v_mul_u32_u24 v2, 1280, v2
    s_and_b32 s62, s12, 1
    s_lshl_b32 s62, s62, 2
    v_lshrrev_b32 v3, 4, v1
    v_add_u32 v3, s62, v3
    s_lshl_b32 s62, s12, 1
    v_bfe_u32 v11, v1, 4, 1
    v_or_b32 v11, s62, v11
    s_cmp_eq_u32 s55, 2
    s_cselect_b64 vcc, -1, 0
    s_lshl_b32 s65, s12, 10
    v_cndmask_b32 v3, v3, v11, vcc
    v_and_b32 v11, 7, v1
    v_xor_b32 v3, v3, v11
    v_lshl_add_u32 v{XO}, v3, 4, v2
    s_mov_b32 s72, 0xCCCCCCCD
    s_lshl_b32 s63, s12, 4
    v_mul_hi_u32 v3, v1, s72
    v_lshrrev_b32 v3, 4, v3
    v_mul_u32_u24 v11, 20, v3
    v_sub_u32 v11, v1, v11
    v_add_u32 v3, s63, v3
    v_mul_lo_u32 v3, v3, s58
    v_lshl_add_u32 v3, v11, 4, v3
    v_add_u32 v{WO}, s59, v3
    s_mul_i32 s64, s12, 640
    v_lshlrev_b32 v{EO}, 4, v1
    v_add_u32 v{EO}, s64, v{EO}
    s_mul_i32 s66, s12, 5184
    s_add_u32 s66, s66, {WOFF}
    s_add_u32 s67, s64, {EOFF}
    s_mul_i32 s68, s58, 50
    s_mul_i32 s69, s58, 3
    s_lshl_b32 s79, s58, 1
    s_add_u32 s80, s52, s53
    s_and_b32 s80, s80, {ROT_MASK}
    s_mul_i32 s80, s80, {ROT_MUL}
    s_lshr_b32 s80, s80, 2
    s_mul_i32 s81, s55, {ROT_P}
    s_add_u32 s80, s80, s81
    s_mul_i32 s81, s54, {ROT_H}
    s_add_u32 s80, s80, s81
    s_cmp_ge_u32 s80, 10
    s_cselect_b32 s81, 10, 0
    s_sub_u32 s80, s80, s81
    s_lshl_b32 s70, s80, 7
    s_lshl_b32 s71, s58, 6
    s_mul_i32 s71, s71, s80
    s_mul_i32 s73, s80, 2560
    s_mov_b32 s74, 0
    s_mov_b32 s34, {2048*1280}
    s_mov_b32 s35, 0x00020000
    s_mov_b32 s39, 0x00020000
    s_mov_b32 s43, 0x00020000
    s_mov_b32 s77, 0
    s_cmp_eq_u32 s57, 1
    s_mov_b32 s38, {640*3840}
    s_cselect_b32 s38, {640*1280}, s38
    s_cselect_b32 s42, {640*40}, 0
    s_waitcnt lgkmcnt(0)
    s_cselect_b32 s32, s22, s16
    s_cselect_b32 s33, s23, s17
    s_cselect_b32 s36, s24, s18
    s_cselect_b32 s37, s25, s19
    s_cmp_lt_u32 s53, 2
    s_cselect_b32 s40, s26, s28
    s_cselect_b32 s41, s27, s29
    """)
    a.c("k order is rotated per WG (s80) so that a cold start spreads over the whole K range")
    a.c("s65/s66/s67 LDS rel bases; s70 x soff, s71 W soff, s73 E soff, s74 slot base")
    a("P1_LP:")
    a("s_add_u32 s75, s74, s65")
    for t in range(4):
        a(f"""
        s_add_u32 m0, s75, {4096*t}
        s_add_u32 s76, s70, {40960*t}
        buffer_load_dwordx4 v{XO}, s[32:35], s76 offen lds
        """)
    a("s_add_u32 s75, s74, s66")
    for t, r0 in enumerate([0, 3, 6, 8, 11, 14]):
        a(f"s_add_u32 m0, s75, {320*r0 + (32 if r0 >= 8 else 0)}")
        a(f"s_mov_b32 exec_hi, {'0xff' if t % 3 == 2 else '0x0fffffff'}")
        a(f"buffer_load_dwordx4 v{WO}, s[36:39], s71 offen lds")
        a(f"s_add_u32 s71, s71, {'s69' if t % 3 < 2 else ('s79' if t == 2 else 's68')}")
    a(f"""
    s_add_u32 m0, s74, s67
    s_add_u32 s70, s70, 128
    buffer_load_dwordx4 v{EO}, s[40:43], s73 offen lds
    s_mov_b32 exec_hi, -1
    s_add_u32 s73, s73, 2560
    s_add_u32 s74, s74, {SLOT}
    s_cmp_eq_u32 s74, {NSLOT*SLOT}
    s_cselect_b32 s74, 0, s74
    s_cmp_eq_u32 s70, 1280
    s_cselect_b32 s70, 0, s70
    s_cselect_b32 s71, 0, s71
    s_cselect_b32 s73, 0, s73
    s_add_u32 s77, s77, 1
    s_cmp_lt_u32 s77, 2
    s_cbranch_scc1 P1_LP
    s_waitcnt vmcnt({NPS})
    s_barrier
    s_cmp_lt_u32 s77, 10
    s_cbranch_scc1 P1_LP
    s_waitcnt vmcnt(0)
    """)
    stamp(a)
    a(f"""
    s_barrier
    s_barrier
    s_branch P1_DONE
    P1_IDLE:
    s_mov_b32 s77, 0
    s_waitcnt lgkmcnt(0)
    P1_IDLE1:
    s_barrier
    s_add_u32 s77, s77, 1
    s_cmp_lt_u32 s77, 11
    s_cbranch_scc1 P1_IDLE1
    P1_DONE:
    """)
    stamp(a)
    dpt(a, 0)


def handoff(a, tag, ph, delta, idcode, HT):
    a(f"""
    s_cmp_lg_u32 s3, 0
    s_cbranch_scc1 {tag}_PRE
    s_memrealtime s[44:45]
    """)
    a(idcode)
    a(f"""
    v_lshlrev_b32 v9, 7, v9
    v_lshlrev_b32 v7, 4, v1
    s_lshl_b32 s48, s2, 7
    s_add_u32 s48, s48, {WS_FLAG + ph*0x8000}
    s_mov_b32 s49, {WS_FLAG + ph*0x8000}
    s_sub_u32 s46, s6, {delta}
    s_subb_u32 s47, s7, 0
    s_waitcnt lgkmcnt(0)
    v_mov_b32 v{HT}, s44
    v_mov_b32 v{HT+1}, s45
    v_mov_b32 v{HT+2}, s44
    v_mov_b32 v{HT+3}, s45
    v_mov_b32 v11, s47
    {tag}_PRE:
    s_waitcnt vmcnt(0)
    """)
    stamp(a)
    a(f"""
    s_barrier
    s_cmp_lg_u32 s3, 0
    s_cbranch_scc1 {tag}_WAIT
    s_mov_b64 exec, 0xff
    buffer_store_dwordx4 {vr(HT,4)}, v7, s[8:11], s48 offen sc1
    s_mov_b64 exec, s[50:51]
    s_mov_b32 s48, 0
    """)
    P = HT + 4
    for k in range(NPOLL - 1):
        a(f"buffer_load_dwordx2 {vr(P+2*k,2)}, v9, s[8:11], s49 offen sc1")
        a(f"s_sleep {POLL_SLEEP}")
    a(f"{tag}_POLL:")
    for k in range(NPOLL):
        n = (k + NPOLL - 1) % NPOLL
        a(f"""
        buffer_load_dwordx2 {vr(P+2*n,2)}, v9, s[8:11], s49 offen sc1
        s_waitcnt vmcnt({NPOLL-1})
        v_subrev_co_u32 v10, vcc, s46, v{P+2*k}
        s_nop 1
        v_subb_co_u32 v7, vcc, v{P+2*k+1}, v11, vcc
        v_lshrrev_b32 v10, 24, v10
        v_or_b32 v10, v10, v7
        v_cmp_eq_u32 vcc, 0, v10
        s_nop 3
        s_cmp_eq_u64 vcc, s[50:51]
        s_cbranch_scc1 {tag}_OUT
        s_sleep {POLL_SLEEP}
        """)
    a(f"""
    s_add_u32 s48, s48, 1
    s_cmp_lt_u32 s48, {SPIN_MAX}
    s_cbranch_scc1 {tag}_POLL
    {tag}_OUT:
    s_mov_b64 exec, -1
    s_waitcnt vmcnt(0)
    {tag}_WAIT:
    """)


def phase2(a):
    VL, L16, KA, KH, VA, IDX = 1, 2, 3, 4, 5, 6
    QA_LO, QA_HI, QB_HI, QB_LO = 12, 16, 18, 20
    KLO = [24, 32]
    KHI = [28, 30]
    VB = [36, 44]
    SA, SB, OA, OB = 52, 68, 84, 100
    MA, MB = 116, 117
    a(f"""
    s_and_b32 s13, s2, 7
    s_lshr_b32 s14, s2, 3
    s_lshr_b32 s15, s14, 4
    s_bfe_u32 s16, s14, 0x20002
    s_lshl_b32 s17, s13, 2
    s_add_u32 s17, s17, s16
    s_and_b32 s18, s14, 3
    s_lshl_b32 s19, s15, 5
    s_add_u32 s19, s19, s17
    s_cmp_eq_u32 s15, 0
    s_cselect_b32 s21, s17, 32
    """)
    a.c("s15 br, s17 head, s18 qb, s19 unit, s21 kv unit")
    a(f"""
    s_mul_i32 s25, s19, {QUNIT}
    s_mul_i32 s26, s18, 20480
    s_add_u32 s25, s25, s26
    s_mul_i32 s26, s3, 2560
    s_add_u32 s25, s25, s26
    s_mul_i32 s27, s21, {KVUNIT}
    s_lshl_b32 s28, s3, 10
    s_add_u32 s27, s27, s28
    s_add_u32 s27, s27, {WS_KV}
    v_lshlrev_b32 v{L16}, 4, v{VL}
    s_cmp_eq_u32 s3, 8
    s_cbranch_scc1 P2_LOADER
    v_and_b32 v7, 31, v{VL}
    v_lshrrev_b32 v8, 5, v{VL}
    v_lshlrev_b32 v{KH}, 3, v7
    v_lshl_add_u32 v{KH}, v8, 2, v{KH}
    v_add_u32 v{KH}, 1024, v{KH}
    v_mul_u32_u24 v{VA}, 20, v8
    v_add_u32 v{VA}, v{VA}, v7
    v_lshlrev_b32 v{VA}, 4, v{VA}
    v_add_u32 v{VA}, 1280, v{VA}
    v_mov_b32 v{KA}, v{L16}
    v_mov_b32 v{IDX}, 0xdddddddd
    v_mov_b32 v{QA_HI+1}, 0
    v_mov_b32 v{QB_HI+1}, 0
    v_mov_b32 v{KHI[0]+1}, 0
    v_mov_b32 v{KHI[1]+1}, 0
    v_and_b32 v9, 27, v7
    v_cmp_eq_u32 vcc, 24, v9
    v_mov_b32 v9, 0
    v_mov_b32 v10, 0x3f803f80
    s_mov_b32 s22, 0x000fffff
    s_mov_b32 s23, 0x000fffff
    s_mov_b32 s24, 0x95
    v_cndmask_b32 v9, v9, v10, vcc
    """)
    for i in range(16):
        a(f"v_mov_b32 v{VB[0]+i}, v9")
    for i in range(16):
        a(f"v_mov_b32 v{SB+i}, 0")
    for i in range(32):
        a(f"v_mov_b32 v{OA+i}, 0")
    handoff(a, "H1", 0, 1000, f"""
    s_lshr_b32 s49, s17, 3
    s_lshl_b32 s49, s49, 6
    v_add_u32 v9, s49, v1
    v_and_b32 v10, 7, v1
    v_cmp_gt_u32 s[50:51], 6, v10
    v_lshrrev_b32 v10, 1, v1
    v_lshlrev_b32 v10, 3, v10
    v_and_b32 v11, 1, v1
    v_add3_u32 v10, v10, v11, 6
    s_cmp_eq_u32 s15, 0
    s_cselect_b64 vcc, -1, 0
    s_cselect_b64 s[50:51], s[50:51], -1
    v_cndmask_b32 v9, v10, v9, vcc
    """, 120)
    a(f"""
    s_mov_b32 m0, s28
    s_barrier
    """)
    stamp(a)
    dpt(a, 1)
    a(f"""
    buffer_load_dwordx4 v{L16}, s[8:11], s27 offen lds
    buffer_load_dwordx4 {vr(QA_LO,4)}, v{L16}, s[8:11], s25 offen
    buffer_load_dword v{QA_HI}, v{KH}, s[8:11], s25 offen
    buffer_load_dwordx4 {vr(QB_LO,4)}, v{L16}, s[8:11], s25 offen offset:1280
    buffer_load_dword v{QB_HI}, v{KH}, s[8:11], s25 offen offset:1280
    s_setprio 1
    s_mov_b64 vcc, -1
    s_mov_b32 s20, 0
    """)
    for r in range(1, 4):
        a(f"s_add_u32 m0, m0, 8192")
        a(f"s_add_u32 s27, s27, 8192")
        a(f"buffer_load_dwordx4 v{L16}, s[8:11], s27 offen lds")
    a(f"""
    s_waitcnt vmcnt(3)
    s_barrier
    """)
    stamp(a)
    a(f"""
    ds_read_b128 {vr(KLO[0],4)}, v{KA}
    ds_read_b32 v{KHI[0]}, v{KH}
    ds_read_b128 {vr(KLO[1],4)}, v{KA} offset:2560
    ds_read_b32 v{KHI[1]}, v{KH} offset:2560
    s_mov_b64 exec, s[22:23]
    ds_read_b128 {vr(VB[0],4)}, v{VA}
    ds_read_b128 {vr(VB[0]+4,4)}, v{VA} offset:640
    s_mov_b64 exec, -1
    s_waitcnt lgkmcnt(4)
    {M16} {vr(SA,16)}, {vr(KLO[0],4)}, {vr(QA_LO,4)}, 0
    {M8} {vr(SA,16)}, {vr(KHI[0],2)}, {vr(QA_HI,2)}, {vr(SA,16)}
    s_nop 15
    """)

    def ex(base, lo, hi):
        for i in range(lo, hi):
            a(f"v_exp_f32 v{base+i}, v{base+i}")

    a(".p2align 6")
    a("P2_LOOP:")
    for j in range(8):
        p = j & 1
        ex(SA, 0, 2)
        a(f"{SM} {vr(OB,16)}, {vr(VB[1-p]+4,4)}, {vr(SB+8,8)}, v{IDX}")
        ex(SA, 2, 4)
        a(f"{M16} {vr(SB,16)}, {vr(KLO[p],4)}, {vr(QB_LO,4)}, 0")
        ex(SA, 4, 8)
        a(f"{M8} {vr(SB,16)}, {vr(KHI[p],2)}, {vr(QB_HI,2)}, {vr(SB,16)}")
        a("s_waitcnt lgkmcnt(0)")
        if j in (1, 4):
            a(f"s_cbranch_vccnz P2_SY{j}")
            a(f"P2_SY{j}_RET:")
        a(f"ds_read_b128 {vr(KLO[p],4)}, v{KA} offset:{(j+2)*2560}")
        a(f"ds_read_b32 v{KHI[p]}, v{KH} offset:{(j+2)*2560}")
        if j == LOWJ:
            a("s_bitcmp1_b32 s24, s20")
            a(f"s_cbranch_scc1 P2_LOWP")
            a(f"P2_LOWP_RET:")
        ex(SA, 8, 12)
        a(f"{SM} {vr(OA,16)}, {vr(VB[p],4)}, {vr(SA,8)}, v{IDX}")
        ex(SA, 12, 16)
        ex(SB, 0, 2)
        a(f"{SM} {vr(OA,16)}, {vr(VB[p]+4,4)}, {vr(SA+8,8)}, v{IDX}")
        ex(SB, 2, 4)
        a(f"{M16} {vr(SA,16)}, {vr(KLO[1-p],4)}, {vr(QA_LO,4)}, 0")
        ex(SB, 4, 8)
        a(f"{M8} {vr(SA,16)}, {vr(KHI[1-p],2)}, {vr(QA_HI,2)}, {vr(SA,16)}")
        a("s_mov_b64 exec, s[22:23]")
        a(f"ds_read_b128 {vr(VB[1-p],4)}, v{VA} offset:{(j+1)*2560}")
        a(f"ds_read_b128 {vr(VB[1-p]+4,4)}, v{VA} offset:{(j+1)*2560+640}")
        a("s_mov_b64 exec, -1")
        ex(SB, 8, 12)
        a(f"{SM} {vr(OB,16)}, {vr(VB[p],4)}, {vr(SB,8)}, v{IDX}")
        ex(SB, 12, 16)
    stamp(a, lvl=2)
    a.c("chunk boundary: barriers before chunks 1,3,5; priority falls as a wave advances so the SIMD's two waves stay level")
    a(f"""
    v_add_u32 v{KA}, 20480, v{KA}
    v_add_u32 v{KH}, 20480, v{KH}
    v_add_u32 v{VA}, 20480, v{VA}
    s_add_u32 s20, s20, 1
    s_mov_b64 vcc, 0
    s_bitcmp1_b32 s20, 0
    s_cbranch_scc0 P2_EVEN
    s_setprio 1
    s_cmp_eq_u32 s20, 7
    s_cbranch_scc1 P2_LOOP
    s_barrier
    s_setprio 3
    s_branch P2_LOOP
    P2_LOWP:
    s_setprio 0
    s_branch P2_LOWP_RET
    P2_SY1:
    s_waitcnt vmcnt(2)
    s_barrier
    s_branch P2_SY1_RET
    P2_SY4:
    s_waitcnt vmcnt(0)
    s_barrier
    s_branch P2_SY4_RET
    P2_LOADER:
    """)
    a.c("wave 8: rounds 4..19 of the K/V image, then (once chunks 0-4 are dead) the phase-3 wo slice")
    a(f"""
    s_load_dwordx2 s[52:53], s[0:1], 16
    s_load_dwordx2 s[54:55], s[0:1], 56
    s_mov_b32 s60, 0xCCCCCCCD
    v_mul_hi_u32 v9, v1, s60
    v_lshrrev_b32 v9, 3, v9
    v_mul_u32_u24 v10, 10, v9
    v_sub_u32 v10, v1, v10
    v_mul_u32_u24 v9, 1280, v9
    v_lshl_add_u32 v8, v10, 4, v9
    s_lshr_b32 s56, s14, 2
    s_mul_i32 s56, s56, 160
    s_mov_b32 s34, {640*1280}
    s_mov_b32 s35, 0x00020000
    s_cmp_lt_u32 s13, 4
    s_waitcnt lgkmcnt(0)
    s_cselect_b32 s32, s52, s54
    s_cselect_b32 s33, s53, s55
    s_add_u32 s27, s27, {32768-8192}
    s_mov_b32 m0, 32768
    s_mov_b32 s20, 1
    s_barrier
    s_barrier
    s_barrier
    P2_LD1:
    """)
    for r in range(8):
        a(f"buffer_load_dwordx4 v{L16}, s[8:11], s27 offen lds")
        a(f"s_add_u32 m0, m0, 1024")
        a(f"s_add_u32 s27, s27, 1024")
    a(f"""
    s_add_u32 s20, s20, 1
    s_bitcmp1_b32 0x24, s20
    s_cbranch_scc0 P2_LD2
    s_barrier
    P2_LD2:
    s_cmp_eq_u32 s20, 9
    s_cbranch_scc0 P2_LD3
    s_waitcnt vmcnt(24)
    s_barrier
    P2_LD3:
    s_cmp_lt_u32 s20, 17
    s_cbranch_scc1 P2_LD1
    s_waitcnt vmcnt(0)
    s_barrier
    s_mov_b32 s57, 0
    s_mov_b32 s58, s56
    s_barrier
    P2_LW1:
    """)
    rows = [0, 6, 12, 16, 22, 28]
    src = [0, 6, 12, 20, 26, 32]
    for t in range(6):
        a(f"""
        s_add_u32 m0, s57, {rows[t]*160}
        s_add_u32 s62, s58, {src[t]*1280}
        s_mov_b32 exec_hi, {'0xff' if t % 3 == 2 else '0x0fffffff'}
        buffer_load_dwordx4 v8, s[32:35], s62 offen lds
        """)
    a(f"""
    s_add_u32 s57, s57, 5120
    s_add_u32 s58, s58, {40*1280}
    s_cmp_lt_u32 s57, {16*5120}
    s_cbranch_scc1 P2_LW1
    s_add_u32 s58, s56, {16*1280}
    P2_LW2:
    s_mov_b32 m0, s57
    s_add_u32 s57, s57, 640
    buffer_load_dwordx4 v8, s[32:35], s58 offen lds
    s_add_u32 s58, s58, {20*1280}
    s_cmp_lt_u32 s57, {20*5120}
    s_cbranch_scc1 P2_LW2
    s_waitcnt vmcnt(0)
    s_barrier
    s_endpgm
    P2_EVEN:
    s_setprio 1
    s_cmp_lt_u32 s20, 6
    s_cbranch_scc1 P2_LOOP
    s_setprio 2
    s_cmp_lt_u32 s20, 8
    s_cbranch_scc1 P2_LOOP
    s_setprio 0
    {SM} {vr(OB,16)}, {vr(VB[1]+4,4)}, {vr(SB+8,8)}, v{IDX}
    s_waitcnt lgkmcnt(0)
    s_nop 15
    """)
    stamp(a)
    dpt(a, 2)
    a.c("---- safety check of the unshifted softmax: l within [2^-30, 2^110], all O finite; else redo with the true max")
    a(f"""
    s_mov_b32 s30, {hex(f32bits(2.0**-30))}
    s_mov_b32 s31, {hex(f32bits(2.0**110))}
    v_mul_f32 v7, 0, v{OA}
    """)
    for i in range(1, 12):
        a(f"v_fma_f32 v7, v{OA+i}, 0, v7")
    for i in range(12):
        a(f"v_fma_f32 v7, v{OB+i}, 0, v7")
    a(f"""
    v_min_f32 v8, v{OA+12}, v{OB+12}
    v_max_f32 v9, v{OA+12}, v{OB+12}
    v_add_f32 v7, v7, v{OA+12}
    v_add_f32 v7, v7, v{OB+12}
    v_cmp_le_f32 vcc, s30, v8
    v_cmp_ge_f32 s[32:33], s31, v9
    v_cmp_o_f32 s[34:35], v7, v7
    s_nop 3
    s_and_b64 vcc, vcc, s[32:33]
    s_and_b64 vcc, vcc, s[34:35]
    s_cmp_eq_u64 vcc, -1
    s_cbranch_scc0 P2_FALLBACK
    P2_STORE:
    s_mul_i32 s36, s15, {OBR}
    s_lshl_b32 s37, s18, 5
    s_lshl_b32 s38, s3, 2
    s_add_u32 s37, s37, s38
    s_mul_i32 s37, s37, 20480
    s_add_u32 s36, s36, s37
    s_add_u32 s36, s36, {WS_O}
    s_lshr_b32 s37, s17, 1
    s_lshl_b32 s37, s37, 10
    s_and_b32 s38, s17, 1
    s_lshl_b32 s38, s38, 9
    s_add_u32 s37, s37, s38
    s_add_u32 s37, s37, s36
    s_lshr_b32 s38, s17, 3
    s_lshl_b32 s38, s38, 10
    s_add_u32 s38, s38, 16384
    s_bfe_u32 s39, s17, 0x10002
    s_lshl_b32 s39, s39, 9
    s_add_u32 s38, s38, s39
    s_and_b32 s39, s17, 1
    s_lshl_b32 s39, s39, 8
    s_add_u32 s38, s38, s39
    s_bfe_u32 s39, s17, 0x10001
    s_lshl_b32 s39, s39, 3
    s_add_u32 s38, s38, s39
    s_add_u32 s38, s38, s36
    v_and_b32 v7, 15, v{VL}
    v_lshlrev_b32 v7, 4, v7
    v_bfe_u32 v8, v{VL}, 4, 1
    v_mul_u32_u24 v8, 20480, v8
    v_add_u32 v7, v7, v8
    v_lshrrev_b32 v8, 5, v{VL}
    v_lshl_add_u32 v8, v8, 8, v7
    v_rcp_f32 v10, v{OA+12}
    v_rcp_f32 v11, v{OB+12}
    s_add_u32 s40, s37, 40960
    s_add_u32 s41, s38, 40960
    """)
    for (o, r, t) in ((OA, 10, SA), (OB, 11, SB)):
        for i in range(12):
            a(f"v_mul_f32 v{o+i}, v{o+i}, v{r}")
        for i in range(6):
            a(f"v_cvt_pk_bf16_f32 v{t+i}, v{o+2*i}, v{o+2*i+1}")
    a(f"""
    buffer_store_dwordx4 {vr(SA,4)}, v8, s[8:11], s37 offen {STMOD}
    buffer_store_dwordx4 {vr(SB,4)}, v8, s[8:11], s40 offen {STMOD}
    s_mov_b32 exec_hi, 0
    buffer_store_dwordx2 {vr(SA+4,2)}, v7, s[8:11], s38 offen {STMOD}
    buffer_store_dwordx2 {vr(SB+4,2)}, v7, s[8:11], s41 offen {STMOD}
    s_mov_b64 exec, -1
    """)
    stamp(a)
    a("s_branch P2_DONE")
    a.c("---- fallback: textbook two-pass softmax with the true row max, K/V fragments straight from the workspace image")
    a(f"""
    P2_FALLBACK:
    v_mov_b32 v{MA}, 0xff800000
    v_mov_b32 v{MB}, 0xff800000
    v_subrev_u32 v{KH}, {8*20480}, v{KH}
    v_subrev_u32 v{VA}, {8*20480}, v{VA}
    s_mul_i32 s27, s21, {KVUNIT}
    s_add_u32 s27, s27, {WS_KV}
    s_mov_b32 s26, s27
    s_mov_b32 s20, 0
    P2_FB1:
    buffer_load_dwordx4 {vr(KLO[0],4)}, v{L16}, s[8:11], s26 offen
    buffer_load_dword v{KHI[0]}, v{KH}, s[8:11], s26 offen
    s_add_u32 s26, s26, 2560
    s_waitcnt vmcnt(0)
    {M16} {vr(SA,16)}, {vr(KLO[0],4)}, {vr(QA_LO,4)}, 0
    {M8} {vr(SA,16)}, {vr(KHI[0],2)}, {vr(QA_HI,2)}, {vr(SA,16)}
    {M16} {vr(SB,16)}, {vr(KLO[0],4)}, {vr(QB_LO,4)}, 0
    {M8} {vr(SB,16)}, {vr(KHI[0],2)}, {vr(QB_HI,2)}, {vr(SB,16)}
    s_nop 15
    """)
    for i in range(8):
        a(f"v_max3_f32 v{MA}, v{SA+2*i}, v{SA+2*i+1}, v{MA}")
        a(f"v_max3_f32 v{MB}, v{SB+2*i}, v{SB+2*i+1}, v{MB}")
    a(f"""
    s_add_u32 s20, s20, 1
    s_cmp_lt_u32 s20, 64
    s_cbranch_scc1 P2_FB1
    v_mov_b32 v7, v{MA}
    v_mov_b32 v8, v{MB}
    s_nop 1
    v_permlane32_swap_b32 v7, v{MA}
    v_permlane32_swap_b32 v8, v{MB}
    s_nop 1
    v_max_f32 v{MA}, v{MA}, v7
    v_max_f32 v{MB}, v{MB}, v8
    """)
    for i in range(32):
        a(f"v_mov_b32 v{OA+i}, 0")
    a(f"""
    s_mov_b32 s20, 0
    P2_FB2:
    buffer_load_dwordx4 {vr(KLO[0],4)}, v{L16}, s[8:11], s27 offen
    buffer_load_dword v{KHI[0]}, v{KH}, s[8:11], s27 offen
    s_mov_b64 exec, s[22:23]
    buffer_load_dwordx4 {vr(VB[0],4)}, v{VA}, s[8:11], s27 offen
    buffer_load_dwordx4 {vr(VB[0]+4,4)}, v{VA}, s[8:11], s27 offen offset:640
    s_mov_b64 exec, -1
    s_add_u32 s27, s27, 2560
    s_waitcnt vmcnt(0)
    {M16} {vr(SA,16)}, {vr(KLO[0],4)}, {vr(QA_LO,4)}, 0
    {M8} {vr(SA,16)}, {vr(KHI[0],2)}, {vr(QA_HI,2)}, {vr(SA,16)}
    {M16} {vr(SB,16)}, {vr(KLO[0],4)}, {vr(QB_LO,4)}, 0
    {M8} {vr(SB,16)}, {vr(KHI[0],2)}, {vr(QB_HI,2)}, {vr(SB,16)}
    s_nop 15
    """)
    for i in range(16):
        a(f"v_sub_f32 v{SA+i}, v{SA+i}, v{MA}")
        a(f"v_sub_f32 v{SB+i}, v{SB+i}, v{MB}")
    ex(SA, 0, 16)
    ex(SB, 0, 16)
    a(f"""
    s_nop 1
    {SM} {vr(OA,16)}, {vr(VB[0],4)}, {vr(SA,8)}, v{IDX}
    {SM} {vr(OA,16)}, {vr(VB[0]+4,4)}, {vr(SA+8,8)}, v{IDX}
    {SM} {vr(OB,16)}, {vr(VB[0],4)}, {vr(SB,8)}, v{IDX}
    {SM} {vr(OB,16)}, {vr(VB[0]+4,4)}, {vr(SB+8,8)}, v{IDX}
    s_add_u32 s20, s20, 1
    s_cmp_lt_u32 s20, 64
    s_cbranch_scc1 P2_FB2
    s_nop 15
    s_branch P2_STORE
    P2_DONE:
    """)


P3_TR = 102400


def phase3(a):
    WF = [16, 36]
    ACC = 56
    OF = 96
    NR = LA + 1
    assert OF + 8 * NR <= STV
    SA_ = [6, 8, 12, 13, 14]
    a(f"""
    s_load_dwordx2 s[36:37], s[0:1], 64
    s_lshr_b32 s15, s13, 2
    s_and_b32 s20, s13, 3
    s_lshl_b32 s20, s20, 2
    s_and_b32 s21, s14, 3
    s_add_u32 s20, s20, s21
    s_lshr_b32 s21, s14, 2
    """)
    a.c("s15 br, s20 token tile(128), s21 col tile(80)")
    a(f"""
    s_mul_i32 s22, s15, {OBR}
    s_lshl_b32 s23, s20, 3
    s_lshl_b32 s24, s3, 1
    s_add_u32 s23, s23, s24
    s_mul_i32 s23, s23, 20480
    s_add_u32 s22, s22, s23
    s_add_u32 s22, s22, {WS_O}
    s_add_u32 s23, s22, 20480
    s_mul_i32 s24, s21, 160
    s_mov_b32 s28, 0xCCCCCCCD
    s_mov_b32 s38, {2048*2560}
    s_mov_b32 s39, 0x00020000
    v_lshrrev_b32 v4, 5, v1
    v_lshlrev_b32 v4, 4, v4
    v_bfe_u32 v5, v1, 4, 1
    v_lshl_add_u32 v4, v5, 2, v4
    v_bfe_u32 v5, v1, 2, 2
    v_add_u32 v4, v4, v5
    v_mul_u32_u24 v4, 160, v4
    v_and_b32 v5, 3, v1
    v_mul_u32_u24 v5, 40, v5
    v_add_u32 v4, v4, v5
    v_add_u32 v5, {10*5120}, v4
    s_lshl_b32 s40, s20, 7
    s_lshl_b32 s41, s3, 5
    s_add_u32 s40, s40, s41
    s_mul_i32 s40, s40, 2560
    s_mul_i32 s41, s15, 1280
    s_add_u32 s40, s40, s41
    s_add_u32 s40, s40, s24
    s_mul_i32 s42, s3, 5120
    s_add_u32 s42, s42, {P3_TR}
    """)
    for t in range(5):
        a(f"""
        v_add_u32 v20, {64*t}, v1
        v_mul_hi_u32 v21, v20, s28
        v_lshrrev_b32 v21, 3, v21
        v_mul_u32_u24 v22, 10, v21
        v_sub_u32 v22, v20, v22
        v_mul_u32_u24 v21, 2560, v21
        v_lshl_add_u32 v{SA_[t]}, v22, 4, v21
        """)
    a(f"""
    v_and_b32 v3, 15, v1
    v_mul_u32_u24 v3, 160, v3
    v_lshrrev_b32 v20, 4, v1
    v_mul_u32_u24 v20, 40, v20
    v_add3_u32 v3, v3, v20, s42
    v_add_u32 v15, s42, v2
    """)
    for i in range(40):
        a(f"v_mov_b32 v{ACC+i}, 0")
    a("s_waitcnt lgkmcnt(0)")
    handoff(a, "H2", 1, 0, f"""
    s_lshl_b32 s49, s15, 4
    s_lshr_b32 s50, s20, 2
    s_add_u32 s49, s49, s50
    s_lshl_b32 s49, s49, 3
    v_bfe_u32 v10, v1, 3, 2
    v_lshlrev_b32 v10, 5, v10
    v_and_b32 v9, 7, v1
    v_add3_u32 v9, v9, v10, s49
    s_mov_b32 s50, -1
    s_mov_b32 s51, 0
    """, 120)
    a("""
    s_cmp_lt_u32 s3, 4
    s_cbranch_scc1 P3_GO
    """)
    stamp_store(a)
    a("s_endpgm")
    a("P3_GO:")

    def reads(kap, st):
        base, off = (4, kap * 5120) if kap < 10 else (5, (kap - 10) * 5120)
        return [f"ds_read_b64_tr_b16 {vr(WF[st]+4*j+2*i,2)}, v{base} offset:{off+i*1280+8*j}" for j in range(5) for i in range(2)]

    def ofr(kap, tt):
        return OF + (kap % NR) * 8 + tt * 4

    def oloads(kap):
        r = []
        for tt in range(2):
            x = f"buffer_load_dwordx4 {vr(ofr(kap,tt),4)}, v2, s[8:11], s{22+tt} offen offset:{(kap&3)*1024}"
            if kap & 3 == 3:
                x += f"\ns_add_u32 s{22+tt}, s{22+tt}, 4096"
            r.append(x)
        return r
    for x in reads(0, 0):
        a(x)
    a("s_barrier")
    stamp(a)
    dpt(a, 3)
    issued = 0
    for k in range(LA):
        for x in oloads(k):
            a(x)
            issued += 1
    for kap in range(20):
        st = kap & 1
        nxt = kap + 1
        pend = oloads(kap + LA) if kap + LA < 20 else []
        a(f"s_waitcnt vmcnt({issued - 2*(kap+1)}) lgkmcnt(0)")
        for x in pend:
            a(x)
            issued += 1
        r = reads(nxt, 1 - st) if nxt < 20 else []
        for j in range(5):
            for tt in range(2):
                d = vr(ACC + (tt * 5 + j) * 4, 4)
                a(f"{M1632} {d}, {vr(WF[st]+4*j,4)}, {vr(ofr(kap,tt),4)}, {d}")
                for _ in range(2):
                    if r:
                        a(r.pop(0))
    stamp(a)
    a.c("---- epilogue: pack, transpose through LDS so each store covers whole row segments")
    a("s_nop 7")
    for tt in range(2):
        t = 16 + tt * 10
        for j in range(5):
            b = ACC + (tt * 5 + j) * 4
            a(f"v_cvt_pk_bf16_f32 v{t+2*j}, v{b}, v{b+1}")
            a(f"v_cvt_pk_bf16_f32 v{t+2*j+1}, v{b+2}, v{b+3}")
            a(f"ds_write_b64 v3, {vr(t+2*j,2)} offset:{tt*2560+8*j}")
    a("s_waitcnt lgkmcnt(0)")
    for t in range(5):
        a(f"ds_read_b128 {vr(OF+4*t,4)}, v15 offset:{t*1024}")
    for t in range(5):
        a(f"s_waitcnt lgkmcnt({4-t})")
        a(f"buffer_store_dwordx4 {vr(OF+4*t,4)}, v{SA_[t]}, s[36:39], s40 offen {OUTMOD}")
    stamp(a)
    if STAMP:
        a("s_waitcnt vmcnt(0)")
    stamp(a)
    stamp_store(a)
    dpt(a, 4)
    dfin(a)
    a("KEND:")
    a("s_endpgm")


def main(path):
    a = Asm()
    a.l += [
        "; Fused MHA (branch A) + MQA (branch B) attention block in one launch: 256 workgroups (one per CU) x 9 waves.",
        ";   phase 1: Q/K/V projections -> workspace images laid out as MFMA fragments",
        ";   phase 2: softmax(QK^T)V per (head, 512 queries), K/V image resident in LDS, P fed to a sparse MFMA as raw fp32",
        ";   phase 3: output projections, concatenated into d_out",
        "; Hand-offs between phases: write-through stores + one time-stamped flag line per workgroup in the workspace.",
        "; Generated by dev/gen9.py (hand-written generator).",
        f"; @launch grid=(256,1,1) block=(576,1,1) lds={LDS}",
        '.amdgcn_target "amdgcn-amd-amdhsa--gfx950"',
        ".text",
        f".globl {KN}",
        ".p2align 8",
        f".type {KN},@function",
        f"{KN}:",
    ]
    phase1(a)
    phase2(a)
    phase3(a)
    a.l += [
        '.section .rodata,"a"',
        ".p2align 6",
        f".amdhsa_kernel {KN}",
        f"  .amdhsa_next_free_vgpr {NV}",
        "  .amdhsa_next_free_sgpr 102",
        f"  .amdhsa_accum_offset {NV}",
        "  .amdhsa_group_segment_fixed_size 0",
        "  .amdhsa_kernarg_size 88",
        "  .amdhsa_user_sgpr_count 2",
        "  .amdhsa_user_sgpr_kernarg_segment_ptr 1",
        "  .amdhsa_system_sgpr_workgroup_id_x 1",
        ".end_amdhsa_kernel",
    ]
    open(path, "w").write(a.text())
    print(f"{KN} 256 576 {LDS}")


if __name__ == "__main__":
    main(sys.argv[1] if len(sys.argv) > 1 else f"cdna_kernels/{NAME}.s")
```

```python
import math, os, re, struct, sys

NAME = "concat_heads__softmax_full_mha__grouped_kv_mqa__prompt"
KN = NAME + "_kernel"

WS_Q = 0
QUNIT = 81920
WS_KV = 0x500000
KVUNIT = 163840
WS_O = 0xA40000
OBR = 0x280000
WS_FLAG = WS_O + 2 * OBR
WS_ST = 0xF80000
WS_SIZE = 0x1000000
LDS = 163840
NV = 168

env = lambda k, d: os.environ.get(k, d)
STAMP = int(env("STAMP", "0"))
ROT_MASK = int(env("ROT_MASK", "3"))
ROT_MUL = int(env("ROT_MUL", "10"))
ROT_P = int(env("ROT_P", "0"))
ROT_H = int(env("ROT_H", "0"))
POLL_SLEEP = int(env("POLL_SLEEP", "4"))
NPOLL = int(env("NPOLL", "1"))
LA = int(env("K3_LA", "7"))
STMOD = env("STMOD", "sc1")
OUTMOD = env("OUTMOD", "nt")
LOWJ = int(env("LOWJ", "6"))
P3ROT = int(env("P3ROT", "0"))
ONES1 = int(env("ONES1", "1"))
OLDMOD = env("OLDMOD", "")
LOWY = int(env("LOWY", "0"), 0)
SPIN_MAX = 1 << 16
STV = 166


def f32bits(x):
    return struct.unpack("<I", struct.pack("<f", x))[0]


QSCALE = (20.0 ** -0.5) * math.log2(math.e)


class Asm:
    def __init__(self):
        self.l = []

    def __call__(self, s):
        for line in s.strip("\n").split("\n"):
            t = line.strip()
            if t:
                self.l.append(t if t.endswith(":") else "  " + t)

    def c(self, s):
        self.l.append("  ; " + s)

    def text(self):
        return "\n".join(self.l) + "\n"


def vr(b, n):
    return f"v[{b}:{b+n-1}]"


def stamp(a, first=False, lvl=1):
    if STAMP < lvl:
        return
    if first:
        a(f"v_mov_b32 v{STV}, 0")
        a("s_mov_b32 s91, 0")
    a(f"""
    s_memtime s[96:97]
    s_memrealtime s[98:99]
    s_waitcnt lgkmcnt(0)
    s_mov_b32 s90, m0
    s_mov_b32 m0, s91
    s_nop 0
    v_writelane_b32 v{STV}, s96, m0
    s_add_u32 m0, s91, 1
    s_nop 0
    v_writelane_b32 v{STV}, s98, m0
    s_add_u32 s91, s91, 2
    s_mov_b32 m0, s90
    """)


def stamp_store(a):
    if not STAMP:
        return
    a(f"""
    s_mov_b32 exec_lo, -1
    s_mov_b32 exec_hi, 0
    s_lshl_b32 s92, s2, 3
    s_add_u32 s92, s92, s3
    s_lshl_b32 s92, s92, 7
    s_add_u32 s92, s92, {WS_ST}
    v_mbcnt_lo_u32_b32 v{STV+1}, -1, 0
    v_lshlrev_b32 v{STV+1}, 2, v{STV+1}
    buffer_store_dword v{STV}, v{STV+1}, s[8:11], s92 offen
    """)


DIAG = env("DIAG", "")
def dpt(a, k):
    if DIAG:
        a(f"s_memrealtime s[{82+2*k}:{83+2*k}]")
        a("s_waitcnt lgkmcnt(0)")
def dfin(a):
    if not DIAG:
        return
    if DIAG == "xcc":
        a("""
        s_getreg_b32 s92, hwreg(HW_REG_XCC_ID)
        s_and_b32 s92, s92, 7
        s_and_b32 s93, s2, 7
        s_cmp_eq_u32 s92, s93
        s_cselect_b32 s92, 0, 3000
        """)
    else:
        A, B = DIAG.split("-")
        ra = "s6" if A == "s" else f"s{82+2*int(A)}"
        a(f"""
        s_or_b32 s92, s2, s3
        s_cmp_lg_u32 s92, 0
        s_cbranch_scc1 KEND
        s_sub_u32 s92, s{82+2*int(B)}, {ra}
        s_lshl_b32 s92, s92, 2
        """)
    a("""
    s_memrealtime s[94:95]
    s_waitcnt lgkmcnt(0)
    s_add_u32 s92, s92, s94
    DSPIN:
    s_memrealtime s[94:95]
    s_waitcnt lgkmcnt(0)
    s_sub_u32 s93, s94, s92
    s_cmp_lt_i32 s93, 0
    s_cbranch_scc1 DSPIN
    """)

M16 = "v_mfma_f32_32x32x16_bf16"
M8 = "v_mfma_f32_32x32x8_bf16"
SM = "v_smfmac_f32_32x32x32_bf16"
M1632 = "v_mfma_f32_16x16x32_bf16"

WOFF = 16384
EOFF = WOFF + 4 * 5184
SLOT = EOFF + 2560 + 64
NSLOT = 4
assert NSLOT * SLOT <= LDS


def phase1(a):
    a(f"""
    s_cmp_ge_u32 s2, 256
    s_cbranch_scc1 KEND
    """)
    stamp(a, True)
    a(f"""
    s_load_dwordx16 s[16:31], s[0:1], 0
    s_load_dwordx2 s[8:9], s[0:1], 80
    s_memrealtime s[6:7]
    v_and_b32 v1, 63, v0
    v_lshrrev_b32 v2, 6, v0
    s_and_b32 s50, s2, 7
    v_readfirstlane_b32 s3, v2
    s_lshr_b32 s51, s2, 3
    s_and_b32 s52, s51, 7
    s_lshr_b32 s53, s51, 3
    s_and_b32 s54, s50, 1
    s_lshr_b32 s55, s50, 1
    s_lshl_b32 s56, s54, 3
    s_add_u32 s56, s56, s52
    s_mov_b32 s10, {WS_SIZE}
    s_mov_b32 s11, 0x00020000
    """)
    a.c("s3 wave, s[8:11] ws SRD, s[6:7] start time; s52 mt, s53 nt, s54 mhalf, s55 part(0 Q,1 K,2 V,3 B), s56 m tile 0..15")
    a(f"""
    s_cmp_eq_u32 s55, 3
    s_cselect_b32 s57, 1, 0
    s_mov_b32 s58, 3840
    s_cselect_b32 s58, 1280, s58
    s_cselect_b32 s59, 0, s55
    s_mul_i32 s59, s59, 1280
    s_mul_i32 s60, s53, 320
    s_add_u32 s59, s59, s60
    s_cmp_ge_u32 s3, 4
    s_cbranch_scc1 P1_LOADER
    """)
    a.c("s57 isB, s58 W row stride, s59 W col byte base")
    XA = [4, 5, 6, 7]
    WA, EA = 8, 9
    T = [10, 11, 12, 13, 14]
    XF = [16, 32]
    WF = 48
    EF = 68
    ACC = 72
    EACC = 152
    a.c("---- compute wave setup: s61 wm, s62 wn, s63 flip (B WGs with nt odd)")
    a(f"""
    s_and_b32 s61, s3, 1
    s_lshr_b32 s62, s3, 1
    s_and_b32 s63, s53, s57
    v_and_b32 v2, 15, v1
    v_lshrrev_b32 v3, 4, v1
    s_cmp_eq_u32 s55, 2
    s_cselect_b64 s[64:65], -1, 0
    v_bfe_u32 v22, v2, 1, 3
    v_bfe_u32 v23, v2, 1, 1
    v_lshrrev_b32 v24, 2, v2
    v_lshl_or_b32 v23, v24, 1, v23
    v_cndmask_b32 v22, v22, v23, s[64:65]
    v_and_b32 v23, 3, v2
    v_lshl_add_u32 v23, v24, 3, v23
    v_cndmask_b32 v23, v2, v23, s[64:65]
    s_lshl_b32 s66, s61, 13
    s_lshl_b32 s67, s63, 12
    s_add_u32 s68, s66, s67
    s_xor_b32 s67, s67, 4096
    s_add_u32 s69, s66, s67
    v_lshlrev_b32 v23, 7, v23
    """)
    for ks in range(2):
        a(f"""
        v_add_u32 v24, {4*ks}, v3
        v_xor_b32 v24, v24, v22
        v_lshl_add_u32 v24, v24, 4, v23
        v_add_u32 v{XA[2*ks]}, s68, v24
        v_add_u32 v{XA[2*ks+1]}, s69, v24
        """)
    a(f"""
    v_bfe_u32 v22, v1, 2, 2
    v_lshl_add_u32 v22, v3, 3, v22
    v_and_b32 v24, 3, v1
    v_mul_u32_u24 v{WA}, 320, v22
    v_and_b32 v25, 1, v3
    v_lshl_add_u32 v{WA}, v25, 5, v{WA}
    v_lshrrev_b32 v25, 1, v3
    v_lshl_add_u32 v{WA}, v25, 6, v{WA}
    v_mul_u32_u24 v25, 40, v24
    v_lshlrev_b32 v26, 3, v24
    v_cndmask_b32 v25, v25, v26, s[64:65]
    s_mul_i32 s66, s62, 160
    s_add_u32 s66, s66, {WOFF}
    v_add3_u32 v{WA}, v{WA}, v25, s66
    v_mul_u32_u24 v{EA}, 40, v22
    s_lshl_b32 s66, s62, 5
    s_add_u32 s66, s66, {EOFF}
    v_add3_u32 v{EA}, v{EA}, v26, s66
    """)
    for i in range(88):
        a(f"v_mov_b32 v{ACC+i}, 0")
    a.c("store geometry: s70 unit size, s71 tile size, s72/s73 soffset for slot pair 0/1, s74 extra soffset")
    a(f"""
    s_sub_u32 s66, s55, 1
    s_cmp_lt_u32 s66, 2
    s_mov_b32 s70, {QUNIT}
    s_cselect_b32 s70, {KVUNIT}, s70
    s_mov_b32 s71, 1280
    s_cselect_b32 s71, 2560, s71
    s_cselect_b32 s72, {WS_KV}, {WS_Q}
    s_lshl_b32 s66, s53, 3
    s_lshl_b32 s67, s57, 5
    s_add_u32 s66, s66, s67
    s_lshl_b32 s67, s62, 2
    s_add_u32 s66, s66, s67
    s_mul_i32 s66, s66, s70
    s_add_u32 s72, s72, s66
    s_lshl_b32 s66, s56, 2
    s_lshl_b32 s67, s61, 1
    s_add_u32 s66, s66, s67
    s_add_u32 s67, s66, s63
    s_xor_b32 s76, s63, 1
    s_add_u32 s66, s66, s76
    s_mul_i32 s76, s66, s71
    s_add_u32 s73, s72, s76
    s_mul_i32 s76, s67, s71
    s_add_u32 s72, s72, s76
    s_mul_i32 s74, s67, 2560
    s_add_u32 s74, s74, {WS_KV + 32*KVUNIT}
    v_mul_lo_u32 v22, v3, s70
    v_lshl_add_u32 v{T[0]}, v2, 4, v22
    v_lshl_add_u32 v{T[1]}, v2, 3, v22
    v_add_u32 v{T[1]}, 1024, v{T[1]}
    v_mov_b32 v{T[2]}, 0
    v_mov_b32 v{T[3]}, 0
    v_mov_b32 v{T[4]}, 0
    s_cmp_eq_u32 s55, 2
    s_cbranch_scc0 P1_SETUP_DONE
    s_mov_b32 s76, 0xCCCCCCCD
    v_lshrrev_b32 v25, 1, v3
    v_mul_u32_u24 v25, 640, v25
    v_and_b32 v26, 1, v3
    v_mul_u32_u24 v26, 320, v26
    v_add3_u32 v25, v25, v26, s71
    v_subrev_u32 v25, 1280, v25
    """)
    for n5 in range(5):
        a(f"""
        v_add_u32 v22, {16*n5}, v2
        v_mul_hi_u32 v23, v22, s76
        v_lshrrev_b32 v23, 4, v23
        v_mul_u32_u24 v24, 20, v23
        v_sub_u32 v24, v22, v24
        v_mul_lo_u32 v23, v23, s70
        v_lshl_add_u32 v23, v24, 4, v23
        v_add_u32 v{T[n5]}, v23, v25
        """)
    a("P1_SETUP_DONE:")
    a.c("s76: variant 0 QK, 1 V, 2 QK+Kextra, 3 QK+Vextra; s78 stage counter")
    a(f"""
    s_mov_b32 s76, 0
    s_cmp_eq_u32 s55, 2
    s_cselect_b32 s76, 1, s76
    s_lshr_b32 s66, s53, 1
    s_add_u32 s66, s66, 2
    s_cmp_eq_u32 s57, 1
    s_cselect_b32 s76, s66, s76
    s_mov_b32 s78, 0
    s_mov_b32 s79, {SLOT}
    s_waitcnt lgkmcnt(0)
    s_barrier
    """)
    stamp(a)

    def rgroup(g, ks, xs, orient):
        if g < 5:
            r = [f"ds_read_b64_tr_b16 {vr(WF+4*g+2*i,2)}, v{WA} offset:{ks*(320*32+128)+i*1280+g*(32 if orient else 8)}" for i in range(2)]
        else:
            r = [f"ds_read_b64_tr_b16 {vr(EF+2*i,2)}, v{EA} offset:{(32*ks+4*i)*40}" for i in range(2)]
        if g == 0:
            r += [f"ds_read_b128 {vr(XF[xs]+4*s_,4)}, v{XA[2*ks+(s_>>1)]} offset:{(s_&1)*(512 if orient else 2048)}" for s_ in range(4)]
        return r

    def mgroup(g, xs, orient, extra):
        m = []
        if g < 5:
            for s_ in range(4):
                w, x, d = vr(WF+4*g, 4), vr(XF[xs]+4*s_, 4), vr(ACC+(s_*5+g)*4, 4)
                m.append(f"{M1632} {d}, {w}, {x}, {d}" if orient == 0 else f"{M1632} {d}, {x}, {w}, {d}")
        else:
            for s_ in range(2):
                w, x, d = vr(EF, 4), vr(XF[xs]+4*s_, 4), vr(EACC+4*s_, 4)
                m.append(f"{M1632} {d}, {w}, {x}, {d}" if extra == 1 else f"{M1632} {d}, {x}, {w}, {d}")
        return m

    variants = [(0, 0), (1, 0), (0, 1), (0, 2)]
    a(f"""
    s_cmp_eq_u32 s76, 1
    s_cbranch_scc1 P1_V1
    s_cmp_eq_u32 s76, 2
    s_cbranch_scc1 P1_V2
    s_cmp_eq_u32 s76, 3
    s_cbranch_scc1 P1_V3
    """)
    for vi, (orient, extra) in enumerate(variants):
        G = 6 if extra else 5
        a(f"P1_V{vi}:")
        for g in range(G):
            for x in rgroup(g, 0, 0, orient):
                a(x)
        a(f"P1_L{vi}:")
        for g in range(G):
            a(f"s_waitcnt lgkmcnt({2*(G-1) if g == 0 else 2*G+2})")
            for m in mgroup(g, 0, orient, extra):
                a(m)
            for x in rgroup(g, 1, 1, orient):
                a(x)
        for g in range(G):
            if g == 0:
                a(f"s_waitcnt lgkmcnt({2*(G-1)})")
            for m in mgroup(g, 1, orient, extra):
                a(m)
            if g == 0:
                a(f"""
                s_and_b32 s77, s78, 3
                s_cmp_eq_u32 s77, 3
                s_cselect_b32 s77, {(-3*SLOT) & 0xffffffff}, s79
                s_waitcnt lgkmcnt(0)
                s_barrier
                """)
                for k in range(4):
                    a(f"v_add_u32 v{XA[k]}, s77, v{XA[k]}")
                a(f"v_add_u32 v{WA}, s77, v{WA}")
                if extra:
                    a(f"v_add_u32 v{EA}, s77, v{EA}")
            for x in rgroup(g, 0, 0, orient):
                a(x)
        stamp(a, lvl=2)
        a(f"""
        s_add_u32 s78, s78, 1
        s_cmp_lt_u32 s78, 10
        s_cbranch_scc1 P1_L{vi}
        """)
        if vi == 1:
            a("s_branch P1_EPI_V")
        elif vi < 3:
            a("s_branch P1_EPI_QK")
    a("P1_EPI_QK:")
    stamp(a)
    a(f"""
    s_nop 7
    s_waitcnt lgkmcnt(0)
    s_cmp_eq_u32 s55, 1
    s_cbranch_scc1 P1_NOSCALE
    s_mov_b32 s80, {hex(f32bits(QSCALE))}
    s_mov_b32 s81, {hex(f32bits(QSCALE))}
    """)
    for i in range(0, 80, 2):
        a(f"v_pk_mul_f32 {vr(ACC+i,2)}, s[80:81], {vr(ACC+i,2)}")
    a("P1_NOSCALE:")
    for s_ in range(4):
        t = 16 + 12 * s_
        for n5 in range(5):
            b = ACC + (s_ * 5 + n5) * 4
            a(f"v_cvt_pk_bf16_f32 v{t+2*n5}, v{b}, v{b+1}")
            a(f"v_cvt_pk_bf16_f32 v{t+2*n5+1}, v{b+2}, v{b+3}")
        so = f"s{72+(s_>>1)}"
        a(f"buffer_store_dwordx4 {vr(t,4)}, v{T[0]}, s[8:11], {so} offen offset:{(s_&1)*256} {STMOD}")
        a(f"buffer_store_dwordx4 {vr(t+4,4)}, v{T[0]}, s[8:11], {so} offen offset:{(s_&1)*256+512} {STMOD}")
        a(f"buffer_store_dwordx2 {vr(t+8,2)}, v{T[1]}, s[8:11], {so} offen offset:{(s_&1)*128} {STMOD}")
    TX = 70
    a(f"""
    s_cmp_lt_u32 s76, 2
    s_cbranch_scc1 P1_DONE
    v_cvt_pk_bf16_f32 v64, v{EACC}, v{EACC+1}
    v_cvt_pk_bf16_f32 v65, v{EACC+2}, v{EACC+3}
    v_cvt_pk_bf16_f32 v66, v{EACC+4}, v{EACC+5}
    v_cvt_pk_bf16_f32 v67, v{EACC+6}, v{EACC+7}
    v_lshrrev_b32 v68, 1, v3
    v_and_b32 v69, 1, v3
    s_cmp_eq_u32 s76, 3
    s_cbranch_scc1 P1_EPI_VX
    s_cmp_eq_u32 s62, 1
    s_cbranch_scc1 P1_EPI_KX1
    v_lshlrev_b32 v{TX}, 9, v68
    v_lshl_add_u32 v{TX}, v69, 3, v{TX}
    v_lshl_add_u32 v{TX}, v2, 4, v{TX}
    buffer_store_dwordx2 v[64:65], v{TX}, s[8:11], s74 offen {STMOD}
    buffer_store_dwordx2 v[66:67], v{TX}, s[8:11], s74 offen offset:256 {STMOD}
    s_branch P1_DONE
    P1_EPI_KX1:
    v_lshlrev_b32 v{TX}, 3, v2
    s_mov_b32 exec_lo, 0xffff
    s_mov_b32 exec_hi, 0
    buffer_store_dwordx2 v[64:65], v{TX}, s[8:11], s74 offen offset:1024 {STMOD}
    buffer_store_dwordx2 v[66:67], v{TX}, s[8:11], s74 offen offset:1152 {STMOD}
    s_mov_b64 exec, -1
    s_branch P1_DONE
    P1_EPI_VX:
    v_mul_u32_u24 v{TX}, 320, v68
    v_lshl_add_u32 v{TX}, v69, 3, v{TX}
    v_lshl_add_u32 v{TX}, v2, 4, v{TX}
    s_lshl_b32 s66, s62, 8
    s_add_u32 s74, s74, s66
    s_cmp_eq_u32 s62, 1
    s_mov_b32 s66, 0x000f000f
    s_cselect_b32 s66, s66, -1
    s_mov_b32 exec_lo, s66
    s_mov_b32 exec_hi, s66
    buffer_store_dwordx2 v[64:65], v{TX}, s[8:11], s74 offen offset:1280 {STMOD}
    buffer_store_dwordx2 v[66:67], v{TX}, s[8:11], s74 offen offset:1920 {STMOD}
    s_mov_b64 exec, -1
    s_branch P1_DONE
    P1_EPI_V:
    """)
    stamp(a)
    a("s_nop 7")
    a("s_waitcnt lgkmcnt(0)")
    for pr in range(2):
        for n5 in range(5):
            t = 16 + 4 * (pr * 5 + n5)
            for h in range(2):
                b = ACC + ((2 * pr + h) * 5 + n5) * 4
                a(f"v_cvt_pk_bf16_f32 v{t+2*h}, v{b}, v{b+1}")
                a(f"v_cvt_pk_bf16_f32 v{t+2*h+1}, v{b+2}, v{b+3}")
            a(f"buffer_store_dwordx4 {vr(t,4)}, v{T[n5]}, s[8:11], s{72+pr} offen {STMOD}")
    a("s_branch P1_DONE")

    XO, WO, EO = 4, 5, 6
    NPS = 11
    a(f"""
    P1_LOADER:
    s_cmp_eq_u32 s3, 8
    s_cbranch_scc1 P1_IDLE
    s_sub_u32 s12, s3, 4
    s_lshl_b32 s61, s56, 7
    s_lshl_b32 s62, s12, 3
    s_add_u32 s61, s61, s62
    v_lshrrev_b32 v2, 3, v1
    v_add_u32 v2, s61, v2
    v_mul_u32_u24 v2, 1280, v2
    s_and_b32 s62, s12, 1
    s_lshl_b32 s62, s62, 2
    v_lshrrev_b32 v3, 4, v1
    v_add_u32 v3, s62, v3
    s_lshl_b32 s62, s12, 1
    v_bfe_u32 v11, v1, 4, 1
    v_or_b32 v11, s62, v11
    s_cmp_eq_u32 s55, 2
    s_cselect_b64 vcc, -1, 0
    s_lshl_b32 s65, s12, 10
    v_cndmask_b32 v3, v3, v11, vcc
    v_and_b32 v11, 7, v1
    v_xor_b32 v3, v3, v11
    v_lshl_add_u32 v{XO}, v3, 4, v2
    s_mov_b32 s72, 0xCCCCCCCD
    s_lshl_b32 s63, s12, 4
    v_mul_hi_u32 v3, v1, s72
    v_lshrrev_b32 v3, 4, v3
    v_mul_u32_u24 v11, 20, v3
    v_sub_u32 v11, v1, v11
    v_add_u32 v3, s63, v3
    v_mul_lo_u32 v3, v3, s58
    v_lshl_add_u32 v3, v11, 4, v3
    v_add_u32 v{WO}, s59, v3
    s_mul_i32 s64, s12, 640
    v_lshlrev_b32 v{EO}, 4, v1
    v_add_u32 v{EO}, s64, v{EO}
    s_mul_i32 s66, s12, 5184
    s_add_u32 s66, s66, {WOFF}
    s_add_u32 s67, s64, {EOFF}
    s_mul_i32 s68, s58, 50
    s_mul_i32 s69, s58, 3
    s_lshl_b32 s79, s58, 1
    s_add_u32 s80, s52, s53
    s_and_b32 s80, s80, {ROT_MASK}
    s_mul_i32 s80, s80, {ROT_MUL}
    s_lshr_b32 s80, s80, 2
    s_mul_i32 s81, s55, {ROT_P}
    s_add_u32 s80, s80, s81
    s_mul_i32 s81, s54, {ROT_H}
    s_add_u32 s80, s80, s81
    s_cmp_ge_u32 s80, 10
    s_cselect_b32 s81, 10, 0
    s_sub_u32 s80, s80, s81
    s_lshl_b32 s70, s80, 7
    s_lshl_b32 s71, s58, 6
    s_mul_i32 s71, s71, s80
    s_mul_i32 s73, s80, 2560
    s_mov_b32 s74, 0
    s_mov_b32 s34, {2048*1280}
    s_mov_b32 s35, 0x00020000
    s_mov_b32 s39, 0x00020000
    s_mov_b32 s43, 0x00020000
    s_mov_b32 s77, 0
    s_cmp_eq_u32 s57, 1
    s_mov_b32 s38, {640*3840}
    s_cselect_b32 s38, {640*1280}, s38
    s_cselect_b32 s42, {640*40}, 0
    s_waitcnt lgkmcnt(0)
    s_cselect_b32 s32, s22, s16
    s_cselect_b32 s33, s23, s17
    s_cselect_b32 s36, s24, s18
    s_cselect_b32 s37, s25, s19
    s_cmp_lt_u32 s53, 2
    s_cselect_b32 s40, s26, s28
    s_cselect_b32 s41, s27, s29
    """)
    a.c("k order is rotated per WG (s80) so that a cold start spreads over the whole K range")
    a.c("s65/s66/s67 LDS rel bases; s70 x soff, s71 W soff, s73 E soff, s74 slot base")
    a("P1_LP:")
    a("s_add_u32 s75, s74, s65")
    for t in range(4):
        a(f"""
        s_add_u32 m0, s75, {4096*t}
        s_add_u32 s76, s70, {40960*t}
        buffer_load_dwordx4 v{XO}, s[32:35], s76 offen lds
        """)
    a("s_add_u32 s75, s74, s66")
    for t, r0 in enumerate([0, 3, 6, 8, 11, 14]):
        a(f"s_add_u32 m0, s75, {320*r0 + (32 if r0 >= 8 else 0)}")
        a(f"s_mov_b32 exec_hi, {'0xff' if t % 3 == 2 else '0x0fffffff'}")
        a(f"buffer_load_dwordx4 v{WO}, s[36:39], s71 offen lds")
        a(f"s_add_u32 s71, s71, {'s69' if t % 3 < 2 else ('s79' if t == 2 else 's68')}")
    a(f"""
    s_add_u32 m0, s74, s67
    s_add_u32 s70, s70, 128
    buffer_load_dwordx4 v{EO}, s[40:43], s73 offen lds
    s_mov_b32 exec_hi, -1
    s_add_u32 s73, s73, 2560
    s_add_u32 s74, s74, {SLOT}
    s_cmp_eq_u32 s74, {NSLOT*SLOT}
    s_cselect_b32 s74, 0, s74
    s_cmp_eq_u32 s70, 1280
    s_cselect_b32 s70, 0, s70
    s_cselect_b32 s71, 0, s71
    s_cselect_b32 s73, 0, s73
    s_add_u32 s77, s77, 1
    s_cmp_lt_u32 s77, 2
    s_cbranch_scc1 P1_LP
    s_waitcnt vmcnt({NPS})
    s_barrier
    s_cmp_lt_u32 s77, 10
    s_cbranch_scc1 P1_LP
    s_waitcnt vmcnt(0)
    """)
    stamp(a)
    a(f"""
    s_barrier
    s_barrier
    s_branch P1_DONE
    P1_IDLE:
    s_mov_b32 s77, 0
    s_waitcnt lgkmcnt(0)
    P1_IDLE1:
    s_barrier
    s_add_u32 s77, s77, 1
    s_cmp_lt_u32 s77, 11
    s_cbranch_scc1 P1_IDLE1
    P1_DONE:
    """)
    stamp(a)
    dpt(a, 0)


def handoff(a, tag, ph, delta, idcode, HT):
    a(f"""
    s_cmp_lg_u32 s3, 0
    s_cbranch_scc1 {tag}_PRE
    s_memrealtime s[44:45]
    """)
    a(idcode)
    a(f"""
    v_lshlrev_b32 v9, 7, v9
    v_lshlrev_b32 v7, 4, v1
    s_lshl_b32 s48, s2, 7
    s_add_u32 s48, s48, {WS_FLAG + ph*0x8000}
    s_mov_b32 s49, {WS_FLAG + ph*0x8000}
    s_sub_u32 s46, s6, {delta}
    s_subb_u32 s47, s7, 0
    s_waitcnt lgkmcnt(0)
    v_mov_b32 v{HT}, s44
    v_mov_b32 v{HT+1}, s45
    v_mov_b32 v{HT+2}, s44
    v_mov_b32 v{HT+3}, s45
    v_mov_b32 v11, s47
    {tag}_PRE:
    s_waitcnt vmcnt(0)
    """)
    stamp(a)
    a(f"""
    s_barrier
    s_cmp_lg_u32 s3, 0
    s_cbranch_scc1 {tag}_WAIT
    s_mov_b64 exec, 0xff
    buffer_store_dwordx4 {vr(HT,4)}, v7, s[8:11], s48 offen sc1
    s_mov_b64 exec, s[50:51]
    s_mov_b32 s48, 0
    """)
    P = HT + 4
    for k in range(NPOLL - 1):
        a(f"buffer_load_dwordx2 {vr(P+2*k,2)}, v9, s[8:11], s49 offen sc1")
        a(f"s_sleep {POLL_SLEEP}")
    a(f"{tag}_POLL:")
    for k in range(NPOLL):
        n = (k + NPOLL - 1) % NPOLL
        a(f"""
        buffer_load_dwordx2 {vr(P+2*n,2)}, v9, s[8:11], s49 offen sc1
        s_waitcnt vmcnt({NPOLL-1})
        v_subrev_co_u32 v10, vcc, s46, v{P+2*k}
        s_nop 1
        v_subb_co_u32 v7, vcc, v{P+2*k+1}, v11, vcc
        v_lshrrev_b32 v10, 24, v10
        v_or_b32 v10, v10, v7
        v_cmp_eq_u32 vcc, 0, v10
        s_nop 3
        s_cmp_eq_u64 vcc, s[50:51]
        s_cbranch_scc1 {tag}_OUT
        s_sleep {POLL_SLEEP}
        """)
    a(f"""
    s_add_u32 s48, s48, 1
    s_cmp_lt_u32 s48, {SPIN_MAX}
    s_cbranch_scc1 {tag}_POLL
    {tag}_OUT:
    s_mov_b64 exec, -1
    s_waitcnt vmcnt(0)
    {tag}_WAIT:
    """)


def phase2(a):
    VL, L16, KA, KH, VA, IDX = 1, 2, 3, 4, 5, 6
    QA_LO, QA_HI, QB_HI, QB_LO = 12, 16, 18, 20
    KLO = [24, 32]
    KHI = [28, 30]
    VB = [36, 44]
    SA, SB, OA, OB = 52, 68, 84, 100
    MA, MB = 116, 117
    a(f"""
    s_and_b32 s13, s2, 7
    s_lshr_b32 s14, s2, 3
    s_lshr_b32 s15, s14, 4
    s_bfe_u32 s16, s14, 0x20002
    s_lshl_b32 s17, s13, 2
    s_add_u32 s17, s17, s16
    s_and_b32 s18, s14, 3
    s_lshl_b32 s19, s15, 5
    s_add_u32 s19, s19, s17
    s_cmp_eq_u32 s15, 0
    s_cselect_b32 s21, s17, 32
    """)
    a.c("s15 br, s17 head, s18 qb, s19 unit, s21 kv unit")
    a(f"""
    s_mul_i32 s25, s19, {QUNIT}
    s_mul_i32 s26, s18, 20480
    s_add_u32 s25, s25, s26
    s_mul_i32 s26, s3, 2560
    s_add_u32 s25, s25, s26
    s_mul_i32 s27, s21, {KVUNIT}
    s_lshl_b32 s28, s3, 10
    s_add_u32 s27, s27, s28
    s_add_u32 s27, s27, {WS_KV}
    v_lshlrev_b32 v{L16}, 4, v{VL}
    s_cmp_eq_u32 s3, 8
    s_cbranch_scc1 P2_LOADER
    v_and_b32 v7, 31, v{VL}
    v_lshrrev_b32 v8, 5, v{VL}
    v_lshlrev_b32 v{KH}, 3, v7
    v_lshl_add_u32 v{KH}, v8, 2, v{KH}
    v_add_u32 v{KH}, 1024, v{KH}
    v_mul_u32_u24 v{VA}, 20, v8
    v_add_u32 v{VA}, v{VA}, v7
    v_lshlrev_b32 v{VA}, 4, v{VA}
    v_add_u32 v{VA}, 1280, v{VA}
    v_mov_b32 v{KA}, v{L16}
    v_mov_b32 v{IDX}, 0xdddddddd
    v_mov_b32 v{QA_HI+1}, 0
    v_mov_b32 v{QB_HI+1}, 0
    v_mov_b32 v{KHI[0]+1}, 0
    v_mov_b32 v{KHI[1]+1}, 0
    v_and_b32 v9, {31 if ONES1 else 27}, v7
    v_cmp_eq_u32 vcc, 24, v9
    v_mov_b32 v9, 0
    v_mov_b32 v10, 0x3f803f80
    s_mov_b32 s22, 0x000fffff
    s_mov_b32 s23, 0x000fffff
    s_cmp_lt_u32 s3, 4
    s_cselect_b32 s24, 0x92, {LOWY}
    v_cndmask_b32 v9, v9, v10, vcc
    """)
    for i in range(16):
        a(f"v_mov_b32 v{VB[0]+i}, v9")
    for i in range(16):
        a(f"v_mov_b32 v{SB+i}, 0")
    for i in range(32):
        a(f"v_mov_b32 v{OA+i}, 0")
    handoff(a, "H1", 0, 1000, f"""
    s_lshr_b32 s49, s17, 3
    s_lshl_b32 s49, s49, 6
    v_add_u32 v9, s49, v1
    v_and_b32 v10, 7, v1
    v_cmp_gt_u32 s[50:51], 6, v10
    v_lshrrev_b32 v10, 1, v1
    v_lshlrev_b32 v10, 3, v10
    v_and_b32 v11, 1, v1
    v_add3_u32 v10, v10, v11, 6
    s_cmp_eq_u32 s15, 0
    s_cselect_b64 vcc, -1, 0
    s_cselect_b64 s[50:51], s[50:51], -1
    v_cndmask_b32 v9, v10, v9, vcc
    """, 120)
    a(f"""
    s_mov_b32 m0, s28
    s_barrier
    """)
    stamp(a)
    dpt(a, 1)
    a(f"""
    buffer_load_dwordx4 v{L16}, s[8:11], s27 offen lds
    buffer_load_dwordx4 {vr(QA_LO,4)}, v{L16}, s[8:11], s25 offen
    buffer_load_dword v{QA_HI}, v{KH}, s[8:11], s25 offen
    buffer_load_dwordx4 {vr(QB_LO,4)}, v{L16}, s[8:11], s25 offen offset:1280
    buffer_load_dword v{QB_HI}, v{KH}, s[8:11], s25 offen offset:1280
    s_setprio 2
    s_mov_b64 vcc, -1
    s_mov_b32 s20, 0
    """)
    for r in range(1, 4):
        a(f"s_add_u32 m0, m0, 8192")
        a(f"s_add_u32 s27, s27, 8192")
        a(f"buffer_load_dwordx4 v{L16}, s[8:11], s27 offen lds")
    a(f"""
    s_waitcnt vmcnt(3)
    s_barrier
    """)
    stamp(a)
    a(f"""
    ds_read_b128 {vr(KLO[0],4)}, v{KA}
    ds_read_b32 v{KHI[0]}, v{KH}
    ds_read_b128 {vr(KLO[1],4)}, v{KA} offset:2560
    ds_read_b32 v{KHI[1]}, v{KH} offset:2560
    s_mov_b64 exec, s[22:23]
    ds_read_b128 {vr(VB[0],4)}, v{VA}
    ds_read_b128 {vr(VB[0]+4,4)}, v{VA} offset:640
    s_mov_b64 exec, -1
    s_waitcnt lgkmcnt(4)
    {M16} {vr(SA,16)}, {vr(KLO[0],4)}, {vr(QA_LO,4)}, 0
    {M8} {vr(SA,16)}, {vr(KHI[0],2)}, {vr(QA_HI,2)}, {vr(SA,16)}
    s_nop 15
    """)

    def ex(base, lo, hi):
        for i in range(lo, hi):
            a(f"v_exp_f32 v{base+i}, v{base+i}")

    a(".p2align 6")
    a("P2_LOOP:")
    for j in range(8):
        p = j & 1
        ex(SA, 0, 2)
        a(f"{SM} {vr(OB,16)}, {vr(VB[1-p]+4,4)}, {vr(SB+8,8)}, v{IDX}")
        ex(SA, 2, 4)
        a(f"{M16} {vr(SB,16)}, {vr(KLO[p],4)}, {vr(QB_LO,4)}, 0")
        ex(SA, 4, 8)
        a(f"{M8} {vr(SB,16)}, {vr(KHI[p],2)}, {vr(QB_HI,2)}, {vr(SB,16)}")
        a("s_waitcnt lgkmcnt(0)")
        if j in (1, 4):
            a(f"s_cbranch_vccnz P2_SY{j}")
            a(f"P2_SY{j}_RET:")
        a(f"ds_read_b128 {vr(KLO[p],4)}, v{KA} offset:{(j+2)*2560}")
        a(f"ds_read_b32 v{KHI[p]}, v{KH} offset:{(j+2)*2560}")
        if j == LOWJ:
            a("s_bitcmp1_b32 s24, s20")
            a(f"s_cbranch_scc1 P2_LOWP")
            a(f"P2_LOWP_RET:")
        ex(SA, 8, 12)
        a(f"{SM} {vr(OA,16)}, {vr(VB[p],4)}, {vr(SA,8)}, v{IDX}")
        ex(SA, 12, 16)
        ex(SB, 0, 2)
        a(f"{SM} {vr(OA,16)}, {vr(VB[p]+4,4)}, {vr(SA+8,8)}, v{IDX}")
        ex(SB, 2, 4)
        a(f"{M16} {vr(SA,16)}, {vr(KLO[1-p],4)}, {vr(QA_LO,4)}, 0")
        ex(SB, 4, 8)
        a(f"{M8} {vr(SA,16)}, {vr(KHI[1-p],2)}, {vr(QA_HI,2)}, {vr(SA,16)}")
        a("s_mov_b64 exec, s[22:23]")
        a(f"ds_read_b128 {vr(VB[1-p],4)}, v{VA} offset:{(j+1)*2560}")
        a(f"ds_read_b128 {vr(VB[1-p]+4,4)}, v{VA} offset:{(j+1)*2560+640}")
        a("s_mov_b64 exec, -1")
        ex(SB, 8, 12)
        a(f"{SM} {vr(OB,16)}, {vr(VB[p],4)}, {vr(SB,8)}, v{IDX}")
        ex(SB, 12, 16)
    stamp(a, lvl=2)
    a.c("chunk boundary: barriers before chunks 2 and 5; priority falls as a wave advances so the SIMD's two waves stay level")
    a(f"""
    v_add_u32 v{KA}, 20480, v{KA}
    v_add_u32 v{KH}, 20480, v{KH}
    v_add_u32 v{VA}, 20480, v{VA}
    s_add_u32 s20, s20, 1
    s_mov_b64 vcc, 0
    s_bitcmp1_b32 0x24, s20
    s_cbranch_scc0 P2_NOBAR
    s_barrier
    s_setprio 3
    s_branch P2_LOOP
    P2_LOWP:
    s_setprio 0
    s_branch P2_LOWP_RET
    P2_SY1:
    s_waitcnt vmcnt(2)
    s_barrier
    s_branch P2_SY1_RET
    P2_SY4:
    s_waitcnt vmcnt(0)
    s_barrier
    s_branch P2_SY4_RET
    P2_LOADER:
    """)
    a.c("wave 8: rounds 4..19 of the K/V image, then (once chunks 0-4 are dead) the phase-3 wo slice")
    a(f"""
    s_load_dwordx2 s[52:53], s[0:1], 16
    s_load_dwordx2 s[54:55], s[0:1], 56
    s_mov_b32 s60, 0xCCCCCCCD
    v_mul_hi_u32 v9, v1, s60
    v_lshrrev_b32 v9, 3, v9
    v_mul_u32_u24 v10, 10, v9
    v_sub_u32 v10, v1, v10
    v_mul_u32_u24 v9, 1280, v9
    v_lshl_add_u32 v8, v10, 4, v9
    s_lshr_b32 s56, s14, 2
    s_mul_i32 s56, s56, 160
    s_mov_b32 s34, {640*1280}
    s_mov_b32 s35, 0x00020000
    s_cmp_lt_u32 s13, 4
    s_waitcnt lgkmcnt(0)
    s_cselect_b32 s32, s52, s54
    s_cselect_b32 s33, s53, s55
    s_add_u32 s27, s27, {32768-8192}
    s_mov_b32 m0, 32768
    s_mov_b32 s20, 1
    s_barrier
    s_barrier
    s_barrier
    P2_LD1:
    """)
    for r in range(8):
        a(f"buffer_load_dwordx4 v{L16}, s[8:11], s27 offen lds")
        a(f"s_add_u32 m0, m0, 1024")
        a(f"s_add_u32 s27, s27, 1024")
    a(f"""
    s_add_u32 s20, s20, 1
    s_cmp_eq_u32 s20, 2
    s_cbranch_scc0 P2_LD2
    s_barrier
    P2_LD2:
    s_cmp_eq_u32 s20, 5
    s_cbranch_scc0 P2_LD3
    s_waitcnt vmcnt(16)
    s_barrier
    P2_LD3:
    s_cmp_lt_u32 s20, 17
    s_cbranch_scc1 P2_LD1
    s_waitcnt vmcnt(0)
    s_barrier
    s_lshr_b32 s57, s14, 2
    s_cmp_ge_u32 s57, 5
    s_cselect_b32 s58, 5, 0
    s_sub_u32 s57, s57, s58
    s_sub_u32 s57, 5, s57
    s_mul_i32 s57, s57, {20480*P3ROT}
    s_mov_b32 s59, 0
    s_cmp_ge_u32 s57, 102400
    s_cselect_b32 s57, 0, s57
    s_mov_b32 s58, s56
    s_barrier
    P2_LW1:
    """)
    rows = [0, 6, 12, 16, 22, 28]
    src = [0, 6, 12, 20, 26, 32]
    for t in range(6):
        a(f"""
        s_add_u32 m0, s57, {rows[t]*160}
        s_add_u32 s62, s58, {src[t]*1280}
        s_mov_b32 exec_hi, {'0xff' if t % 3 == 2 else '0x0fffffff'}
        buffer_load_dwordx4 v8, s[32:35], s62 offen lds
        """)
    a(f"""
    s_add_u32 s57, s57, 5120
    s_cmp_ge_u32 s57, 102400
    s_cselect_b32 s57, 0, s57
    s_add_u32 s58, s58, {40*1280}
    s_add_u32 s59, s59, 1
    s_cmp_lt_u32 s59, 16
    s_cbranch_scc1 P2_LW1
    s_add_u32 s58, s56, {16*1280}
    P2_LW2:
    s_mov_b32 m0, s57
    s_add_u32 s57, s57, 640
    buffer_load_dwordx4 v8, s[32:35], s58 offen lds
    s_add_u32 s58, s58, {20*1280}
    s_add_u32 s59, s59, 1
    s_cmp_lt_u32 s59, 48
    s_cbranch_scc1 P2_LW2
    s_waitcnt vmcnt(0)
    s_barrier
    s_endpgm
    P2_NOBAR:
    s_setprio 2
    s_bitcmp1_b32 0x48, s20
    s_cbranch_scc1 P2_LOOP
    s_setprio 1
    s_cmp_lt_u32 s20, 8
    s_cbranch_scc1 P2_LOOP
    s_setprio 0
    {SM} {vr(OB,16)}, {vr(VB[1]+4,4)}, {vr(SB+8,8)}, v{IDX}
    s_waitcnt lgkmcnt(0)
    s_nop 15
    """)
    stamp(a)
    dpt(a, 2)
    def lbro():
        if ONES1:
            a(f"""
            v_mov_b32 v7, v{OA+12}
            v_mov_b32 v8, v{OB+12}
            s_nop 1
            v_permlane32_swap_b32 v{OA+12}, v7
            v_permlane32_swap_b32 v{OB+12}, v8
            s_nop 1
            """)
    lbro()
    a.c("---- safety check of the unshifted softmax: l within [2^-30, 2^110], all O finite; else redo with the true max")
    a(f"""
    s_mov_b32 s30, {hex(f32bits(2.0**-30))}
    s_mov_b32 s31, {hex(f32bits(2.0**110))}
    v_mul_f32 v7, 0, v{OA}
    """)
    for i in range(1, 12):
        a(f"v_fma_f32 v7, v{OA+i}, 0, v7")
    for i in range(12):
        a(f"v_fma_f32 v7, v{OB+i}, 0, v7")
    a(f"""
    v_min_f32 v8, v{OA+12}, v{OB+12}
    v_max_f32 v9, v{OA+12}, v{OB+12}
    v_add_f32 v7, v7, v{OA+12}
    v_add_f32 v7, v7, v{OB+12}
    v_cmp_le_f32 vcc, s30, v8
    v_cmp_ge_f32 s[32:33], s31, v9
    v_cmp_o_f32 s[34:35], v7, v7
    s_nop 3
    s_and_b64 vcc, vcc, s[32:33]
    s_and_b64 vcc, vcc, s[34:35]
    s_cmp_eq_u64 vcc, -1
    s_cbranch_scc0 P2_FALLBACK
    P2_STORE:
    s_mul_i32 s36, s15, {OBR}
    s_lshl_b32 s37, s18, 5
    s_lshl_b32 s38, s3, 2
    s_add_u32 s37, s37, s38
    s_mul_i32 s37, s37, 20480
    s_add_u32 s36, s36, s37
    s_add_u32 s36, s36, {WS_O}
    s_lshr_b32 s37, s17, 1
    s_lshl_b32 s37, s37, 10
    s_and_b32 s38, s17, 1
    s_lshl_b32 s38, s38, 9
    s_add_u32 s37, s37, s38
    s_add_u32 s37, s37, s36
    s_lshr_b32 s38, s17, 3
    s_lshl_b32 s38, s38, 10
    s_add_u32 s38, s38, 16384
    s_bfe_u32 s39, s17, 0x10002
    s_lshl_b32 s39, s39, 9
    s_add_u32 s38, s38, s39
    s_and_b32 s39, s17, 1
    s_lshl_b32 s39, s39, 8
    s_add_u32 s38, s38, s39
    s_bfe_u32 s39, s17, 0x10001
    s_lshl_b32 s39, s39, 3
    s_add_u32 s38, s38, s39
    s_add_u32 s38, s38, s36
    v_and_b32 v7, 15, v{VL}
    v_lshlrev_b32 v7, 4, v7
    v_bfe_u32 v8, v{VL}, 4, 1
    v_mul_u32_u24 v8, 20480, v8
    v_add_u32 v7, v7, v8
    v_lshrrev_b32 v8, 5, v{VL}
    v_lshl_add_u32 v8, v8, 8, v7
    v_rcp_f32 v10, v{OA+12}
    v_rcp_f32 v11, v{OB+12}
    s_add_u32 s40, s37, 40960
    s_add_u32 s41, s38, 40960
    """)
    for (o, r, t) in ((OA, 10, SA), (OB, 11, SB)):
        for i in range(12):
            a(f"v_mul_f32 v{o+i}, v{o+i}, v{r}")
        for i in range(6):
            a(f"v_cvt_pk_bf16_f32 v{t+i}, v{o+2*i}, v{o+2*i+1}")
    a(f"""
    buffer_store_dwordx4 {vr(SA,4)}, v8, s[8:11], s37 offen {STMOD}
    buffer_store_dwordx4 {vr(SB,4)}, v8, s[8:11], s40 offen {STMOD}
    s_mov_b32 exec_hi, 0
    buffer_store_dwordx2 {vr(SA+4,2)}, v7, s[8:11], s38 offen {STMOD}
    buffer_store_dwordx2 {vr(SB+4,2)}, v7, s[8:11], s41 offen {STMOD}
    s_mov_b64 exec, -1
    """)
    stamp(a)
    a("s_branch P2_DONE")
    a.c("---- fallback: textbook two-pass softmax with the true row max, K/V fragments straight from the workspace image")
    a(f"""
    P2_FALLBACK:
    v_mov_b32 v{MA}, 0xff800000
    v_mov_b32 v{MB}, 0xff800000
    v_subrev_u32 v{KH}, {8*20480}, v{KH}
    v_subrev_u32 v{VA}, {8*20480}, v{VA}
    s_mul_i32 s27, s21, {KVUNIT}
    s_add_u32 s27, s27, {WS_KV}
    s_mov_b32 s26, s27
    s_mov_b32 s20, 0
    P2_FB1:
    buffer_load_dwordx4 {vr(KLO[0],4)}, v{L16}, s[8:11], s26 offen
    buffer_load_dword v{KHI[0]}, v{KH}, s[8:11], s26 offen
    s_add_u32 s26, s26, 2560
    s_waitcnt vmcnt(0)
    {M16} {vr(SA,16)}, {vr(KLO[0],4)}, {vr(QA_LO,4)}, 0
    {M8} {vr(SA,16)}, {vr(KHI[0],2)}, {vr(QA_HI,2)}, {vr(SA,16)}
    {M16} {vr(SB,16)}, {vr(KLO[0],4)}, {vr(QB_LO,4)}, 0
    {M8} {vr(SB,16)}, {vr(KHI[0],2)}, {vr(QB_HI,2)}, {vr(SB,16)}
    s_nop 15
    """)
    for i in range(8):
        a(f"v_max3_f32 v{MA}, v{SA+2*i}, v{SA+2*i+1}, v{MA}")
        a(f"v_max3_f32 v{MB}, v{SB+2*i}, v{SB+2*i+1}, v{MB}")
    a(f"""
    s_add_u32 s20, s20, 1
    s_cmp_lt_u32 s20, 64
    s_cbranch_scc1 P2_FB1
    v_mov_b32 v7, v{MA}
    v_mov_b32 v8, v{MB}
    s_nop 1
    v_permlane32_swap_b32 v7, v{MA}
    v_permlane32_swap_b32 v8, v{MB}
    s_nop 1
    v_max_f32 v{MA}, v{MA}, v7
    v_max_f32 v{MB}, v{MB}, v8
    """)
    for i in range(32):
        a(f"v_mov_b32 v{OA+i}, 0")
    a(f"""
    s_mov_b32 s20, 0
    P2_FB2:
    buffer_load_dwordx4 {vr(KLO[0],4)}, v{L16}, s[8:11], s27 offen
    buffer_load_dword v{KHI[0]}, v{KH}, s[8:11], s27 offen
    s_mov_b64 exec, s[22:23]
    buffer_load_dwordx4 {vr(VB[0],4)}, v{VA}, s[8:11], s27 offen
    buffer_load_dwordx4 {vr(VB[0]+4,4)}, v{VA}, s[8:11], s27 offen offset:640
    s_mov_b64 exec, -1
    s_add_u32 s27, s27, 2560
    s_waitcnt vmcnt(0)
    {M16} {vr(SA,16)}, {vr(KLO[0],4)}, {vr(QA_LO,4)}, 0
    {M8} {vr(SA,16)}, {vr(KHI[0],2)}, {vr(QA_HI,2)}, {vr(SA,16)}
    {M16} {vr(SB,16)}, {vr(KLO[0],4)}, {vr(QB_LO,4)}, 0
    {M8} {vr(SB,16)}, {vr(KHI[0],2)}, {vr(QB_HI,2)}, {vr(SB,16)}
    s_nop 15
    """)
    for i in range(16):
        a(f"v_sub_f32 v{SA+i}, v{SA+i}, v{MA}")
        a(f"v_sub_f32 v{SB+i}, v{SB+i}, v{MB}")
    ex(SA, 0, 16)
    ex(SB, 0, 16)
    a(f"""
    s_nop 1
    {SM} {vr(OA,16)}, {vr(VB[0],4)}, {vr(SA,8)}, v{IDX}
    {SM} {vr(OA,16)}, {vr(VB[0]+4,4)}, {vr(SA+8,8)}, v{IDX}
    {SM} {vr(OB,16)}, {vr(VB[0],4)}, {vr(SB,8)}, v{IDX}
    {SM} {vr(OB,16)}, {vr(VB[0]+4,4)}, {vr(SB+8,8)}, v{IDX}
    s_add_u32 s20, s20, 1
    s_cmp_lt_u32 s20, 64
    s_cbranch_scc1 P2_FB2
    s_nop 15
    """)
    lbro()
    a("""
    s_branch P2_STORE
    P2_DONE:
    """)


P3_TR = 102400


def phase3(a):
    WF = [16, 36]
    ACC = 56
    OF = 96
    NR = LA + 1
    assert OF + 8 * NR <= STV
    SA_ = [6, 8, 12, 13, 14]
    a(f"""
    s_load_dwordx2 s[36:37], s[0:1], 64
    s_lshr_b32 s15, s13, 2
    s_and_b32 s20, s13, 3
    s_lshl_b32 s20, s20, 2
    s_and_b32 s21, s14, 3
    s_add_u32 s20, s20, s21
    s_lshr_b32 s21, s14, 2
    """)
    a.c("s15 br, s20 token tile(128), s21 col tile(80)")
    a(f"""
    s_mul_i32 s22, s15, {OBR}
    s_lshl_b32 s23, s20, 3
    s_lshl_b32 s24, s3, 1
    s_add_u32 s23, s23, s24
    s_mul_i32 s23, s23, 20480
    s_add_u32 s22, s22, s23
    s_add_u32 s22, s22, {WS_O}
    s_cmp_ge_u32 s21, 5
    s_cselect_b32 s25, 5, 0
    s_sub_u32 s25, s21, s25
    s_mul_i32 s25, s25, {4096*P3ROT}
    s_add_u32 s26, s22, 20480
    s_add_u32 s22, s22, s25
    s_add_u32 s23, s22, 20480
    s_mul_i32 s24, s21, 160
    s_mov_b32 s28, 0xCCCCCCCD
    s_mov_b32 s38, {2048*2560}
    s_mov_b32 s39, 0x00020000
    v_lshrrev_b32 v4, 5, v1
    v_lshlrev_b32 v4, 4, v4
    v_bfe_u32 v5, v1, 4, 1
    v_lshl_add_u32 v4, v5, 2, v4
    v_bfe_u32 v5, v1, 2, 2
    v_add_u32 v4, v4, v5
    v_mul_u32_u24 v4, 160, v4
    v_and_b32 v5, 3, v1
    v_mul_u32_u24 v5, 40, v5
    v_add_u32 v4, v4, v5
    v_add_u32 v5, {10*5120}, v4
    s_lshl_b32 s40, s20, 7
    s_lshl_b32 s41, s3, 5
    s_add_u32 s40, s40, s41
    s_mul_i32 s40, s40, 2560
    s_mul_i32 s41, s15, 1280
    s_add_u32 s40, s40, s41
    s_add_u32 s40, s40, s24
    s_mul_i32 s42, s3, 5120
    s_add_u32 s42, s42, {P3_TR}
    """)
    for t in range(5):
        a(f"""
        v_add_u32 v20, {64*t}, v1
        v_mul_hi_u32 v21, v20, s28
        v_lshrrev_b32 v21, 3, v21
        v_mul_u32_u24 v22, 10, v21
        v_sub_u32 v22, v20, v22
        v_mul_u32_u24 v21, 2560, v21
        v_lshl_add_u32 v{SA_[t]}, v22, 4, v21
        """)
    a(f"""
    v_and_b32 v3, 15, v1
    v_mul_u32_u24 v3, 160, v3
    v_lshrrev_b32 v20, 4, v1
    v_mul_u32_u24 v20, 40, v20
    v_add3_u32 v3, v3, v20, s42
    v_add_u32 v15, s42, v2
    """)
    for i in range(40):
        a(f"v_mov_b32 v{ACC+i}, 0")
    a("s_waitcnt lgkmcnt(0)")
    handoff(a, "H2", 1, 0, f"""
    s_lshl_b32 s49, s15, 4
    s_lshr_b32 s50, s20, 2
    s_add_u32 s49, s49, s50
    s_lshl_b32 s49, s49, 3
    v_bfe_u32 v10, v1, 3, 2
    v_lshlrev_b32 v10, 5, v10
    v_and_b32 v9, 7, v1
    v_add3_u32 v9, v9, v10, s49
    s_mov_b32 s50, -1
    s_mov_b32 s51, 0
    """, 120)
    a("""
    s_cmp_lt_u32 s3, 4
    s_cbranch_scc1 P3_GO
    """)
    stamp_store(a)
    a("s_endpgm")
    a("P3_GO:")

    def reads(kap, st):
        base, off = (4, kap * 5120) if kap < 10 else (5, (kap - 10) * 5120)
        return [f"ds_read_b64_tr_b16 {vr(WF[st]+4*j+2*i,2)}, v{base} offset:{off+i*1280+8*j}" for j in range(5) for i in range(2)]

    def ofr(kap, tt):
        return OF + (kap % NR) * 8 + tt * 4

    def oloads(kap):
        r = []
        for tt in range(2):
            x = f"buffer_load_dwordx4 {vr(ofr(kap,tt),4)}, v2, s[8:11], s{22+tt} offen offset:{(kap&3)*1024} {OLDMOD}"
            if kap & 3 == 3 and tt == 1:
                x += "\ns_add_u32 s22, s22, 4096\ns_cmp_eq_u32 s22, s26\ns_cselect_b32 s25, 20480, 0\ns_sub_u32 s22, s22, s25\ns_add_u32 s23, s22, 20480"
            r.append(x)
        return r
    for x in reads(0, 0):
        a(x)
    a("s_barrier")
    stamp(a)
    dpt(a, 3)
    issued = 0
    for k in range(LA):
        for x in oloads(k):
            a(x)
            issued += 1
    for kap in range(20):
        st = kap & 1
        nxt = kap + 1
        pend = oloads(kap + LA) if kap + LA < 20 else []
        a(f"s_waitcnt vmcnt({issued - 2*(kap+1)}) lgkmcnt(0)")
        for x in pend:
            a(x)
            issued += 1
        r = reads(nxt, 1 - st) if nxt < 20 else []
        for j in range(5):
            for tt in range(2):
                d = vr(ACC + (tt * 5 + j) * 4, 4)
                a(f"{M1632} {d}, {vr(WF[st]+4*j,4)}, {vr(ofr(kap,tt),4)}, {d}")
                for _ in range(2):
                    if r:
                        a(r.pop(0))
    stamp(a)
    a.c("---- epilogue: pack, transpose through LDS so each store covers whole row segments")
    a("s_nop 7")
    for tt in range(2):
        t = 16 + tt * 10
        for j in range(5):
            b = ACC + (tt * 5 + j) * 4
            a(f"v_cvt_pk_bf16_f32 v{t+2*j}, v{b}, v{b+1}")
            a(f"v_cvt_pk_bf16_f32 v{t+2*j+1}, v{b+2}, v{b+3}")
            a(f"ds_write_b64 v3, {vr(t+2*j,2)} offset:{tt*2560+8*j}")
    a("s_waitcnt lgkmcnt(0)")
    for t in range(5):
        a(f"ds_read_b128 {vr(OF+4*t,4)}, v15 offset:{t*1024}")
    for t in range(5):
        a(f"s_waitcnt lgkmcnt({4-t})")
        a(f"buffer_store_dwordx4 {vr(OF+4*t,4)}, v{SA_[t]}, s[36:39], s40 offen {OUTMOD}")
    stamp(a)
    if STAMP:
        a("s_waitcnt vmcnt(0)")
    stamp(a)
    stamp_store(a)
    dpt(a, 4)
    dfin(a)
    a("KEND:")
    a("s_endpgm")


def main(path):
    a = Asm()
    a.l += [
        "; Fused MHA (branch A) + MQA (branch B) attention block in one launch: 256 workgroups (one per CU) x 9 waves.",
        ";   phase 1: Q/K/V projections -> workspace images laid out as MFMA fragments",
        ";   phase 2: softmax(QK^T)V per (head, 512 queries), K/V image resident in LDS, P fed to a sparse MFMA as raw fp32",
        ";   phase 3: output projections, concatenated into d_out",
        "; Hand-offs between phases: write-through stores + one time-stamped flag line per workgroup in the workspace.",
        "; Generated by dev/gen9.py (hand-written generator).",
        f"; @launch grid=(256,1,1) block=(576,1,1) lds={LDS}",
        '.amdgcn_target "amdgcn-amd-amdhsa--gfx950"',
        ".text",
        f".globl {KN}",
        ".p2align 8",
        f".type {KN},@function",
        f"{KN}:",
    ]
    phase1(a)
    phase2(a)
    phase3(a)
    a.l += [
        '.section .rodata,"a"',
        ".p2align 6",
        f".amdhsa_kernel {KN}",
        f"  .amdhsa_next_free_vgpr {NV}",
        "  .amdhsa_next_free_sgpr 102",
        f"  .amdhsa_accum_offset {NV}",
        "  .amdhsa_group_segment_fixed_size 0",
        "  .amdhsa_kernarg_size 88",
        "  .amdhsa_user_sgpr_count 2",
        "  .amdhsa_user_sgpr_kernarg_segment_ptr 1",
        "  .amdhsa_system_sgpr_workgroup_id_x 1",
        ".end_amdhsa_kernel",
    ]
    open(path, "w").write(a.text())
    print(f"{KN} 256 576 {LDS}")


if __name__ == "__main__":
    main(sys.argv[1] if len(sys.argv) > 1 else f"cdna_kernels/{NAME}.s")
```

```python
import math, os, re, struct, sys

NAME = "concat_heads__softmax_full_mha__grouped_kv_mqa__prompt"
KN = NAME + "_kernel"

WS_Q = 0
QUNIT = 81920
WS_KV = 0x500000
KVUNIT = 163840
WS_O = 0xA40000
OBR = 0x280000
WS_FLAG = WS_O + 2 * OBR
WS_ST = 0xF80000
WS_SIZE = 0x1000000
LDS = 163840
NV = 168

env = lambda k, d: os.environ.get(k, d)
STAMP = int(env("STAMP", "0"))
ROT_MASK = int(env("ROT_MASK", "3"))
ROT_MUL = int(env("ROT_MUL", "10"))
ROT_P = int(env("ROT_P", "0"))
ROT_H = int(env("ROT_H", "0"))
POLL_SLEEP = int(env("POLL_SLEEP", "4"))
NPOLL = int(env("NPOLL", "1"))
LA = int(env("K3_LA", "7"))
STMOD = env("STMOD", "sc1")
OUTMOD = env("OUTMOD", "nt")
LOWJ = int(env("LOWJ", "6"))
P3ROT = int(env("P3ROT", "0"))
ONES1 = int(env("ONES1", "1"))
OLDMOD = env("OLDMOD", "")
FILLQ = int(env("FILLQ", "4"))
XMOD = env("XMOD", "")
WMOD = env("WMOD", "")
LOWY = int(env("LOWY", "0"), 0)
SPIN_MAX = 1 << 16
STV = 166
NOMORE = False


def f32bits(x):
    return struct.unpack("<I", struct.pack("<f", x))[0]


QSCALE = (20.0 ** -0.5) * math.log2(math.e)


class Asm:
    def __init__(self):
        self.l = []

    def __call__(self, s):
        for line in s.strip("\n").split("\n"):
            t = line.strip()
            if t:
                self.l.append(t if t.endswith(":") else "  " + t)

    def c(self, s):
        self.l.append("  ; " + s)

    def text(self):
        return "\n".join(self.l) + "\n"


def vr(b, n):
    return f"v[{b}:{b+n-1}]"


def stamp(a, first=False, lvl=1):
    if STAMP < lvl or (STAMP == 2 and NOMORE):
        return
    if first:
        a(f"v_mov_b32 v{STV}, 0")
        a("s_mov_b32 s91, 0")
    a(f"""
    s_memtime s[96:97]
    s_memrealtime s[98:99]
    s_waitcnt lgkmcnt(0)
    s_mov_b32 s90, m0
    s_mov_b32 m0, s91
    s_nop 0
    v_writelane_b32 v{STV}, s96, m0
    s_add_u32 m0, s91, 1
    s_nop 0
    v_writelane_b32 v{STV}, s98, m0
    s_add_u32 s91, s91, 2
    s_mov_b32 m0, s90
    """)


def stamp_store(a):
    if not STAMP:
        return
    a(f"""
    s_mov_b32 exec_lo, -1
    s_mov_b32 exec_hi, 0
    s_lshl_b32 s92, s2, 3
    s_add_u32 s92, s92, s3
    s_lshl_b32 s92, s92, 7
    s_add_u32 s92, s92, {WS_ST}
    v_mbcnt_lo_u32_b32 v{STV+1}, -1, 0
    v_lshlrev_b32 v{STV+1}, 2, v{STV+1}
    buffer_store_dword v{STV}, v{STV+1}, s[8:11], s92 offen
    """)


DIAG = env("DIAG", "")
def dpt(a, k):
    if DIAG:
        a(f"s_memrealtime s[{82+2*k}:{83+2*k}]")
        a("s_waitcnt lgkmcnt(0)")
def dfin(a):
    if not DIAG:
        return
    if DIAG == "xcc":
        a("""
        s_getreg_b32 s92, hwreg(HW_REG_XCC_ID)
        s_and_b32 s92, s92, 7
        s_and_b32 s93, s2, 7
        s_cmp_eq_u32 s92, s93
        s_cselect_b32 s92, 0, 3000
        """)
    else:
        A, B = DIAG.split("-")
        ra = "s6" if A == "s" else f"s{82+2*int(A)}"
        a(f"""
        s_or_b32 s92, s2, s3
        s_cmp_lg_u32 s92, 0
        s_cbranch_scc1 KEND
        s_sub_u32 s92, s{82+2*int(B)}, {ra}
        s_lshl_b32 s92, s92, 2
        """)
    a("""
    s_memrealtime s[94:95]
    s_waitcnt lgkmcnt(0)
    s_add_u32 s92, s92, s94
    DSPIN:
    s_memrealtime s[94:95]
    s_waitcnt lgkmcnt(0)
    s_sub_u32 s93, s94, s92
    s_cmp_lt_i32 s93, 0
    s_cbranch_scc1 DSPIN
    """)

M16 = "v_mfma_f32_32x32x16_bf16"
M8 = "v_mfma_f32_32x32x8_bf16"
SM = "v_smfmac_f32_32x32x32_bf16"
M1632 = "v_mfma_f32_16x16x32_bf16"

WOFF = 16384
EOFF = WOFF + 4 * 5184
SLOT = EOFF + 2560 + 64
NSLOT = 4
assert NSLOT * SLOT <= LDS


def phase1(a):
    a(f"""
    s_cmp_ge_u32 s2, 256
    s_cbranch_scc1 KEND
    """)
    stamp(a, True)
    a(f"""
    s_load_dwordx16 s[16:31], s[0:1], 0
    s_load_dwordx2 s[8:9], s[0:1], 80
    s_memrealtime s[6:7]
    v_and_b32 v1, 63, v0
    v_lshrrev_b32 v2, 6, v0
    s_and_b32 s50, s2, 7
    v_readfirstlane_b32 s3, v2
    s_lshr_b32 s51, s2, 3
    s_and_b32 s52, s51, 7
    s_lshr_b32 s53, s51, 3
    s_and_b32 s54, s50, 1
    s_lshr_b32 s55, s50, 1
    s_lshl_b32 s56, s54, 3
    s_add_u32 s56, s56, s52
    s_mov_b32 s10, {WS_SIZE}
    s_mov_b32 s11, 0x00020000
    """)
    a.c("s3 wave, s[8:11] ws SRD, s[6:7] start time; s52 mt, s53 nt, s54 mhalf, s55 part(0 Q,1 K,2 V,3 B), s56 m tile 0..15")
    a(f"""
    s_cmp_eq_u32 s55, 3
    s_cselect_b32 s57, 1, 0
    s_mov_b32 s58, 3840
    s_cselect_b32 s58, 1280, s58
    s_cselect_b32 s59, 0, s55
    s_mul_i32 s59, s59, 1280
    s_mul_i32 s60, s53, 320
    s_add_u32 s59, s59, s60
    s_cmp_ge_u32 s3, 4
    s_cbranch_scc1 P1_LOADER
    """)
    a.c("s57 isB, s58 W row stride, s59 W col byte base")
    XA = [4, 5, 6, 7]
    WA, EA = 8, 9
    T = [10, 11, 12, 13, 14]
    XF = [16, 32]
    WF = 48
    EF = 68
    ACC = 72
    EACC = 152
    a.c("---- compute wave setup: s61 wm, s62 wn, s63 flip (B WGs with nt odd)")
    a(f"""
    s_and_b32 s61, s3, 1
    s_lshr_b32 s62, s3, 1
    s_and_b32 s63, s53, s57
    v_and_b32 v2, 15, v1
    v_lshrrev_b32 v3, 4, v1
    s_cmp_eq_u32 s55, 2
    s_cselect_b64 s[64:65], -1, 0
    v_bfe_u32 v22, v2, 1, 3
    v_bfe_u32 v23, v2, 1, 1
    v_lshrrev_b32 v24, 2, v2
    v_lshl_or_b32 v23, v24, 1, v23
    v_cndmask_b32 v22, v22, v23, s[64:65]
    v_and_b32 v23, 3, v2
    v_lshl_add_u32 v23, v24, 3, v23
    v_cndmask_b32 v23, v2, v23, s[64:65]
    s_lshl_b32 s66, s61, 13
    s_lshl_b32 s67, s63, 12
    s_add_u32 s68, s66, s67
    s_xor_b32 s67, s67, 4096
    s_add_u32 s69, s66, s67
    v_lshlrev_b32 v23, 7, v23
    """)
    for ks in range(2):
        a(f"""
        v_add_u32 v24, {4*ks}, v3
        v_xor_b32 v24, v24, v22
        v_lshl_add_u32 v24, v24, 4, v23
        v_add_u32 v{XA[2*ks]}, s68, v24
        v_add_u32 v{XA[2*ks+1]}, s69, v24
        """)
    a(f"""
    v_bfe_u32 v22, v1, 2, 2
    v_lshl_add_u32 v22, v3, 3, v22
    v_and_b32 v24, 3, v1
    v_mul_u32_u24 v{WA}, 320, v22
    v_and_b32 v25, 1, v3
    v_lshl_add_u32 v{WA}, v25, 5, v{WA}
    v_lshrrev_b32 v25, 1, v3
    v_lshl_add_u32 v{WA}, v25, 6, v{WA}
    v_mul_u32_u24 v25, 40, v24
    v_lshlrev_b32 v26, 3, v24
    v_cndmask_b32 v25, v25, v26, s[64:65]
    s_mul_i32 s66, s62, 160
    s_add_u32 s66, s66, {WOFF}
    v_add3_u32 v{WA}, v{WA}, v25, s66
    v_mul_u32_u24 v{EA}, 40, v22
    s_lshl_b32 s66, s62, 5
    s_add_u32 s66, s66, {EOFF}
    v_add3_u32 v{EA}, v{EA}, v26, s66
    """)
    for i in range(88):
        a(f"v_mov_b32 v{ACC+i}, 0")
    a.c("store geometry: s70 unit size, s71 tile size, s72/s73 soffset for slot pair 0/1, s74 extra soffset")
    a(f"""
    s_sub_u32 s66, s55, 1
    s_cmp_lt_u32 s66, 2
    s_mov_b32 s70, {QUNIT}
    s_cselect_b32 s70, {KVUNIT}, s70
    s_mov_b32 s71, 1280
    s_cselect_b32 s71, 2560, s71
    s_cselect_b32 s72, {WS_KV}, {WS_Q}
    s_lshl_b32 s66, s53, 3
    s_lshl_b32 s67, s57, 5
    s_add_u32 s66, s66, s67
    s_lshl_b32 s67, s62, 2
    s_add_u32 s66, s66, s67
    s_mul_i32 s66, s66, s70
    s_add_u32 s72, s72, s66
    s_lshl_b32 s66, s56, 2
    s_lshl_b32 s67, s61, 1
    s_add_u32 s66, s66, s67
    s_add_u32 s67, s66, s63
    s_xor_b32 s76, s63, 1
    s_add_u32 s66, s66, s76
    s_mul_i32 s76, s66, s71
    s_add_u32 s73, s72, s76
    s_mul_i32 s76, s67, s71
    s_add_u32 s72, s72, s76
    s_mul_i32 s74, s67, 2560
    s_add_u32 s74, s74, {WS_KV + 32*KVUNIT}
    v_mul_lo_u32 v22, v3, s70
    v_lshl_add_u32 v{T[0]}, v2, 4, v22
    v_lshl_add_u32 v{T[1]}, v2, 3, v22
    v_add_u32 v{T[1]}, 1024, v{T[1]}
    v_mov_b32 v{T[2]}, 0
    v_mov_b32 v{T[3]}, 0
    v_mov_b32 v{T[4]}, 0
    s_cmp_eq_u32 s55, 2
    s_cbranch_scc0 P1_SETUP_DONE
    s_mov_b32 s76, 0xCCCCCCCD
    v_lshrrev_b32 v25, 1, v3
    v_mul_u32_u24 v25, 640, v25
    v_and_b32 v26, 1, v3
    v_mul_u32_u24 v26, 320, v26
    v_add3_u32 v25, v25, v26, s71
    v_subrev_u32 v25, 1280, v25
    """)
    for n5 in range(5):
        a(f"""
        v_add_u32 v22, {16*n5}, v2
        v_mul_hi_u32 v23, v22, s76
        v_lshrrev_b32 v23, 4, v23
        v_mul_u32_u24 v24, 20, v23
        v_sub_u32 v24, v22, v24
        v_mul_lo_u32 v23, v23, s70
        v_lshl_add_u32 v23, v24, 4, v23
        v_add_u32 v{T[n5]}, v23, v25
        """)
    a("P1_SETUP_DONE:")
    a.c("s76: variant 0 QK, 1 V, 2 QK+Kextra, 3 QK+Vextra; s78 stage counter")
    a(f"""
    s_mov_b32 s76, 0
    s_cmp_eq_u32 s55, 2
    s_cselect_b32 s76, 1, s76
    s_lshr_b32 s66, s53, 1
    s_add_u32 s66, s66, 2
    s_cmp_eq_u32 s57, 1
    s_cselect_b32 s76, s66, s76
    s_mov_b32 s78, 0
    s_mov_b32 s79, {SLOT}
    s_waitcnt lgkmcnt(0)
    s_barrier
    """)
    stamp(a)

    def wreads(g, ks, orient):
        if g < 5:
            return [(f"W{g}", f"ds_read_b64_tr_b16 {vr(WF+4*g+2*i,2)}, v{WA} offset:{ks*(320*32+128)+i*1280+g*(32 if orient else 8)}") for i in range(2)]
        return [("W5", f"ds_read_b64_tr_b16 {vr(EF+2*i,2)}, v{EA} offset:{(32*ks+4*i)*40}") for i in range(2)]

    def xreads(ks, xs, orient):
        return [(f"X{xs}{s_}", f"ds_read_b128 {vr(XF[xs]+4*s_,4)}, v{XA[2*ks+(s_>>1)]} offset:{(s_&1)*(512 if orient else 2048)}") for s_ in range(4)]

    def mlist(xs, orient, extra):
        m = []
        for g in range(6 if extra else 5):
            for s_ in range(4 if g < 5 else 2):
                w, x = vr(WF+4*g if g < 5 else EF, 4), vr(XF[xs]+4*s_, 4)
                d = vr(ACC+(s_*5+g)*4 if g < 5 else EACC+4*s_, 4)
                o = orient if g < 5 else (extra == 2)
                m.append((g, (f"W{g}",) + tuple(f"X{xs}{t_}" for t_ in range(4 if s_ == 0 else 0)), f"{M1632} {d}, {x}, {w}, {d}" if o else f"{M1632} {d}, {w}, {x}, {d}"))
        return m

    def body(orient, extra):
        G = 6 if extra else 5
        items = []
        BARG = 1
        tail = []
        for half in range(2):
            ml = mlist(half, orient, extra)
            q = [("r",) + r for r in wreads(G - 1, half, orient)]
            if half == 0:
                q += [("r",) + r for r in xreads(1, 1, orient)]
            for n, (g, deps, txt) in enumerate(ml):
                items.append(("m", deps, txt))
                last = n + 1 == len(ml) or ml[n + 1][0] != g
                if last and g < G - 1:
                    if half == 0:
                        q += [("r",) + r for r in wreads(g, 1, orient)]
                    elif g == BARG:
                        assert not q
                        items.append(("bar",))
                        q += [("v", f"v_add_u32 v{r}, s77, v{r}") for r in [WA, XA[0], XA[1]]]
                        q += [("r",) + r for r in wreads(0, 0, orient) + xreads(0, 0, orient)]
                        for g2 in range(1, BARG + 1):
                            q += [("r",) + r for r in wreads(g2, 0, orient)]
                        q += [("v", f"v_add_u32 v{r}, s77, v{r}") for r in [XA[2], XA[3]] + ([EA] if extra else [])]
                    elif g > BARG:
                        q += [("r",) + r for r in wreads(g, 0, orient)]
                for _ in range(1 if (last and len(q) <= FILLQ) else 2):
                    if q:
                        it = q.pop(0)
                        items.append(it)
                        if half == 1 and it[0] == "r" and ("bar",) in items:
                            tail.append(it)
            assert not q, (half, q)
        return tail, items

    def emit_body(tail, items):
        seq = [it[1] for it in tail]
        waits = []
        for ps in range(2):
            done = 0 if ps == 0 else done
            w = []
            for it in items:
                if it[0] == "r":
                    seq.append(it[1])
                    w.append(None)
                elif it[0] == "bar":
                    done = len(seq)
                    w.append(0)
                elif it[0] == "m":
                    need = max(max(k for k, x in enumerate(seq) if x == d) for d in it[1]) + 1
                    if need > done:
                        w.append(len(seq) - need)
                        done = need
                    else:
                        w.append(None)
                else:
                    w.append(None)
            waits.append(w)
        for it, w0, w1 in zip(items, *waits):
            ws_ = [x for x in (w0, w1) if x is not None]
            if it[0] == "bar":
                a(f"""
                s_waitcnt lgkmcnt(0)
                s_barrier
                """)
                continue
            if ws_:
                assert min(ws_) <= 15
                a(f"s_waitcnt lgkmcnt({min(ws_)})")
            a(it[-1])

    variants = [(0, 0), (1, 0), (0, 1), (0, 2)]
    a(f"""
    s_cmp_eq_u32 s76, 1
    s_cbranch_scc1 P1_V1
    s_cmp_eq_u32 s76, 2
    s_cbranch_scc1 P1_V2
    s_cmp_eq_u32 s76, 3
    s_cbranch_scc1 P1_V3
    """)
    for vi, (orient, extra) in enumerate(variants):
        tail, items = body(orient, extra)
        a(f"P1_V{vi}:")
        for it in tail:
            a(it[2])
        a(f"P1_L{vi}:")
        a(f"""
        s_and_b32 s77, s78, 3
        s_cmp_eq_u32 s77, 3
        s_cselect_b32 s77, {(-3*SLOT) & 0xffffffff}, s79
        """)
        emit_body(tail, items)
        stamp(a, lvl=2)
        a(f"""
        s_add_u32 s78, s78, 1
        s_cmp_lt_u32 s78, 10
        s_cbranch_scc1 P1_L{vi}
        """)
        if vi == 1:
            a("s_branch P1_EPI_V")
        elif vi < 3:
            a("s_branch P1_EPI_QK")
    a("P1_EPI_QK:")
    stamp(a)
    a(f"""
    s_nop 7
    s_waitcnt lgkmcnt(0)
    s_cmp_eq_u32 s55, 1
    s_cbranch_scc1 P1_NOSCALE
    s_mov_b32 s80, {hex(f32bits(QSCALE))}
    s_mov_b32 s81, {hex(f32bits(QSCALE))}
    """)
    for i in range(0, 80, 2):
        a(f"v_pk_mul_f32 {vr(ACC+i,2)}, s[80:81], {vr(ACC+i,2)}")
    a("P1_NOSCALE:")
    for s_ in range(4):
        t = 16 + 12 * s_
        for n5 in range(5):
            b = ACC + (s_ * 5 + n5) * 4
            a(f"v_cvt_pk_bf16_f32 v{t+2*n5}, v{b}, v{b+1}")
            a(f"v_cvt_pk_bf16_f32 v{t+2*n5+1}, v{b+2}, v{b+3}")
        so = f"s{72+(s_>>1)}"
        a(f"buffer_store_dwordx4 {vr(t,4)}, v{T[0]}, s[8:11], {so} offen offset:{(s_&1)*256} {STMOD}")
        a(f"buffer_store_dwordx4 {vr(t+4,4)}, v{T[0]}, s[8:11], {so} offen offset:{(s_&1)*256+512} {STMOD}")
        a(f"buffer_store_dwordx2 {vr(t+8,2)}, v{T[1]}, s[8:11], {so} offen offset:{(s_&1)*128} {STMOD}")
    TX = 70
    a(f"""
    s_cmp_lt_u32 s76, 2
    s_cbranch_scc1 P1_DONE
    v_cvt_pk_bf16_f32 v64, v{EACC}, v{EACC+1}
    v_cvt_pk_bf16_f32 v65, v{EACC+2}, v{EACC+3}
    v_cvt_pk_bf16_f32 v66, v{EACC+4}, v{EACC+5}
    v_cvt_pk_bf16_f32 v67, v{EACC+6}, v{EACC+7}
    v_lshrrev_b32 v68, 1, v3
    v_and_b32 v69, 1, v3
    s_cmp_eq_u32 s76, 3
    s_cbranch_scc1 P1_EPI_VX
    s_cmp_eq_u32 s62, 1
    s_cbranch_scc1 P1_EPI_KX1
    v_lshlrev_b32 v{TX}, 9, v68
    v_lshl_add_u32 v{TX}, v69, 3, v{TX}
    v_lshl_add_u32 v{TX}, v2, 4, v{TX}
    buffer_store_dwordx2 v[64:65], v{TX}, s[8:11], s74 offen {STMOD}
    buffer_store_dwordx2 v[66:67], v{TX}, s[8:11], s74 offen offset:256 {STMOD}
    s_branch P1_DONE
    P1_EPI_KX1:
    v_lshlrev_b32 v{TX}, 3, v2
    s_mov_b32 exec_lo, 0xffff
    s_mov_b32 exec_hi, 0
    buffer_store_dwordx2 v[64:65], v{TX}, s[8:11], s74 offen offset:1024 {STMOD}
    buffer_store_dwordx2 v[66:67], v{TX}, s[8:11], s74 offen offset:1152 {STMOD}
    s_mov_b64 exec, -1
    s_branch P1_DONE
    P1_EPI_VX:
    v_mul_u32_u24 v{TX}, 320, v68
    v_lshl_add_u32 v{TX}, v69, 3, v{TX}
    v_lshl_add_u32 v{TX}, v2, 4, v{TX}
    s_lshl_b32 s66, s62, 8
    s_add_u32 s74, s74, s66
    s_cmp_eq_u32 s62, 1
    s_mov_b32 s66, 0x000f000f
    s_cselect_b32 s66, s66, -1
    s_mov_b32 exec_lo, s66
    s_mov_b32 exec_hi, s66
    buffer_store_dwordx2 v[64:65], v{TX}, s[8:11], s74 offen offset:1280 {STMOD}
    buffer_store_dwordx2 v[66:67], v{TX}, s[8:11], s74 offen offset:1920 {STMOD}
    s_mov_b64 exec, -1
    s_branch P1_DONE
    P1_EPI_V:
    """)
    stamp(a)
    a("s_nop 7")
    a("s_waitcnt lgkmcnt(0)")
    for pr in range(2):
        for n5 in range(5):
            t = 16 + 4 * (pr * 5 + n5)
            for h in range(2):
                b = ACC + ((2 * pr + h) * 5 + n5) * 4
                a(f"v_cvt_pk_bf16_f32 v{t+2*h}, v{b}, v{b+1}")
                a(f"v_cvt_pk_bf16_f32 v{t+2*h+1}, v{b+2}, v{b+3}")
            a(f"buffer_store_dwordx4 {vr(t,4)}, v{T[n5]}, s[8:11], s{72+pr} offen {STMOD}")
    a("s_branch P1_DONE")

    XO, WO, EO = 4, 5, 6
    NPS = 11
    a(f"""
    P1_LOADER:
    s_cmp_eq_u32 s3, 8
    s_cbranch_scc1 P1_IDLE
    s_sub_u32 s12, s3, 4
    s_lshl_b32 s61, s56, 7
    s_lshl_b32 s62, s12, 3
    s_add_u32 s61, s61, s62
    v_lshrrev_b32 v2, 3, v1
    v_add_u32 v2, s61, v2
    v_mul_u32_u24 v2, 1280, v2
    s_and_b32 s62, s12, 1
    s_lshl_b32 s62, s62, 2
    v_lshrrev_b32 v3, 4, v1
    v_add_u32 v3, s62, v3
    s_lshl_b32 s62, s12, 1
    v_bfe_u32 v11, v1, 4, 1
    v_or_b32 v11, s62, v11
    s_cmp_eq_u32 s55, 2
    s_cselect_b64 vcc, -1, 0
    s_lshl_b32 s65, s12, 10
    v_cndmask_b32 v3, v3, v11, vcc
    v_and_b32 v11, 7, v1
    v_xor_b32 v3, v3, v11
    v_lshl_add_u32 v{XO}, v3, 4, v2
    s_mov_b32 s72, 0xCCCCCCCD
    s_lshl_b32 s63, s12, 4
    v_mul_hi_u32 v3, v1, s72
    v_lshrrev_b32 v3, 4, v3
    v_mul_u32_u24 v11, 20, v3
    v_sub_u32 v11, v1, v11
    v_add_u32 v3, s63, v3
    v_mul_lo_u32 v3, v3, s58
    v_lshl_add_u32 v3, v11, 4, v3
    v_add_u32 v{WO}, s59, v3
    s_mul_i32 s64, s12, 640
    v_lshlrev_b32 v{EO}, 4, v1
    v_add_u32 v{EO}, s64, v{EO}
    s_mul_i32 s66, s12, 5184
    s_add_u32 s66, s66, {WOFF}
    s_add_u32 s67, s64, {EOFF}
    s_mul_i32 s68, s58, 50
    s_mul_i32 s69, s58, 3
    s_lshl_b32 s79, s58, 1
    s_add_u32 s80, s52, s53
    s_and_b32 s80, s80, {ROT_MASK}
    s_mul_i32 s80, s80, {ROT_MUL}
    s_lshr_b32 s80, s80, 2
    s_mul_i32 s81, s55, {ROT_P}
    s_add_u32 s80, s80, s81
    s_mul_i32 s81, s54, {ROT_H}
    s_add_u32 s80, s80, s81
    s_cmp_ge_u32 s80, 10
    s_cselect_b32 s81, 10, 0
    s_sub_u32 s80, s80, s81
    s_lshl_b32 s70, s80, 7
    s_lshl_b32 s71, s58, 6
    s_mul_i32 s71, s71, s80
    s_mul_i32 s73, s80, 2560
    s_mov_b32 s74, 0
    s_mov_b32 s34, {2048*1280}
    s_mov_b32 s35, 0x00020000
    s_mov_b32 s39, 0x00020000
    s_mov_b32 s43, 0x00020000
    s_mov_b32 s77, 0
    s_cmp_eq_u32 s57, 1
    s_mov_b32 s38, {640*3840}
    s_cselect_b32 s38, {640*1280}, s38
    s_cselect_b32 s42, {640*40}, 0
    s_waitcnt lgkmcnt(0)
    s_cselect_b32 s32, s22, s16
    s_cselect_b32 s33, s23, s17
    s_cselect_b32 s36, s24, s18
    s_cselect_b32 s37, s25, s19
    s_cmp_lt_u32 s53, 2
    s_cselect_b32 s40, s26, s28
    s_cselect_b32 s41, s27, s29
    """)
    a.c("k order is rotated per WG (s80) so that a cold start spreads over the whole K range")
    a.c("s65/s66/s67 LDS rel bases; s70 x soff, s71 W soff, s73 E soff, s74 slot base")
    a("P1_LP:")
    a("s_add_u32 s75, s74, s65")
    for t in range(4):
        a(f"""
        s_add_u32 m0, s75, {4096*t}
        s_add_u32 s76, s70, {40960*t}
        buffer_load_dwordx4 v{XO}, s[32:35], s76 offen {XMOD} lds
        """)
    a("s_add_u32 s75, s74, s66")
    for t, r0 in enumerate([0, 3, 6, 8, 11, 14]):
        a(f"s_add_u32 m0, s75, {320*r0 + (32 if r0 >= 8 else 0)}")
        a(f"s_mov_b32 exec_hi, {'0xff' if t % 3 == 2 else '0x0fffffff'}")
        a(f"buffer_load_dwordx4 v{WO}, s[36:39], s71 offen {WMOD} lds")
        a(f"s_add_u32 s71, s71, {'s69' if t % 3 < 2 else ('s79' if t == 2 else 's68')}")
    a(f"""
    s_add_u32 m0, s74, s67
    s_add_u32 s70, s70, 128
    buffer_load_dwordx4 v{EO}, s[40:43], s73 offen lds
    s_mov_b32 exec_hi, -1
    s_add_u32 s73, s73, 2560
    s_add_u32 s74, s74, {SLOT}
    s_cmp_eq_u32 s74, {NSLOT*SLOT}
    s_cselect_b32 s74, 0, s74
    s_cmp_eq_u32 s70, 1280
    s_cselect_b32 s70, 0, s70
    s_cselect_b32 s71, 0, s71
    s_cselect_b32 s73, 0, s73
    s_add_u32 s77, s77, 1
    s_cmp_lt_u32 s77, 2
    s_cbranch_scc1 P1_LP
    s_waitcnt vmcnt({NPS})
    s_barrier
    s_cmp_lt_u32 s77, 10
    s_cbranch_scc1 P1_LP
    s_waitcnt vmcnt(0)
    """)
    stamp(a)
    a(f"""
    s_barrier
    s_barrier
    s_branch P1_DONE
    P1_IDLE:
    s_mov_b32 s77, 0
    s_waitcnt lgkmcnt(0)
    P1_IDLE1:
    s_barrier
    s_add_u32 s77, s77, 1
    s_cmp_lt_u32 s77, 11
    s_cbranch_scc1 P1_IDLE1
    P1_DONE:
    """)
    stamp(a)
    dpt(a, 0)


def handoff(a, tag, ph, delta, idcode, HT):
    a(f"""
    s_cmp_lg_u32 s3, 0
    s_cbranch_scc1 {tag}_PRE
    s_memrealtime s[44:45]
    """)
    a(idcode)
    a(f"""
    v_lshlrev_b32 v9, 7, v9
    v_lshlrev_b32 v7, 4, v1
    s_lshl_b32 s48, s2, 7
    s_add_u32 s48, s48, {WS_FLAG + ph*0x8000}
    s_mov_b32 s49, {WS_FLAG + ph*0x8000}
    s_sub_u32 s46, s6, {delta}
    s_subb_u32 s47, s7, 0
    s_waitcnt lgkmcnt(0)
    v_mov_b32 v{HT}, s44
    v_mov_b32 v{HT+1}, s45
    v_mov_b32 v{HT+2}, s44
    v_mov_b32 v{HT+3}, s45
    v_mov_b32 v11, s47
    {tag}_PRE:
    s_waitcnt vmcnt(0)
    """)
    stamp(a)
    a(f"""
    s_barrier
    s_cmp_lg_u32 s3, 0
    s_cbranch_scc1 {tag}_WAIT
    s_mov_b64 exec, 0xff
    buffer_store_dwordx4 {vr(HT,4)}, v7, s[8:11], s48 offen sc1
    s_mov_b64 exec, s[50:51]
    s_mov_b32 s48, 0
    """)
    P = HT + 4
    for k in range(NPOLL - 1):
        a(f"buffer_load_dwordx2 {vr(P+2*k,2)}, v9, s[8:11], s49 offen sc1")
        a(f"s_sleep {POLL_SLEEP}")
    a(f"{tag}_POLL:")
    for k in range(NPOLL):
        n = (k + NPOLL - 1) % NPOLL
        a(f"""
        buffer_load_dwordx2 {vr(P+2*n,2)}, v9, s[8:11], s49 offen sc1
        s_waitcnt vmcnt({NPOLL-1})
        v_subrev_co_u32 v10, vcc, s46, v{P+2*k}
        s_nop 1
        v_subb_co_u32 v7, vcc, v{P+2*k+1}, v11, vcc
        v_lshrrev_b32 v10, 24, v10
        v_or_b32 v10, v10, v7
        v_cmp_eq_u32 vcc, 0, v10
        s_nop 3
        s_cmp_eq_u64 vcc, s[50:51]
        s_cbranch_scc1 {tag}_OUT
        s_sleep {POLL_SLEEP}
        """)
    a(f"""
    s_add_u32 s48, s48, 1
    s_cmp_lt_u32 s48, {SPIN_MAX}
    s_cbranch_scc1 {tag}_POLL
    {tag}_OUT:
    s_mov_b64 exec, -1
    s_waitcnt vmcnt(0)
    {tag}_WAIT:
    """)


def phase2(a):
    global NOMORE
    NOMORE = True
    VL, L16, KA, KH, VA, IDX = 1, 2, 3, 4, 5, 6
    QA_LO, QA_HI, QB_HI, QB_LO = 12, 16, 18, 20
    KLO = [24, 32]
    KHI = [28, 30]
    VB = [36, 44]
    SA, SB, OA, OB = 52, 68, 84, 100
    MA, MB = 116, 117
    a(f"""
    s_and_b32 s13, s2, 7
    s_lshr_b32 s14, s2, 3
    s_lshr_b32 s15, s14, 4
    s_bfe_u32 s16, s14, 0x20002
    s_lshl_b32 s17, s13, 2
    s_add_u32 s17, s17, s16
    s_and_b32 s18, s14, 3
    s_lshl_b32 s19, s15, 5
    s_add_u32 s19, s19, s17
    s_cmp_eq_u32 s15, 0
    s_cselect_b32 s21, s17, 32
    """)
    a.c("s15 br, s17 head, s18 qb, s19 unit, s21 kv unit")
    a(f"""
    s_mul_i32 s25, s19, {QUNIT}
    s_mul_i32 s26, s18, 20480
    s_add_u32 s25, s25, s26
    s_mul_i32 s26, s3, 2560
    s_add_u32 s25, s25, s26
    s_mul_i32 s27, s21, {KVUNIT}
    s_lshl_b32 s28, s3, 10
    s_add_u32 s27, s27, s28
    s_add_u32 s27, s27, {WS_KV}
    v_lshlrev_b32 v{L16}, 4, v{VL}
    s_cmp_eq_u32 s3, 8
    s_cbranch_scc1 P2_LOADER
    v_and_b32 v7, 31, v{VL}
    v_lshrrev_b32 v8, 5, v{VL}
    v_lshlrev_b32 v{KH}, 3, v7
    v_lshl_add_u32 v{KH}, v8, 2, v{KH}
    v_add_u32 v{KH}, 1024, v{KH}
    v_mul_u32_u24 v{VA}, 20, v8
    v_add_u32 v{VA}, v{VA}, v7
    v_lshlrev_b32 v{VA}, 4, v{VA}
    v_add_u32 v{VA}, 1280, v{VA}
    v_mov_b32 v{KA}, v{L16}
    v_mov_b32 v{IDX}, 0xdddddddd
    v_mov_b32 v{QA_HI+1}, 0
    v_mov_b32 v{QB_HI+1}, 0
    v_mov_b32 v{KHI[0]+1}, 0
    v_mov_b32 v{KHI[1]+1}, 0
    v_and_b32 v9, {31 if ONES1 else 27}, v7
    v_cmp_eq_u32 vcc, 24, v9
    v_mov_b32 v9, 0
    v_mov_b32 v10, 0x3f803f80
    s_mov_b32 s22, 0x000fffff
    s_mov_b32 s23, 0x000fffff
    s_cmp_lt_u32 s3, 4
    s_cselect_b32 s24, 0x92, {LOWY}
    v_cndmask_b32 v9, v9, v10, vcc
    """)
    for i in range(16):
        a(f"v_mov_b32 v{VB[0]+i}, v9")
    for i in range(16):
        a(f"v_mov_b32 v{SB+i}, 0")
    for i in range(32):
        a(f"v_mov_b32 v{OA+i}, 0")
    handoff(a, "H1", 0, 1000, f"""
    s_lshr_b32 s49, s17, 3
    s_lshl_b32 s49, s49, 6
    v_add_u32 v9, s49, v1
    v_and_b32 v10, 7, v1
    v_cmp_gt_u32 s[50:51], 6, v10
    v_lshrrev_b32 v10, 1, v1
    v_lshlrev_b32 v10, 3, v10
    v_and_b32 v11, 1, v1
    v_add3_u32 v10, v10, v11, 6
    s_cmp_eq_u32 s15, 0
    s_cselect_b64 vcc, -1, 0
    s_cselect_b64 s[50:51], s[50:51], -1
    v_cndmask_b32 v9, v10, v9, vcc
    """, 120)
    a(f"""
    s_mov_b32 m0, s28
    s_barrier
    """)
    stamp(a)
    dpt(a, 1)
    a(f"""
    buffer_load_dwordx4 v{L16}, s[8:11], s27 offen lds
    buffer_load_dwordx4 {vr(QA_LO,4)}, v{L16}, s[8:11], s25 offen
    buffer_load_dword v{QA_HI}, v{KH}, s[8:11], s25 offen
    buffer_load_dwordx4 {vr(QB_LO,4)}, v{L16}, s[8:11], s25 offen offset:1280
    buffer_load_dword v{QB_HI}, v{KH}, s[8:11], s25 offen offset:1280
    s_setprio 2
    s_mov_b64 vcc, -1
    s_mov_b32 s20, 0
    """)
    for r in range(1, 4):
        a(f"s_add_u32 m0, m0, 8192")
        a(f"s_add_u32 s27, s27, 8192")
        a(f"buffer_load_dwordx4 v{L16}, s[8:11], s27 offen lds")
    a(f"""
    s_waitcnt vmcnt(3)
    s_barrier
    """)
    stamp(a)
    a(f"""
    ds_read_b128 {vr(KLO[0],4)}, v{KA}
    ds_read_b32 v{KHI[0]}, v{KH}
    ds_read_b128 {vr(KLO[1],4)}, v{KA} offset:2560
    ds_read_b32 v{KHI[1]}, v{KH} offset:2560
    s_mov_b64 exec, s[22:23]
    ds_read_b128 {vr(VB[0],4)}, v{VA}
    ds_read_b128 {vr(VB[0]+4,4)}, v{VA} offset:640
    s_mov_b64 exec, -1
    s_waitcnt lgkmcnt(4)
    {M16} {vr(SA,16)}, {vr(KLO[0],4)}, {vr(QA_LO,4)}, 0
    {M8} {vr(SA,16)}, {vr(KHI[0],2)}, {vr(QA_HI,2)}, {vr(SA,16)}
    s_nop 15
    """)

    def ex(base, lo, hi):
        for i in range(lo, hi):
            a(f"v_exp_f32 v{base+i}, v{base+i}")

    a(".p2align 6")
    a("P2_LOOP:")
    for j in range(8):
        p = j & 1
        ex(SA, 0, 2)
        a(f"{SM} {vr(OB,16)}, {vr(VB[1-p]+4,4)}, {vr(SB+8,8)}, v{IDX}")
        ex(SA, 2, 4)
        a(f"{M16} {vr(SB,16)}, {vr(KLO[p],4)}, {vr(QB_LO,4)}, 0")
        ex(SA, 4, 8)
        a(f"{M8} {vr(SB,16)}, {vr(KHI[p],2)}, {vr(QB_HI,2)}, {vr(SB,16)}")
        a("s_waitcnt lgkmcnt(0)")
        if j in (1, 4):
            a(f"s_cbranch_vccnz P2_SY{j}")
            a(f"P2_SY{j}_RET:")
        a(f"ds_read_b128 {vr(KLO[p],4)}, v{KA} offset:{(j+2)*2560}")
        a(f"ds_read_b32 v{KHI[p]}, v{KH} offset:{(j+2)*2560}")
        if j == LOWJ:
            a("s_bitcmp1_b32 s24, s20")
            a(f"s_cbranch_scc1 P2_LOWP")
            a(f"P2_LOWP_RET:")
        ex(SA, 8, 12)
        a(f"{SM} {vr(OA,16)}, {vr(VB[p],4)}, {vr(SA,8)}, v{IDX}")
        ex(SA, 12, 16)
        ex(SB, 0, 2)
        a(f"{SM} {vr(OA,16)}, {vr(VB[p]+4,4)}, {vr(SA+8,8)}, v{IDX}")
        ex(SB, 2, 4)
        a(f"{M16} {vr(SA,16)}, {vr(KLO[1-p],4)}, {vr(QA_LO,4)}, 0")
        ex(SB, 4, 8)
        a(f"{M8} {vr(SA,16)}, {vr(KHI[1-p],2)}, {vr(QA_HI,2)}, {vr(SA,16)}")
        a("s_mov_b64 exec, s[22:23]")
        a(f"ds_read_b128 {vr(VB[1-p],4)}, v{VA} offset:{(j+1)*2560}")
        a(f"ds_read_b128 {vr(VB[1-p]+4,4)}, v{VA} offset:{(j+1)*2560+640}")
        a("s_mov_b64 exec, -1")
        ex(SB, 8, 12)
        a(f"{SM} {vr(OB,16)}, {vr(VB[p],4)}, {vr(SB,8)}, v{IDX}")
        ex(SB, 12, 16)
    stamp(a, lvl=3)
    a.c("chunk boundary: barriers before chunks 2 and 5; priority falls as a wave advances so the SIMD's two waves stay level")
    a(f"""
    v_add_u32 v{KA}, 20480, v{KA}
    v_add_u32 v{KH}, 20480, v{KH}
    v_add_u32 v{VA}, 20480, v{VA}
    s_add_u32 s20, s20, 1
    s_mov_b64 vcc, 0
    s_bitcmp1_b32 0x24, s20
    s_cbranch_scc0 P2_NOBAR
    s_barrier
    s_setprio 3
    s_branch P2_LOOP
    P2_LOWP:
    s_setprio 0
    s_branch P2_LOWP_RET
    P2_SY1:
    s_waitcnt vmcnt(2)
    s_barrier
    s_branch P2_SY1_RET
    P2_SY4:
    s_waitcnt vmcnt(0)
    s_barrier
    s_branch P2_SY4_RET
    P2_LOADER:
    """)
    a.c("wave 8: rounds 4..19 of the K/V image, then (once chunks 0-4 are dead) the phase-3 wo slice")
    a(f"""
    s_load_dwordx2 s[52:53], s[0:1], 16
    s_load_dwordx2 s[54:55], s[0:1], 56
    s_mov_b32 s60, 0xCCCCCCCD
    v_mul_hi_u32 v9, v1, s60
    v_lshrrev_b32 v9, 3, v9
    v_mul_u32_u24 v10, 10, v9
    v_sub_u32 v10, v1, v10
    v_mul_u32_u24 v9, 1280, v9
    v_lshl_add_u32 v8, v10, 4, v9
    s_lshr_b32 s56, s14, 2
    s_mul_i32 s56, s56, 160
    s_mov_b32 s34, {640*1280}
    s_mov_b32 s35, 0x00020000
    s_cmp_lt_u32 s13, 4
    s_waitcnt lgkmcnt(0)
    s_cselect_b32 s32, s52, s54
    s_cselect_b32 s33, s53, s55
    s_add_u32 s27, s27, {32768-8192}
    s_mov_b32 m0, 32768
    s_mov_b32 s20, 1
    s_barrier
    s_barrier
    s_barrier
    P2_LD1:
    """)
    for r in range(8):
        a(f"buffer_load_dwordx4 v{L16}, s[8:11], s27 offen lds")
        a(f"s_add_u32 m0, m0, 1024")
        a(f"s_add_u32 s27, s27, 1024")
    a(f"""
    s_add_u32 s20, s20, 1
    s_cmp_eq_u32 s20, 2
    s_cbranch_scc0 P2_LD2
    s_barrier
    P2_LD2:
    s_cmp_eq_u32 s20, 5
    s_cbranch_scc0 P2_LD3
    s_waitcnt vmcnt(16)
    s_barrier
    P2_LD3:
    s_cmp_lt_u32 s20, 17
    s_cbranch_scc1 P2_LD1
    s_waitcnt vmcnt(0)
    s_barrier
    s_lshr_b32 s57, s14, 2
    s_cmp_ge_u32 s57, 5
    s_cselect_b32 s58, 5, 0
    s_sub_u32 s57, s57, s58
    s_sub_u32 s57, 5, s57
    s_mul_i32 s57, s57, {20480*P3ROT}
    s_mov_b32 s59, 0
    s_cmp_ge_u32 s57, 102400
    s_cselect_b32 s57, 0, s57
    s_mov_b32 s58, s56
    s_barrier
    P2_LW1:
    """)
    rows = [0, 6, 12, 16, 22, 28]
    src = [0, 6, 12, 20, 26, 32]
    for t in range(6):
        a(f"""
        s_add_u32 m0, s57, {rows[t]*160}
        s_add_u32 s62, s58, {src[t]*1280}
        s_mov_b32 exec_hi, {'0xff' if t % 3 == 2 else '0x0fffffff'}
        buffer_load_dwordx4 v8, s[32:35], s62 offen lds
        """)
    a(f"""
    s_add_u32 s57, s57, 5120
    s_cmp_ge_u32 s57, 102400
    s_cselect_b32 s57, 0, s57
    s_add_u32 s58, s58, {40*1280}
    s_add_u32 s59, s59, 1
    s_cmp_lt_u32 s59, 16
    s_cbranch_scc1 P2_LW1
    s_add_u32 s58, s56, {16*1280}
    P2_LW2:
    s_mov_b32 m0, s57
    s_add_u32 s57, s57, 640
    buffer_load_dwordx4 v8, s[32:35], s58 offen lds
    s_add_u32 s58, s58, {20*1280}
    s_add_u32 s59, s59, 1
    s_cmp_lt_u32 s59, 48
    s_cbranch_scc1 P2_LW2
    s_waitcnt vmcnt(0)
    s_barrier
    s_endpgm
    P2_NOBAR:
    s_setprio 2
    s_bitcmp1_b32 0x48, s20
    s_cbranch_scc1 P2_LOOP
    s_setprio 1
    s_cmp_lt_u32 s20, 8
    s_cbranch_scc1 P2_LOOP
    s_setprio 0
    {SM} {vr(OB,16)}, {vr(VB[1]+4,4)}, {vr(SB+8,8)}, v{IDX}
    s_waitcnt lgkmcnt(0)
    s_nop 15
    """)
    stamp(a)
    dpt(a, 2)
    def lbro():
        if ONES1:
            a(f"""
            v_mov_b32 v7, v{OA+12}
            v_mov_b32 v8, v{OB+12}
            s_nop 1
            v_permlane32_swap_b32 v{OA+12}, v7
            v_permlane32_swap_b32 v{OB+12}, v8
            s_nop 1
            """)
    lbro()
    a.c("---- safety check of the unshifted softmax: l within [2^-30, 2^110], all O finite; else redo with the true max")
    a(f"""
    s_mov_b32 s30, {hex(f32bits(2.0**-30))}
    s_mov_b32 s31, {hex(f32bits(2.0**110))}
    v_mul_f32 v7, 0, v{OA}
    """)
    for i in range(1, 12):
        a(f"v_fma_f32 v7, v{OA+i}, 0, v7")
    for i in range(12):
        a(f"v_fma_f32 v7, v{OB+i}, 0, v7")
    a(f"""
    v_min_f32 v8, v{OA+12}, v{OB+12}
    v_max_f32 v9, v{OA+12}, v{OB+12}
    v_add_f32 v7, v7, v{OA+12}
    v_add_f32 v7, v7, v{OB+12}
    v_cmp_le_f32 vcc, s30, v8
    v_cmp_ge_f32 s[32:33], s31, v9
    v_cmp_o_f32 s[34:35], v7, v7
    s_nop 3
    s_and_b64 vcc, vcc, s[32:33]
    s_and_b64 vcc, vcc, s[34:35]
    s_cmp_eq_u64 vcc, -1
    s_cbranch_scc0 P2_FALLBACK
    P2_STORE:
    s_mul_i32 s36, s15, {OBR}
    s_lshl_b32 s37, s18, 5
    s_lshl_b32 s38, s3, 2
    s_add_u32 s37, s37, s38
    s_mul_i32 s37, s37, 20480
    s_add_u32 s36, s36, s37
    s_add_u32 s36, s36, {WS_O}
    s_lshr_b32 s37, s17, 1
    s_lshl_b32 s37, s37, 10
    s_and_b32 s38, s17, 1
    s_lshl_b32 s38, s38, 9
    s_add_u32 s37, s37, s38
    s_add_u32 s37, s37, s36
    s_lshr_b32 s38, s17, 3
    s_lshl_b32 s38, s38, 10
    s_add_u32 s38, s38, 16384
    s_bfe_u32 s39, s17, 0x10002
    s_lshl_b32 s39, s39, 9
    s_add_u32 s38, s38, s39
    s_and_b32 s39, s17, 1
    s_lshl_b32 s39, s39, 8
    s_add_u32 s38, s38, s39
    s_bfe_u32 s39, s17, 0x10001
    s_lshl_b32 s39, s39, 3
    s_add_u32 s38, s38, s39
    s_add_u32 s38, s38, s36
    v_and_b32 v7, 15, v{VL}
    v_lshlrev_b32 v7, 4, v7
    v_bfe_u32 v8, v{VL}, 4, 1
    v_mul_u32_u24 v8, 20480, v8
    v_add_u32 v7, v7, v8
    v_lshrrev_b32 v8, 5, v{VL}
    v_lshl_add_u32 v8, v8, 8, v7
    v_rcp_f32 v10, v{OA+12}
    v_rcp_f32 v11, v{OB+12}
    s_add_u32 s40, s37, 40960
    s_add_u32 s41, s38, 40960
    """)
    for (o, r, t) in ((OA, 10, SA), (OB, 11, SB)):
        for i in range(12):
            a(f"v_mul_f32 v{o+i}, v{o+i}, v{r}")
        for i in range(6):
            a(f"v_cvt_pk_bf16_f32 v{t+i}, v{o+2*i}, v{o+2*i+1}")
    a(f"""
    buffer_store_dwordx4 {vr(SA,4)}, v8, s[8:11], s37 offen {STMOD}
    buffer_store_dwordx4 {vr(SB,4)}, v8, s[8:11], s40 offen {STMOD}
    s_mov_b32 exec_hi, 0
    buffer_store_dwordx2 {vr(SA+4,2)}, v7, s[8:11], s38 offen {STMOD}
    buffer_store_dwordx2 {vr(SB+4,2)}, v7, s[8:11], s41 offen {STMOD}
    s_mov_b64 exec, -1
    """)
    stamp(a)
    a("s_branch P2_DONE")
    a.c("---- fallback: textbook two-pass softmax with the true row max, K/V fragments straight from the workspace image")
    a(f"""
    P2_FALLBACK:
    v_mov_b32 v{MA}, 0xff800000
    v_mov_b32 v{MB}, 0xff800000
    v_subrev_u32 v{KH}, {8*20480}, v{KH}
    v_subrev_u32 v{VA}, {8*20480}, v{VA}
    s_mul_i32 s27, s21, {KVUNIT}
    s_add_u32 s27, s27, {WS_KV}
    s_mov_b32 s26, s27
    s_mov_b32 s20, 0
    P2_FB1:
    buffer_load_dwordx4 {vr(KLO[0],4)}, v{L16}, s[8:11], s26 offen
    buffer_load_dword v{KHI[0]}, v{KH}, s[8:11], s26 offen
    s_add_u32 s26, s26, 2560
    s_waitcnt vmcnt(0)
    {M16} {vr(SA,16)}, {vr(KLO[0],4)}, {vr(QA_LO,4)}, 0
    {M8} {vr(SA,16)}, {vr(KHI[0],2)}, {vr(QA_HI,2)}, {vr(SA,16)}
    {M16} {vr(SB,16)}, {vr(KLO[0],4)}, {vr(QB_LO,4)}, 0
    {M8} {vr(SB,16)}, {vr(KHI[0],2)}, {vr(QB_HI,2)}, {vr(SB,16)}
    s_nop 15
    """)
    for i in range(8):
        a(f"v_max3_f32 v{MA}, v{SA+2*i}, v{SA+2*i+1}, v{MA}")
        a(f"v_max3_f32 v{MB}, v{SB+2*i}, v{SB+2*i+1}, v{MB}")
    a(f"""
    s_add_u32 s20, s20, 1
    s_cmp_lt_u32 s20, 64
    s_cbranch_scc1 P2_FB1
    v_mov_b32 v7, v{MA}
    v_mov_b32 v8, v{MB}
    s_nop 1
    v_permlane32_swap_b32 v7, v{MA}
    v_permlane32_swap_b32 v8, v{MB}
    s_nop 1
    v_max_f32 v{MA}, v{MA}, v7
    v_max_f32 v{MB}, v{MB}, v8
    """)
    for i in range(32):
        a(f"v_mov_b32 v{OA+i}, 0")
    a(f"""
    s_mov_b32 s20, 0
    P2_FB2:
    buffer_load_dwordx4 {vr(KLO[0],4)}, v{L16}, s[8:11], s27 offen
    buffer_load_dword v{KHI[0]}, v{KH}, s[8:11], s27 offen
    s_mov_b64 exec, s[22:23]
    buffer_load_dwordx4 {vr(VB[0],4)}, v{VA}, s[8:11], s27 offen
    buffer_load_dwordx4 {vr(VB[0]+4,4)}, v{VA}, s[8:11], s27 offen offset:640
    s_mov_b64 exec, -1
    s_add_u32 s27, s27, 2560
    s_waitcnt vmcnt(0)
    {M16} {vr(SA,16)}, {vr(KLO[0],4)}, {vr(QA_LO,4)}, 0
    {M8} {vr(SA,16)}, {vr(KHI[0],2)}, {vr(QA_HI,2)}, {vr(SA,16)}
    {M16} {vr(SB,16)}, {vr(KLO[0],4)}, {vr(QB_LO,4)}, 0
    {M8} {vr(SB,16)}, {vr(KHI[0],2)}, {vr(QB_HI,2)}, {vr(SB,16)}
    s_nop 15
    """)
    for i in range(16):
        a(f"v_sub_f32 v{SA+i}, v{SA+i}, v{MA}")
        a(f"v_sub_f32 v{SB+i}, v{SB+i}, v{MB}")
    ex(SA, 0, 16)
    ex(SB, 0, 16)
    a(f"""
    s_nop 1
    {SM} {vr(OA,16)}, {vr(VB[0],4)}, {vr(SA,8)}, v{IDX}
    {SM} {vr(OA,16)}, {vr(VB[0]+4,4)}, {vr(SA+8,8)}, v{IDX}
    {SM} {vr(OB,16)}, {vr(VB[0],4)}, {vr(SB,8)}, v{IDX}
    {SM} {vr(OB,16)}, {vr(VB[0]+4,4)}, {vr(SB+8,8)}, v{IDX}
    s_add_u32 s20, s20, 1
    s_cmp_lt_u32 s20, 64
    s_cbranch_scc1 P2_FB2
    s_nop 15
    """)
    lbro()
    a("""
    s_branch P2_STORE
    P2_DONE:
    """)


P3_TR = 102400


def phase3(a):
    WF = [16, 36]
    ACC = 56
    OF = 96
    NR = LA + 1
    assert OF + 8 * NR <= STV
    SA_ = [6, 8, 12, 13, 14]
    a(f"""
    s_load_dwordx2 s[36:37], s[0:1], 64
    s_lshr_b32 s15, s13, 2
    s_and_b32 s20, s13, 3
    s_lshl_b32 s20, s20, 2
    s_and_b32 s21, s14, 3
    s_add_u32 s20, s20, s21
    s_lshr_b32 s21, s14, 2
    """)
    a.c("s15 br, s20 token tile(128), s21 col tile(80)")
    a(f"""
    s_mul_i32 s22, s15, {OBR}
    s_lshl_b32 s23, s20, 3
    s_lshl_b32 s24, s3, 1
    s_add_u32 s23, s23, s24
    s_mul_i32 s23, s23, 20480
    s_add_u32 s22, s22, s23
    s_add_u32 s22, s22, {WS_O}
    s_cmp_ge_u32 s21, 5
    s_cselect_b32 s25, 5, 0
    s_sub_u32 s25, s21, s25
    s_mul_i32 s25, s25, {4096*P3ROT}
    s_add_u32 s26, s22, 20480
    s_add_u32 s22, s22, s25
    s_add_u32 s23, s22, 20480
    s_mul_i32 s24, s21, 160
    s_mov_b32 s28, 0xCCCCCCCD
    s_mov_b32 s38, {2048*2560}
    s_mov_b32 s39, 0x00020000
    v_lshrrev_b32 v4, 5, v1
    v_lshlrev_b32 v4, 4, v4
    v_bfe_u32 v5, v1, 4, 1
    v_lshl_add_u32 v4, v5, 2, v4
    v_bfe_u32 v5, v1, 2, 2
    v_add_u32 v4, v4, v5
    v_mul_u32_u24 v4, 160, v4
    v_and_b32 v5, 3, v1
    v_mul_u32_u24 v5, 40, v5
    v_add_u32 v4, v4, v5
    v_add_u32 v5, {10*5120}, v4
    s_lshl_b32 s40, s20, 7
    s_lshl_b32 s41, s3, 5
    s_add_u32 s40, s40, s41
    s_mul_i32 s40, s40, 2560
    s_mul_i32 s41, s15, 1280
    s_add_u32 s40, s40, s41
    s_add_u32 s40, s40, s24
    s_mul_i32 s42, s3, 5120
    s_add_u32 s42, s42, {P3_TR}
    """)
    for t in range(5):
        a(f"""
        v_add_u32 v20, {64*t}, v1
        v_mul_hi_u32 v21, v20, s28
        v_lshrrev_b32 v21, 3, v21
        v_mul_u32_u24 v22, 10, v21
        v_sub_u32 v22, v20, v22
        v_mul_u32_u24 v21, 2560, v21
        v_lshl_add_u32 v{SA_[t]}, v22, 4, v21
        """)
    a(f"""
    v_and_b32 v3, 15, v1
    v_mul_u32_u24 v3, 160, v3
    v_lshrrev_b32 v20, 4, v1
    v_mul_u32_u24 v20, 40, v20
    v_add3_u32 v3, v3, v20, s42
    v_add_u32 v15, s42, v2
    """)
    for i in range(40):
        a(f"v_mov_b32 v{ACC+i}, 0")
    a("s_waitcnt lgkmcnt(0)")
    handoff(a, "H2", 1, 0, f"""
    s_lshl_b32 s49, s15, 4
    s_lshr_b32 s50, s20, 2
    s_add_u32 s49, s49, s50
    s_lshl_b32 s49, s49, 3
    v_bfe_u32 v10, v1, 3, 2
    v_lshlrev_b32 v10, 5, v10
    v_and_b32 v9, 7, v1
    v_add3_u32 v9, v9, v10, s49
    s_mov_b32 s50, -1
    s_mov_b32 s51, 0
    """, 120)
    a("""
    s_cmp_lt_u32 s3, 4
    s_cbranch_scc1 P3_GO
    """)
    stamp_store(a)
    a("s_endpgm")
    a("P3_GO:")

    def reads(kap, st):
        base, off = (4, kap * 5120) if kap < 10 else (5, (kap - 10) * 5120)
        return [f"ds_read_b64_tr_b16 {vr(WF[st]+4*j+2*i,2)}, v{base} offset:{off+i*1280+8*j}" for j in range(5) for i in range(2)]

    def ofr(kap, tt):
        return OF + (kap % NR) * 8 + tt * 4

    def oloads(kap):
        r = []
        for tt in range(2):
            x = f"buffer_load_dwordx4 {vr(ofr(kap,tt),4)}, v2, s[8:11], s{22+tt} offen offset:{(kap&3)*1024} {OLDMOD}"
            if kap & 3 == 3 and tt == 1:
                x += "\ns_add_u32 s22, s22, 4096\ns_cmp_eq_u32 s22, s26\ns_cselect_b32 s25, 20480, 0\ns_sub_u32 s22, s22, s25\ns_add_u32 s23, s22, 20480"
            r.append(x)
        return r
    for x in reads(0, 0):
        a(x)
    a("s_barrier")
    stamp(a)
    dpt(a, 3)
    issued = 0
    for k in range(LA):
        for x in oloads(k):
            a(x)
            issued += 1
    for kap in range(20):
        st = kap & 1
        nxt = kap + 1
        pend = oloads(kap + LA) if kap + LA < 20 else []
        a(f"s_waitcnt vmcnt({issued - 2*(kap+1)}) lgkmcnt(0)")
        for x in pend:
            a(x)
            issued += 1
        r = reads(nxt, 1 - st) if nxt < 20 else []
        for j in range(5):
            for tt in range(2):
                d = vr(ACC + (tt * 5 + j) * 4, 4)
                a(f"{M1632} {d}, {vr(WF[st]+4*j,4)}, {vr(ofr(kap,tt),4)}, {d}")
                for _ in range(2):
                    if r:
                        a(r.pop(0))
    stamp(a)
    a.c("---- epilogue: pack, transpose through LDS so each store covers whole row segments")
    a("s_nop 7")
    for tt in range(2):
        t = 16 + tt * 10
        for j in range(5):
            b = ACC + (tt * 5 + j) * 4
            a(f"v_cvt_pk_bf16_f32 v{t+2*j}, v{b}, v{b+1}")
            a(f"v_cvt_pk_bf16_f32 v{t+2*j+1}, v{b+2}, v{b+3}")
            a(f"ds_write_b64 v3, {vr(t+2*j,2)} offset:{tt*2560+8*j}")
    a("s_waitcnt lgkmcnt(0)")
    for t in range(5):
        a(f"ds_read_b128 {vr(OF+4*t,4)}, v15 offset:{t*1024}")
    for t in range(5):
        a(f"s_waitcnt lgkmcnt({4-t})")
        a(f"buffer_store_dwordx4 {vr(OF+4*t,4)}, v{SA_[t]}, s[36:39], s40 offen {OUTMOD}")
    stamp(a)
    if STAMP:
        a("s_waitcnt vmcnt(0)")
    stamp(a)
    stamp_store(a)
    dpt(a, 4)
    dfin(a)
    a("KEND:")
    a("s_endpgm")


def main(path):
    a = Asm()
    a.l += [
        "; Fused MHA (branch A) + MQA (branch B) attention block in one launch: 256 workgroups (one per CU) x 9 waves.",
        ";   phase 1: Q/K/V projections -> workspace images laid out as MFMA fragments",
        ";   phase 2: softmax(QK^T)V per (head, 512 queries), K/V image resident in LDS, P fed to a sparse MFMA as raw fp32",
        ";   phase 3: output projections, concatenated into d_out",
        "; Hand-offs between phases: write-through stores + one time-stamped flag line per workgroup in the workspace.",
        "; Generated by dev/gen9.py (hand-written generator).",
        f"; @launch grid=(256,1,1) block=(576,1,1) lds={LDS}",
        '.amdgcn_target "amdgcn-amd-amdhsa--gfx950"',
        ".text",
        f".globl {KN}",
        ".p2align 8",
        f".type {KN},@function",
        f"{KN}:",
    ]
    phase1(a)
    phase2(a)
    phase3(a)
    a.l += [
        '.section .rodata,"a"',
        ".p2align 6",
        f".amdhsa_kernel {KN}",
        f"  .amdhsa_next_free_vgpr {NV}",
        "  .amdhsa_next_free_sgpr 102",
        f"  .amdhsa_accum_offset {NV}",
        "  .amdhsa_group_segment_fixed_size 0",
        "  .amdhsa_kernarg_size 88",
        "  .amdhsa_user_sgpr_count 2",
        "  .amdhsa_user_sgpr_kernarg_segment_ptr 1",
        "  .amdhsa_system_sgpr_workgroup_id_x 1",
        ".end_amdhsa_kernel",
    ]
    open(path, "w").write(a.text())
    print(f"{KN} 256 576 {LDS}")


if __name__ == "__main__":
    main(sys.argv[1] if len(sys.argv) > 1 else f"cdna_kernels/{NAME}.s")
```

```python
import math, os, re, struct, sys

NAME = "concat_heads__softmax_full_mha__grouped_kv_mqa__prompt"
KN = NAME + "_kernel"

WS_Q = 0
QUNIT = 81920
WS_KV = 0x500000
KVUNIT = 163840
WS_O = 0xA40000
OBR = 0x280000
WS_FLAG = WS_O + 2 * OBR
WS_ST = 0xF80000
WS_SIZE = 0x1000000
LDS = 163840
NV = 168

env = lambda k, d: os.environ.get(k, d)
STAMP = int(env("STAMP", "0"))
ROT_MASK = int(env("ROT_MASK", "3"))
ROT_MUL = int(env("ROT_MUL", "10"))
ROT_P = int(env("ROT_P", "0"))
ROT_H = int(env("ROT_H", "0"))
POLL_SLEEP = int(env("POLL_SLEEP", "4"))
NPOLL = int(env("NPOLL", "1"))
LA = int(env("K3_LA", "7"))
STMOD = env("STMOD", "sc1")
OUTMOD = env("OUTMOD", "nt")
LOWJ = int(env("LOWJ", "6"))
P3ROT = int(env("P3ROT", "0"))
ONES1 = int(env("ONES1", "1"))
OLDMOD = env("OLDMOD", "")
FILLQ = int(env("FILLQ", "4"))
LA3 = int(env("LA3", "0"))
RT_SLEEP = int(env("RT_SLEEP", "2"))
XMOD = env("XMOD", "")
WMOD = env("WMOD", "")
LOWY = int(env("LOWY", "0"), 0)
SPIN_MAX = 1 << 16
STV = 166
NOMORE = False


def f32bits(x):
    return struct.unpack("<I", struct.pack("<f", x))[0]


QSCALE = (20.0 ** -0.5) * math.log2(math.e)


class Asm:
    def __init__(self):
        self.l = []

    def __call__(self, s):
        for line in s.strip("\n").split("\n"):
            t = line.strip()
            if t:
                self.l.append(t if t.endswith(":") else "  " + t)

    def c(self, s):
        self.l.append("  ; " + s)

    def text(self):
        return "\n".join(self.l) + "\n"


def vr(b, n):
    return f"v[{b}:{b+n-1}]"


def stamp(a, first=False, lvl=1):
    if STAMP < lvl or (STAMP == 2 and NOMORE):
        return
    if first:
        a(f"v_mov_b32 v{STV}, 0")
        a("s_mov_b32 s91, 0")
    a(f"""
    s_memtime s[96:97]
    s_memrealtime s[98:99]
    s_waitcnt lgkmcnt(0)
    s_mov_b32 s90, m0
    s_mov_b32 m0, s91
    s_nop 0
    v_writelane_b32 v{STV}, s96, m0
    s_add_u32 m0, s91, 1
    s_nop 0
    v_writelane_b32 v{STV}, s98, m0
    s_add_u32 s91, s91, 2
    s_mov_b32 m0, s90
    """)


def stamp_store(a):
    if not STAMP:
        return
    a(f"""
    s_mov_b32 exec_lo, -1
    s_mov_b32 exec_hi, 0
    s_lshl_b32 s92, s2, 3
    s_add_u32 s92, s92, s3
    s_lshl_b32 s92, s92, 7
    s_add_u32 s92, s92, {WS_ST}
    v_mbcnt_lo_u32_b32 v{STV+1}, -1, 0
    v_lshlrev_b32 v{STV+1}, 2, v{STV+1}
    buffer_store_dword v{STV}, v{STV+1}, s[8:11], s92 offen
    """)


DIAG = env("DIAG", "")
def dpt(a, k):
    if DIAG:
        a(f"s_memrealtime s[{82+2*k}:{83+2*k}]")
        a("s_waitcnt lgkmcnt(0)")
def dfin(a):
    if not DIAG:
        return
    if DIAG == "xcc":
        a("""
        s_getreg_b32 s92, hwreg(HW_REG_XCC_ID)
        s_and_b32 s92, s92, 7
        s_and_b32 s93, s2, 7
        s_cmp_eq_u32 s92, s93
        s_cselect_b32 s92, 0, 3000
        """)
    else:
        A, B = DIAG.split("-")
        ra = "s6" if A == "s" else f"s{82+2*int(A)}"
        a(f"""
        s_or_b32 s92, s2, s3
        s_cmp_lg_u32 s92, 0
        s_cbranch_scc1 KEND
        s_sub_u32 s92, s{82+2*int(B)}, {ra}
        s_lshl_b32 s92, s92, 2
        """)
    a("""
    s_memrealtime s[94:95]
    s_waitcnt lgkmcnt(0)
    s_add_u32 s92, s92, s94
    DSPIN:
    s_memrealtime s[94:95]
    s_waitcnt lgkmcnt(0)
    s_sub_u32 s93, s94, s92
    s_cmp_lt_i32 s93, 0
    s_cbranch_scc1 DSPIN
    """)

M16 = "v_mfma_f32_32x32x16_bf16"
M8 = "v_mfma_f32_32x32x8_bf16"
SM = "v_smfmac_f32_32x32x32_bf16"
M1632 = "v_mfma_f32_16x16x32_bf16"

WOFF = 16384
EOFF = WOFF + 4 * 5184
SLOT = EOFF + 2560 + 64
NSLOT = 4
assert NSLOT * SLOT <= LDS


def phase1(a):
    a(f"""
    s_cmp_ge_u32 s2, 256
    s_cbranch_scc1 KEND
    """)
    if env("PERM", ""):
        a(f"s_mul_i32 s2, s2, {env('PERM', '')}")
        a("s_and_b32 s2, s2, 255")
    stamp(a, True)
    a(f"""
    s_load_dwordx16 s[16:31], s[0:1], 0
    s_load_dwordx2 s[8:9], s[0:1], 80
    s_memrealtime s[6:7]
    v_and_b32 v1, 63, v0
    v_lshrrev_b32 v2, 6, v0
    s_and_b32 s50, s2, 7
    v_readfirstlane_b32 s3, v2
    s_lshr_b32 s51, s2, 3
    s_and_b32 s52, s51, 7
    s_lshr_b32 s53, s51, 3
    s_and_b32 s54, s50, 1
    s_lshr_b32 s55, s50, 1
    s_lshl_b32 s56, s54, 3
    s_add_u32 s56, s56, s52
    s_mov_b32 s10, {WS_SIZE}
    s_mov_b32 s11, 0x00020000
    """)
    a.c("s3 wave, s[8:11] ws SRD, s[6:7] start time; s52 mt, s53 nt, s54 mhalf, s55 part(0 Q,1 K,2 V,3 B), s56 m tile 0..15")
    a(f"""
    s_cmp_eq_u32 s55, 3
    s_cselect_b32 s57, 1, 0
    s_mov_b32 s58, 3840
    s_cselect_b32 s58, 1280, s58
    s_cselect_b32 s59, 0, s55
    s_mul_i32 s59, s59, 1280
    s_mul_i32 s60, s53, 320
    s_add_u32 s59, s59, s60
    s_cmp_ge_u32 s3, 4
    s_cbranch_scc1 P1_LOADER
    """)
    a.c("s57 isB, s58 W row stride, s59 W col byte base")
    XA = [4, 5, 6, 7]
    WA, EA = 8, 9
    T = [10, 11, 12, 13, 14]
    XF = [16, 32]
    WF = 48
    EF = 68
    ACC = 72
    EACC = 152
    a.c("---- compute wave setup: s61 wm, s62 wn, s63 flip (B WGs with nt odd)")
    a(f"""
    s_and_b32 s61, s3, 1
    s_lshr_b32 s62, s3, 1
    s_and_b32 s63, s53, s57
    v_and_b32 v2, 15, v1
    v_lshrrev_b32 v3, 4, v1
    s_cmp_eq_u32 s55, 2
    s_cselect_b64 s[64:65], -1, 0
    v_bfe_u32 v22, v2, 1, 3
    v_bfe_u32 v23, v2, 1, 1
    v_lshrrev_b32 v24, 2, v2
    v_lshl_or_b32 v23, v24, 1, v23
    v_cndmask_b32 v22, v22, v23, s[64:65]
    v_and_b32 v23, 3, v2
    v_lshl_add_u32 v23, v24, 3, v23
    v_cndmask_b32 v23, v2, v23, s[64:65]
    s_lshl_b32 s66, s61, 13
    s_lshl_b32 s67, s63, 12
    s_add_u32 s68, s66, s67
    s_xor_b32 s67, s67, 4096
    s_add_u32 s69, s66, s67
    v_lshlrev_b32 v23, 7, v23
    """)
    for ks in range(2):
        a(f"""
        v_add_u32 v24, {4*ks}, v3
        v_xor_b32 v24, v24, v22
        v_lshl_add_u32 v24, v24, 4, v23
        v_add_u32 v{XA[2*ks]}, s68, v24
        v_add_u32 v{XA[2*ks+1]}, s69, v24
        """)
    a(f"""
    v_bfe_u32 v22, v1, 2, 2
    v_lshl_add_u32 v22, v3, 3, v22
    v_and_b32 v24, 3, v1
    v_mul_u32_u24 v{WA}, 320, v22
    v_and_b32 v25, 1, v3
    v_lshl_add_u32 v{WA}, v25, 5, v{WA}
    v_lshrrev_b32 v25, 1, v3
    v_lshl_add_u32 v{WA}, v25, 6, v{WA}
    v_mul_u32_u24 v25, 40, v24
    v_lshlrev_b32 v26, 3, v24
    v_cndmask_b32 v25, v25, v26, s[64:65]
    s_mul_i32 s66, s62, 160
    s_add_u32 s66, s66, {WOFF}
    v_add3_u32 v{WA}, v{WA}, v25, s66
    v_mul_u32_u24 v{EA}, 40, v22
    s_lshl_b32 s66, s62, 5
    s_add_u32 s66, s66, {EOFF}
    v_add3_u32 v{EA}, v{EA}, v26, s66
    """)
    for i in range(88):
        a(f"v_mov_b32 v{ACC+i}, 0")
    a.c("store geometry: s70 unit size, s71 tile size, s72/s73 soffset for slot pair 0/1, s74 extra soffset")
    a(f"""
    s_sub_u32 s66, s55, 1
    s_cmp_lt_u32 s66, 2
    s_mov_b32 s70, {QUNIT}
    s_cselect_b32 s70, {KVUNIT}, s70
    s_mov_b32 s71, 1280
    s_cselect_b32 s71, 2560, s71
    s_cselect_b32 s72, {WS_KV}, {WS_Q}
    s_lshl_b32 s66, s53, 3
    s_lshl_b32 s67, s57, 5
    s_add_u32 s66, s66, s67
    s_lshl_b32 s67, s62, 2
    s_add_u32 s66, s66, s67
    s_mul_i32 s66, s66, s70
    s_add_u32 s72, s72, s66
    s_lshl_b32 s66, s56, 2
    s_lshl_b32 s67, s61, 1
    s_add_u32 s66, s66, s67
    s_add_u32 s67, s66, s63
    s_xor_b32 s76, s63, 1
    s_add_u32 s66, s66, s76
    s_mul_i32 s76, s66, s71
    s_add_u32 s73, s72, s76
    s_mul_i32 s76, s67, s71
    s_add_u32 s72, s72, s76
    s_mul_i32 s74, s67, 2560
    s_add_u32 s74, s74, {WS_KV + 32*KVUNIT}
    v_mul_lo_u32 v22, v3, s70
    v_lshl_add_u32 v{T[0]}, v2, 4, v22
    v_lshl_add_u32 v{T[1]}, v2, 3, v22
    v_add_u32 v{T[1]}, 1024, v{T[1]}
    v_mov_b32 v{T[2]}, 0
    v_mov_b32 v{T[3]}, 0
    v_mov_b32 v{T[4]}, 0
    s_cmp_eq_u32 s55, 2
    s_cbranch_scc0 P1_SETUP_DONE
    s_mov_b32 s76, 0xCCCCCCCD
    v_lshrrev_b32 v25, 1, v3
    v_mul_u32_u24 v25, 640, v25
    v_and_b32 v26, 1, v3
    v_mul_u32_u24 v26, 320, v26
    v_add3_u32 v25, v25, v26, s71
    v_subrev_u32 v25, 1280, v25
    """)
    for n5 in range(5):
        a(f"""
        v_add_u32 v22, {16*n5}, v2
        v_mul_hi_u32 v23, v22, s76
        v_lshrrev_b32 v23, 4, v23
        v_mul_u32_u24 v24, 20, v23
        v_sub_u32 v24, v22, v24
        v_mul_lo_u32 v23, v23, s70
        v_lshl_add_u32 v23, v24, 4, v23
        v_add_u32 v{T[n5]}, v23, v25
        """)
    a("P1_SETUP_DONE:")
    a.c("s76: variant 0 QK, 1 V, 2 QK+Kextra, 3 QK+Vextra; s78 stage counter")
    a(f"""
    s_mov_b32 s76, 0
    s_cmp_eq_u32 s55, 2
    s_cselect_b32 s76, 1, s76
    s_lshr_b32 s66, s53, 1
    s_add_u32 s66, s66, 2
    s_cmp_eq_u32 s57, 1
    s_cselect_b32 s76, s66, s76
    s_mov_b32 s78, 0
    s_mov_b32 s79, {SLOT}
    s_waitcnt lgkmcnt(0)
    s_barrier
    """)
    stamp(a)

    def wreads(g, ks, orient):
        if g < 5:
            return [(f"W{g}", f"ds_read_b64_tr_b16 {vr(WF+4*g+2*i,2)}, v{WA} offset:{ks*(320*32+128)+i*1280+g*(32 if orient else 8)}") for i in range(2)]
        return [("W5", f"ds_read_b64_tr_b16 {vr(EF+2*i,2)}, v{EA} offset:{(32*ks+4*i)*40}") for i in range(2)]

    def xreads(ks, xs, orient):
        return [(f"X{xs}{s_}", f"ds_read_b128 {vr(XF[xs]+4*s_,4)}, v{XA[2*ks+(s_>>1)]} offset:{(s_&1)*(512 if orient else 2048)}") for s_ in range(4)]

    def mlist(xs, orient, extra):
        m = []
        for g in range(6 if extra else 5):
            for s_ in range(4 if g < 5 else 2):
                w, x = vr(WF+4*g if g < 5 else EF, 4), vr(XF[xs]+4*s_, 4)
                d = vr(ACC+(s_*5+g)*4 if g < 5 else EACC+4*s_, 4)
                o = orient if g < 5 else (extra == 2)
                m.append((g, (f"W{g}",) + tuple(f"X{xs}{t_}" for t_ in range(4 if s_ == 0 else 0)), f"{M1632} {d}, {x}, {w}, {d}" if o else f"{M1632} {d}, {w}, {x}, {d}"))
        return m

    def body(orient, extra):
        G = 6 if extra else 5
        items = []
        BARG = 1
        tail = []
        for half in range(2):
            ml = mlist(half, orient, extra)
            q = [("r",) + r for r in wreads(G - 1, half, orient)]
            if half == 0:
                q += [("r",) + r for r in xreads(1, 1, orient)]
            for n, (g, deps, txt) in enumerate(ml):
                items.append(("m", deps, txt))
                last = n + 1 == len(ml) or ml[n + 1][0] != g
                if last and g < G - 1:
                    if half == 0:
                        q += [("r",) + r for r in wreads(g, 1, orient)]
                    elif g == BARG:
                        assert not q
                        items.append(("bar",))
                        q += [("v", f"v_add_u32 v{r}, s77, v{r}") for r in [WA, XA[0], XA[1]]]
                        q += [("r",) + r for r in wreads(0, 0, orient) + xreads(0, 0, orient)]
                        for g2 in range(1, BARG + 1):
                            q += [("r",) + r for r in wreads(g2, 0, orient)]
                        q += [("v", f"v_add_u32 v{r}, s77, v{r}") for r in [XA[2], XA[3]] + ([EA] if extra else [])]
                    elif g > BARG:
                        q += [("r",) + r for r in wreads(g, 0, orient)]
                for _ in range(1 if (last and len(q) <= FILLQ) else 2):
                    if q:
                        it = q.pop(0)
                        items.append(it)
                        if half == 1 and it[0] == "r" and ("bar",) in items:
                            tail.append(it)
            assert not q, (half, q)
        return tail, items

    def emit_body(tail, items):
        seq = [it[1] for it in tail]
        waits = []
        for ps in range(2):
            done = 0 if ps == 0 else done
            w = []
            for it in items:
                if it[0] == "r":
                    seq.append(it[1])
                    w.append(None)
                elif it[0] == "bar":
                    done = len(seq)
                    w.append(0)
                elif it[0] == "m":
                    need = max(max(k for k, x in enumerate(seq) if x == d) for d in it[1]) + 1
                    if need > done:
                        w.append(len(seq) - need)
                        done = need
                    else:
                        w.append(None)
                else:
                    w.append(None)
            waits.append(w)
        for it, w0, w1 in zip(items, *waits):
            ws_ = [x for x in (w0, w1) if x is not None]
            if it[0] == "bar":
                a(f"""
                s_waitcnt lgkmcnt(0)
                s_barrier
                """)
                continue
            if ws_:
                assert min(ws_) <= 15
                a(f"s_waitcnt lgkmcnt({min(ws_)})")
            a(it[-1])

    variants = [(0, 0), (1, 0), (0, 1), (0, 2)]
    a(f"""
    s_cmp_eq_u32 s76, 1
    s_cbranch_scc1 P1_V1
    s_cmp_eq_u32 s76, 2
    s_cbranch_scc1 P1_V2
    s_cmp_eq_u32 s76, 3
    s_cbranch_scc1 P1_V3
    """)
    for vi, (orient, extra) in enumerate(variants):
        tail, items = body(orient, extra)
        a(f"P1_V{vi}:")
        for it in tail:
            a(it[2])
        a(f"P1_L{vi}:")
        a(f"""
        s_and_b32 s77, s78, 3
        s_cmp_eq_u32 s77, 3
        s_cselect_b32 s77, {(-3*SLOT) & 0xffffffff}, s79
        """)
        emit_body(tail, items)
        stamp(a, lvl=2)
        a(f"""
        s_add_u32 s78, s78, 1
        s_cmp_lt_u32 s78, 10
        s_cbranch_scc1 P1_L{vi}
        """)
        if vi == 1:
            a("s_branch P1_EPI_V")
        elif vi < 3:
            a("s_branch P1_EPI_QK")
    a("P1_EPI_QK:")
    stamp(a)
    a(f"""
    s_nop 7
    s_waitcnt lgkmcnt(0)
    s_cmp_eq_u32 s55, 1
    s_cbranch_scc1 P1_NOSCALE
    s_mov_b32 s80, {hex(f32bits(QSCALE))}
    s_mov_b32 s81, {hex(f32bits(QSCALE))}
    """)
    for i in range(0, 80, 2):
        a(f"v_pk_mul_f32 {vr(ACC+i,2)}, s[80:81], {vr(ACC+i,2)}")
    a("P1_NOSCALE:")
    for s_ in range(4):
        t = 16 + 12 * s_
        for n5 in range(5):
            b = ACC + (s_ * 5 + n5) * 4
            a(f"v_cvt_pk_bf16_f32 v{t+2*n5}, v{b}, v{b+1}")
            a(f"v_cvt_pk_bf16_f32 v{t+2*n5+1}, v{b+2}, v{b+3}")
        so = f"s{72+(s_>>1)}"
        a(f"buffer_store_dwordx4 {vr(t,4)}, v{T[0]}, s[8:11], {so} offen offset:{(s_&1)*256} {STMOD}")
        a(f"buffer_store_dwordx4 {vr(t+4,4)}, v{T[0]}, s[8:11], {so} offen offset:{(s_&1)*256+512} {STMOD}")
        a(f"buffer_store_dwordx2 {vr(t+8,2)}, v{T[1]}, s[8:11], {so} offen offset:{(s_&1)*128} {STMOD}")
    TX = 70
    a(f"""
    s_cmp_lt_u32 s76, 2
    s_cbranch_scc1 P1_DONE
    v_cvt_pk_bf16_f32 v64, v{EACC}, v{EACC+1}
    v_cvt_pk_bf16_f32 v65, v{EACC+2}, v{EACC+3}
    v_cvt_pk_bf16_f32 v66, v{EACC+4}, v{EACC+5}
    v_cvt_pk_bf16_f32 v67, v{EACC+6}, v{EACC+7}
    v_lshrrev_b32 v68, 1, v3
    v_and_b32 v69, 1, v3
    s_cmp_eq_u32 s76, 3
    s_cbranch_scc1 P1_EPI_VX
    s_cmp_eq_u32 s62, 1
    s_cbranch_scc1 P1_EPI_KX1
    v_lshlrev_b32 v{TX}, 9, v68
    v_lshl_add_u32 v{TX}, v69, 3, v{TX}
    v_lshl_add_u32 v{TX}, v2, 4, v{TX}
    buffer_store_dwordx2 v[64:65], v{TX}, s[8:11], s74 offen {STMOD}
    buffer_store_dwordx2 v[66:67], v{TX}, s[8:11], s74 offen offset:256 {STMOD}
    s_branch P1_DONE
    P1_EPI_KX1:
    v_lshlrev_b32 v{TX}, 3, v2
    s_mov_b32 exec_lo, 0xffff
    s_mov_b32 exec_hi, 0
    buffer_store_dwordx2 v[64:65], v{TX}, s[8:11], s74 offen offset:1024 {STMOD}
    buffer_store_dwordx2 v[66:67], v{TX}, s[8:11], s74 offen offset:1152 {STMOD}
    s_mov_b64 exec, -1
    s_branch P1_DONE
    P1_EPI_VX:
    v_mul_u32_u24 v{TX}, 320, v68
    v_lshl_add_u32 v{TX}, v69, 3, v{TX}
    v_lshl_add_u32 v{TX}, v2, 4, v{TX}
    s_lshl_b32 s66, s62, 8
    s_add_u32 s74, s74, s66
    s_cmp_eq_u32 s62, 1
    s_mov_b32 s66, 0x000f000f
    s_cselect_b32 s66, s66, -1
    s_mov_b32 exec_lo, s66
    s_mov_b32 exec_hi, s66
    buffer_store_dwordx2 v[64:65], v{TX}, s[8:11], s74 offen offset:1280 {STMOD}
    buffer_store_dwordx2 v[66:67], v{TX}, s[8:11], s74 offen offset:1920 {STMOD}
    s_mov_b64 exec, -1
    s_branch P1_DONE
    P1_EPI_V:
    """)
    stamp(a)
    a("s_nop 7")
    a("s_waitcnt lgkmcnt(0)")
    for pr in range(2):
        for n5 in range(5):
            t = 16 + 4 * (pr * 5 + n5)
            for h in range(2):
                b = ACC + ((2 * pr + h) * 5 + n5) * 4
                a(f"v_cvt_pk_bf16_f32 v{t+2*h}, v{b}, v{b+1}")
                a(f"v_cvt_pk_bf16_f32 v{t+2*h+1}, v{b+2}, v{b+3}")
            a(f"buffer_store_dwordx4 {vr(t,4)}, v{T[n5]}, s[8:11], s{72+pr} offen {STMOD}")
    a("s_branch P1_DONE")

    XO, WO, EO = 4, 5, 6
    NPS = 11
    a(f"""
    P1_LOADER:
    s_cmp_eq_u32 s3, 8
    s_cbranch_scc1 P1_IDLE
    s_sub_u32 s12, s3, 4
    s_lshl_b32 s61, s56, 7
    s_lshl_b32 s62, s12, 3
    s_add_u32 s61, s61, s62
    v_lshrrev_b32 v2, 3, v1
    v_add_u32 v2, s61, v2
    v_mul_u32_u24 v2, 1280, v2
    s_and_b32 s62, s12, 1
    s_lshl_b32 s62, s62, 2
    v_lshrrev_b32 v3, 4, v1
    v_add_u32 v3, s62, v3
    s_lshl_b32 s62, s12, 1
    v_bfe_u32 v11, v1, 4, 1
    v_or_b32 v11, s62, v11
    s_cmp_eq_u32 s55, 2
    s_cselect_b64 vcc, -1, 0
    s_lshl_b32 s65, s12, 10
    v_cndmask_b32 v3, v3, v11, vcc
    v_and_b32 v11, 7, v1
    v_xor_b32 v3, v3, v11
    v_lshl_add_u32 v{XO}, v3, 4, v2
    s_mov_b32 s72, 0xCCCCCCCD
    s_lshl_b32 s63, s12, 4
    v_mul_hi_u32 v3, v1, s72
    v_lshrrev_b32 v3, 4, v3
    v_mul_u32_u24 v11, 20, v3
    v_sub_u32 v11, v1, v11
    v_add_u32 v3, s63, v3
    v_mul_lo_u32 v3, v3, s58
    v_lshl_add_u32 v3, v11, 4, v3
    v_add_u32 v{WO}, s59, v3
    s_mul_i32 s64, s12, 640
    v_lshlrev_b32 v{EO}, 4, v1
    v_add_u32 v{EO}, s64, v{EO}
    s_mul_i32 s66, s12, 5184
    s_add_u32 s66, s66, {WOFF}
    s_add_u32 s67, s64, {EOFF}
    s_mul_i32 s68, s58, 50
    s_mul_i32 s69, s58, 3
    s_lshl_b32 s79, s58, 1
    s_add_u32 s80, s52, s53
    s_and_b32 s80, s80, {ROT_MASK}
    s_mul_i32 s80, s80, {ROT_MUL}
    s_lshr_b32 s80, s80, 2
    s_mul_i32 s81, s55, {ROT_P}
    s_add_u32 s80, s80, s81
    s_mul_i32 s81, s54, {ROT_H}
    s_add_u32 s80, s80, s81
    s_cmp_ge_u32 s80, 10
    s_cselect_b32 s81, 10, 0
    s_sub_u32 s80, s80, s81
    s_lshl_b32 s70, s80, 7
    s_lshl_b32 s71, s58, 6
    s_mul_i32 s71, s71, s80
    s_mul_i32 s73, s80, 2560
    s_mov_b32 s74, 0
    s_mov_b32 s34, {2048*1280}
    s_mov_b32 s35, 0x00020000
    s_mov_b32 s39, 0x00020000
    s_mov_b32 s43, 0x00020000
    s_mov_b32 s77, 0
    s_cmp_eq_u32 s57, 1
    s_mov_b32 s38, {640*3840}
    s_cselect_b32 s38, {640*1280}, s38
    s_cselect_b32 s42, {640*40}, 0
    s_waitcnt lgkmcnt(0)
    s_cselect_b32 s32, s22, s16
    s_cselect_b32 s33, s23, s17
    s_cselect_b32 s36, s24, s18
    s_cselect_b32 s37, s25, s19
    s_cmp_lt_u32 s53, 2
    s_cselect_b32 s40, s26, s28
    s_cselect_b32 s41, s27, s29
    """)
    a.c("k order is rotated per WG (s80) so that a cold start spreads over the whole K range")
    a.c("s65/s66/s67 LDS rel bases; s70 x soff, s71 W soff, s73 E soff, s74 slot base")
    a("P1_LP:")
    a("s_add_u32 s75, s74, s65")
    for t in range(4):
        a(f"""
        s_add_u32 m0, s75, {4096*t}
        s_add_u32 s76, s70, {40960*t}
        buffer_load_dwordx4 v{XO}, s[32:35], s76 offen {XMOD} lds
        """)
    a("s_add_u32 s75, s74, s66")
    for t, r0 in enumerate([0, 3, 6, 8, 11, 14]):
        a(f"s_add_u32 m0, s75, {320*r0 + (32 if r0 >= 8 else 0)}")
        a(f"s_mov_b32 exec_hi, {'0xff' if t % 3 == 2 else '0x0fffffff'}")
        a(f"buffer_load_dwordx4 v{WO}, s[36:39], s71 offen {WMOD} lds")
        a(f"s_add_u32 s71, s71, {'s69' if t % 3 < 2 else ('s79' if t == 2 else 's68')}")
    a(f"""
    s_add_u32 m0, s74, s67
    s_add_u32 s70, s70, 128
    buffer_load_dwordx4 v{EO}, s[40:43], s73 offen lds
    s_mov_b32 exec_hi, -1
    s_add_u32 s73, s73, 2560
    s_add_u32 s74, s74, {SLOT}
    s_cmp_eq_u32 s74, {NSLOT*SLOT}
    s_cselect_b32 s74, 0, s74
    s_cmp_eq_u32 s70, 1280
    s_cselect_b32 s70, 0, s70
    s_cselect_b32 s71, 0, s71
    s_cselect_b32 s73, 0, s73
    s_add_u32 s77, s77, 1
    """)
    if LA3:
        a(f"""
        s_bitcmp1_b32 0x0a, s77
        s_cbranch_scc1 P1_LP
        s_cmp_eq_u32 s77, 2
        s_cbranch_scc0 P1_LP2
        s_waitcnt vmcnt({NPS})
        s_barrier
        s_branch P1_LP
        P1_LP2:
        s_waitcnt vmcnt({2*NPS})
        s_barrier
        s_cmp_lt_u32 s77, 10
        s_cbranch_scc1 P1_LP
        s_waitcnt vmcnt({NPS})
        s_barrier
        s_waitcnt vmcnt(0)
        """)
    else:
        a(f"""
        s_cmp_lt_u32 s77, 2
        s_cbranch_scc1 P1_LP
        s_waitcnt vmcnt({NPS})
        s_barrier
        s_cmp_lt_u32 s77, 10
        s_cbranch_scc1 P1_LP
        s_waitcnt vmcnt(0)
        """)
    stamp(a)
    a(f"""
    s_barrier
    s_barrier
    s_branch P1_DONE
    P1_IDLE:
    s_mov_b32 s77, 0
    s_waitcnt lgkmcnt(0)
    P1_IDLE1:
    s_barrier
    s_add_u32 s77, s77, 1
    s_cmp_lt_u32 s77, 11
    s_cbranch_scc1 P1_IDLE1
    P1_DONE:
    """)
    stamp(a)
    dpt(a, 0)


def flag_prep(a, ph, delta, idcode, HT):
    a("s_memrealtime s[44:45]")
    a(idcode)
    a(f"""
    v_lshlrev_b32 v9, 7, v9
    v_lshlrev_b32 v7, 4, v1
    s_lshl_b32 s48, s2, 7
    s_add_u32 s48, s48, {WS_FLAG + ph*0x8000}
    s_mov_b32 s49, {WS_FLAG + ph*0x8000}
    s_sub_u32 s46, s6, {delta}
    s_subb_u32 s47, s7, 0
    s_waitcnt lgkmcnt(0)
    v_mov_b32 v{HT}, s44
    v_mov_b32 v{HT+1}, s45
    v_mov_b32 v{HT+2}, s44
    v_mov_b32 v{HT+3}, s45
    v_mov_b32 v11, s47
    """)


def flag_publish(a, HT):
    a(f"""
    s_mov_b64 exec, 0xff
    buffer_store_dwordx4 {vr(HT,4)}, v7, s[8:11], s48 offen sc1
    s_mov_b64 exec, -1
    """)


def flag_poll(a, tag, HT):
    P = HT + 4
    a(f"""
    s_mov_b64 exec, s[50:51]
    s_mov_b32 s48, 0
    {tag}_POLL:
    buffer_load_dwordx2 {vr(P,2)}, v9, s[8:11], s49 offen sc1
    s_add_u32 s48, s48, 1
    s_waitcnt vmcnt(0)
    v_subrev_co_u32 v10, vcc, s46, v{P}
    s_nop 1
    v_subb_co_u32 v7, vcc, v{P+1}, v11, vcc
    v_lshrrev_b32 v10, 24, v10
    v_or_b32 v10, v10, v7
    v_cmp_eq_u32 vcc, 0, v10
    s_cmp_ge_u32 s48, {SPIN_MAX}
    s_cbranch_scc1 {tag}_OUT
    s_nop 1
    s_cmp_eq_u64 vcc, s[50:51]
    s_cbranch_scc1 {tag}_OUT
    s_sleep {POLL_SLEEP}
    s_branch {tag}_POLL
    {tag}_OUT:
    s_mov_b64 exec, -1
    """)


def handoff(a, tag, ph, delta, idcode, HT):
    a(f"""
    s_cmp_lg_u32 s3, 0
    s_cbranch_scc1 {tag}_PRE
    """)
    flag_prep(a, ph, delta, idcode, HT)
    a(f"""
    {tag}_PRE:
    s_waitcnt vmcnt(0)
    """)
    stamp(a)
    a(f"""
    s_barrier
    s_cmp_lg_u32 s3, 0
    s_cbranch_scc1 {tag}_WAIT
    """)
    flag_publish(a, HT)
    flag_poll(a, tag, HT)
    a(f"{tag}_WAIT:")


def oaddr(a, wavereg):
    a(f"""
    s_mul_i32 s36, s15, {OBR}
    s_lshl_b32 s37, s18, 5
    s_lshl_b32 s38, {wavereg}, 2
    s_add_u32 s37, s37, s38
    s_mul_i32 s37, s37, 20480
    s_add_u32 s36, s36, s37
    s_add_u32 s36, s36, {WS_O}
    s_lshr_b32 s37, s17, 1
    s_lshl_b32 s37, s37, 10
    s_and_b32 s38, s17, 1
    s_lshl_b32 s38, s38, 9
    s_add_u32 s37, s37, s38
    s_add_u32 s37, s37, s36
    s_lshr_b32 s38, s17, 3
    s_lshl_b32 s38, s38, 10
    s_add_u32 s38, s38, 16384
    s_bfe_u32 s39, s17, 0x10002
    s_lshl_b32 s39, s39, 9
    s_add_u32 s38, s38, s39
    s_and_b32 s39, s17, 1
    s_lshl_b32 s39, s39, 8
    s_add_u32 s38, s38, s39
    s_bfe_u32 s39, s17, 0x10001
    s_lshl_b32 s39, s39, 3
    s_add_u32 s38, s38, s39
    s_add_u32 s38, s38, s36
    """)


def phase2(a):
    global NOMORE
    NOMORE = True
    VL, L16, KA, KH, VA, IDX = 1, 2, 3, 4, 5, 6
    QA_LO, QA_HI, QB_HI, QB_LO = 12, 16, 18, 20
    KLO = [24, 32]
    KHI = [28, 30]
    VB = [36, 44]
    SA, SB, OA, OB = 52, 68, 84, 100
    MA, MB = 116, 117
    a(f"""
    s_and_b32 s13, s2, 7
    s_lshr_b32 s14, s2, 3
    s_lshr_b32 s15, s14, 4
    s_bfe_u32 s16, s14, 0x20002
    s_lshl_b32 s17, s13, 2
    s_add_u32 s17, s17, s16
    s_and_b32 s18, s14, 3
    s_lshl_b32 s19, s15, 5
    s_add_u32 s19, s19, s17
    s_cmp_eq_u32 s15, 0
    s_cselect_b32 s21, s17, 32
    """)
    a.c("s15 br, s17 head, s18 qb, s19 unit, s21 kv unit")
    a(f"""
    s_mul_i32 s25, s19, {QUNIT}
    s_mul_i32 s26, s18, 20480
    s_add_u32 s25, s25, s26
    s_mul_i32 s26, s3, 2560
    s_add_u32 s25, s25, s26
    s_mul_i32 s27, s21, {KVUNIT}
    s_lshl_b32 s28, s3, 10
    s_add_u32 s27, s27, s28
    s_add_u32 s27, s27, {WS_KV}
    v_lshlrev_b32 v{L16}, 4, v{VL}
    s_cmp_eq_u32 s3, 8
    s_cbranch_scc1 P2_LOADER
    v_and_b32 v7, 31, v{VL}
    v_lshrrev_b32 v8, 5, v{VL}
    v_lshlrev_b32 v{KH}, 3, v7
    v_lshl_add_u32 v{KH}, v8, 2, v{KH}
    v_add_u32 v{KH}, 1024, v{KH}
    v_mul_u32_u24 v{VA}, 20, v8
    v_add_u32 v{VA}, v{VA}, v7
    v_lshlrev_b32 v{VA}, 4, v{VA}
    v_add_u32 v{VA}, 1280, v{VA}
    v_mov_b32 v{KA}, v{L16}
    v_mov_b32 v{IDX}, 0xdddddddd
    v_mov_b32 v{QA_HI+1}, 0
    v_mov_b32 v{QB_HI+1}, 0
    v_mov_b32 v{KHI[0]+1}, 0
    v_mov_b32 v{KHI[1]+1}, 0
    v_and_b32 v9, {31 if ONES1 else 27}, v7
    v_cmp_eq_u32 vcc, 24, v9
    v_mov_b32 v9, 0
    v_mov_b32 v10, 0x3f803f80
    s_mov_b32 s22, 0x000fffff
    s_mov_b32 s23, 0x000fffff
    s_cmp_lt_u32 s3, 4
    s_cselect_b32 s24, 0x92, {LOWY}
    v_cndmask_b32 v9, v9, v10, vcc
    """)
    for i in range(16):
        a(f"v_mov_b32 v{VB[0]+i}, v9")
    for i in range(16):
        a(f"v_mov_b32 v{SB+i}, 0")
    for i in range(32):
        a(f"v_mov_b32 v{OA+i}, 0")
    handoff(a, "H1", 0, 1000, f"""
    s_lshr_b32 s49, s17, 3
    s_lshl_b32 s49, s49, 6
    v_add_u32 v9, s49, v1
    v_and_b32 v10, 7, v1
    v_cmp_gt_u32 s[50:51], 6, v10
    v_lshrrev_b32 v10, 1, v1
    v_lshlrev_b32 v10, 3, v10
    v_and_b32 v11, 1, v1
    v_add3_u32 v10, v10, v11, 6
    s_cmp_eq_u32 s15, 0
    s_cselect_b64 vcc, -1, 0
    s_cselect_b64 s[50:51], s[50:51], -1
    v_cndmask_b32 v9, v10, v9, vcc
    """, 120)
    a(f"""
    s_mov_b32 m0, s28
    s_barrier
    """)
    stamp(a)
    dpt(a, 1)
    a(f"""
    buffer_load_dwordx4 v{L16}, s[8:11], s27 offen lds
    buffer_load_dwordx4 {vr(QA_LO,4)}, v{L16}, s[8:11], s25 offen
    buffer_load_dword v{QA_HI}, v{KH}, s[8:11], s25 offen
    buffer_load_dwordx4 {vr(QB_LO,4)}, v{L16}, s[8:11], s25 offen offset:1280
    buffer_load_dword v{QB_HI}, v{KH}, s[8:11], s25 offen offset:1280
    s_setprio 2
    s_mov_b64 vcc, -1
    s_mov_b32 s20, 0
    """)
    for r in range(1, 4):
        a(f"s_add_u32 m0, m0, 8192")
        a(f"s_add_u32 s27, s27, 8192")
        a(f"buffer_load_dwordx4 v{L16}, s[8:11], s27 offen lds")
    a(f"""
    s_waitcnt vmcnt(3)
    s_barrier
    """)
    stamp(a)
    a(f"""
    ds_read_b128 {vr(KLO[0],4)}, v{KA}
    ds_read_b32 v{KHI[0]}, v{KH}
    ds_read_b128 {vr(KLO[1],4)}, v{KA} offset:2560
    ds_read_b32 v{KHI[1]}, v{KH} offset:2560
    s_mov_b64 exec, s[22:23]
    ds_read_b128 {vr(VB[0],4)}, v{VA}
    ds_read_b128 {vr(VB[0]+4,4)}, v{VA} offset:640
    s_mov_b64 exec, -1
    s_waitcnt lgkmcnt(4)
    {M16} {vr(SA,16)}, {vr(KLO[0],4)}, {vr(QA_LO,4)}, 0
    {M8} {vr(SA,16)}, {vr(KHI[0],2)}, {vr(QA_HI,2)}, {vr(SA,16)}
    s_nop 15
    """)

    def ex(base, lo, hi):
        for i in range(lo, hi):
            a(f"v_exp_f32 v{base+i}, v{base+i}")

    a(".p2align 6")
    a("P2_LOOP:")
    for j in range(8):
        p = j & 1
        ex(SA, 0, 2)
        a(f"{SM} {vr(OB,16)}, {vr(VB[1-p]+4,4)}, {vr(SB+8,8)}, v{IDX}")
        ex(SA, 2, 4)
        a(f"{M16} {vr(SB,16)}, {vr(KLO[p],4)}, {vr(QB_LO,4)}, 0")
        ex(SA, 4, 8)
        a(f"{M8} {vr(SB,16)}, {vr(KHI[p],2)}, {vr(QB_HI,2)}, {vr(SB,16)}")
        a("s_waitcnt lgkmcnt(0)")
        if j in (1, 4):
            a(f"s_cbranch_vccnz P2_SY{j}")
            a(f"P2_SY{j}_RET:")
        a(f"ds_read_b128 {vr(KLO[p],4)}, v{KA} offset:{(j+2)*2560}")
        a(f"ds_read_b32 v{KHI[p]}, v{KH} offset:{(j+2)*2560}")
        if j == LOWJ:
            a("s_bitcmp1_b32 s24, s20")
            a(f"s_cbranch_scc1 P2_LOWP")
            a(f"P2_LOWP_RET:")
        ex(SA, 8, 12)
        a(f"{SM} {vr(OA,16)}, {vr(VB[p],4)}, {vr(SA,8)}, v{IDX}")
        ex(SA, 12, 16)
        ex(SB, 0, 2)
        a(f"{SM} {vr(OA,16)}, {vr(VB[p]+4,4)}, {vr(SA+8,8)}, v{IDX}")
        ex(SB, 2, 4)
        a(f"{M16} {vr(SA,16)}, {vr(KLO[1-p],4)}, {vr(QA_LO,4)}, 0")
        ex(SB, 4, 8)
        a(f"{M8} {vr(SA,16)}, {vr(KHI[1-p],2)}, {vr(QA_HI,2)}, {vr(SA,16)}")
        a("s_mov_b64 exec, s[22:23]")
        a(f"ds_read_b128 {vr(VB[1-p],4)}, v{VA} offset:{(j+1)*2560}")
        a(f"ds_read_b128 {vr(VB[1-p]+4,4)}, v{VA} offset:{(j+1)*2560+640}")
        a("s_mov_b64 exec, -1")
        ex(SB, 8, 12)
        a(f"{SM} {vr(OB,16)}, {vr(VB[p],4)}, {vr(SB,8)}, v{IDX}")
        ex(SB, 12, 16)
    stamp(a, lvl=3)
    a.c("chunk boundary: barriers before chunks 2 and 5; priority falls as a wave advances so the SIMD's two waves stay level")
    a(f"""
    v_add_u32 v{KA}, 20480, v{KA}
    v_add_u32 v{KH}, 20480, v{KH}
    v_add_u32 v{VA}, 20480, v{VA}
    s_add_u32 s20, s20, 1
    s_mov_b64 vcc, 0
    s_bitcmp1_b32 0x24, s20
    s_cbranch_scc0 P2_NOBAR
    s_barrier
    s_setprio 3
    s_branch P2_LOOP
    P2_LOWP:
    s_setprio 0
    s_branch P2_LOWP_RET
    P2_SY1:
    s_waitcnt vmcnt(2)
    s_barrier
    s_branch P2_SY1_RET
    P2_SY4:
    s_waitcnt vmcnt(0)
    s_barrier
    s_branch P2_SY4_RET
    P2_LOADER:
    """)
    a.c("wave 8: rounds 4..19 of the K/V image, then (once chunks 0-4 are dead) the phase-3 wo slice")
    a(f"""
    s_load_dwordx2 s[52:53], s[0:1], 16
    s_load_dwordx2 s[54:55], s[0:1], 56
    s_mov_b32 s60, 0xCCCCCCCD
    v_mul_hi_u32 v9, v1, s60
    v_lshrrev_b32 v9, 3, v9
    v_mul_u32_u24 v10, 10, v9
    v_sub_u32 v10, v1, v10
    v_mul_u32_u24 v9, 1280, v9
    v_lshl_add_u32 v8, v10, 4, v9
    s_lshr_b32 s56, s14, 2
    s_mul_i32 s56, s56, 160
    s_mov_b32 s34, {640*1280}
    s_mov_b32 s35, 0x00020000
    s_cmp_lt_u32 s13, 4
    s_waitcnt lgkmcnt(0)
    s_cselect_b32 s32, s52, s54
    s_cselect_b32 s33, s53, s55
    s_add_u32 s27, s27, {32768-8192}
    s_mov_b32 m0, 32768
    s_mov_b32 s20, 1
    s_barrier
    s_barrier
    s_barrier
    P2_LD1:
    """)
    for r in range(8):
        a(f"buffer_load_dwordx4 v{L16}, s[8:11], s27 offen lds")
        a(f"s_add_u32 m0, m0, 1024")
        a(f"s_add_u32 s27, s27, 1024")
    a(f"""
    s_add_u32 s20, s20, 1
    s_cmp_eq_u32 s20, 2
    s_cbranch_scc0 P2_LD2
    s_barrier
    P2_LD2:
    s_cmp_eq_u32 s20, 5
    s_cbranch_scc0 P2_LD3
    s_waitcnt vmcnt(16)
    s_barrier
    P2_LD3:
    s_cmp_lt_u32 s20, 17
    s_cbranch_scc1 P2_LD1
    s_waitcnt vmcnt(0)
    s_barrier
    """)
    a.c("mark this WG's O slots as 'not written yet' (all-ones words); phase 3 consumes the data itself as its flag")
    oaddr(a, "0")
    a(f"""
    v_and_b32 v12, 31, v1
    v_lshlrev_b32 v12, 4, v12
    v_lshrrev_b32 v13, 5, v1
    v_mul_u32_u24 v13, 20480, v13
    v_add_u32 v12, v12, v13
    v_and_b32 v13, 15, v1
    v_lshlrev_b32 v13, 4, v13
    v_lshrrev_b32 v14, 4, v1
    v_mul_u32_u24 v14, 20480, v14
    v_add_u32 v13, v13, v14
    v_mov_b32 v16, -1
    v_mov_b32 v17, -1
    v_mov_b32 v18, -1
    v_mov_b32 v19, -1
    s_mov_b32 s59, 0
    P2_PO:
    buffer_store_dwordx4 v[16:19], v12, s[8:11], s37 offen sc1
    s_add_u32 s37, s37, 40960
    buffer_store_dwordx4 v[16:19], v12, s[8:11], s37 offen sc1
    s_add_u32 s37, s37, 40960
    buffer_store_dwordx2 v[16:17], v13, s[8:11], s38 offen sc1
    s_add_u32 s38, s38, 81920
    s_add_u32 s59, s59, 1
    s_cmp_lt_u32 s59, 8
    s_cbranch_scc1 P2_PO
    """)
    flag_prep(a, 1, 0, f"""
    s_lshr_b32 s49, s13, 2
    s_lshl_b32 s49, s49, 4
    s_and_b32 s50, s13, 3
    s_add_u32 s49, s49, s50
    s_lshl_b32 s49, s49, 3
    v_bfe_u32 v10, v1, 3, 2
    v_lshlrev_b32 v10, 5, v10
    v_and_b32 v9, 7, v1
    v_add3_u32 v9, v9, v10, s49
    s_mov_b32 s50, -1
    s_mov_b32 s51, 0
    """, 20)
    a("s_waitcnt vmcnt(0)")
    flag_publish(a, 20)
    a(f"""
    s_lshr_b32 s57, s14, 2
    s_cmp_ge_u32 s57, 5
    s_cselect_b32 s58, 5, 0
    s_sub_u32 s57, s57, s58
    s_sub_u32 s57, 5, s57
    s_mul_i32 s57, s57, {20480*P3ROT}
    s_mov_b32 s59, 0
    s_cmp_ge_u32 s57, 102400
    s_cselect_b32 s57, 0, s57
    s_mov_b32 s58, s56
    s_barrier
    P2_LW1:
    """)
    rows = [0, 6, 12, 16, 22, 28]
    src = [0, 6, 12, 20, 26, 32]
    for t in range(6):
        a(f"""
        s_add_u32 m0, s57, {rows[t]*160}
        s_add_u32 s62, s58, {src[t]*1280}
        s_mov_b32 exec_hi, {'0xff' if t % 3 == 2 else '0x0fffffff'}
        buffer_load_dwordx4 v8, s[32:35], s62 offen lds
        """)
    a(f"""
    s_add_u32 s57, s57, 5120
    s_cmp_ge_u32 s57, 102400
    s_cselect_b32 s57, 0, s57
    s_add_u32 s58, s58, {40*1280}
    s_add_u32 s59, s59, 1
    s_cmp_lt_u32 s59, 16
    s_cbranch_scc1 P2_LW1
    s_add_u32 s58, s56, {16*1280}
    P2_LW2:
    s_mov_b32 m0, s57
    s_add_u32 s57, s57, 640
    buffer_load_dwordx4 v8, s[32:35], s58 offen lds
    s_add_u32 s58, s58, {20*1280}
    s_add_u32 s59, s59, 1
    s_cmp_lt_u32 s59, 48
    s_cbranch_scc1 P2_LW2
    s_mov_b64 exec, -1
    """)
    flag_poll(a, "HP", 20)
    a(f"""
    s_barrier
    s_endpgm
    P2_NOBAR:
    s_setprio 2
    s_bitcmp1_b32 0x48, s20
    s_cbranch_scc1 P2_LOOP
    s_setprio 1
    s_cmp_lt_u32 s20, 8
    s_cbranch_scc1 P2_LOOP
    s_setprio 0
    {SM} {vr(OB,16)}, {vr(VB[1]+4,4)}, {vr(SB+8,8)}, v{IDX}
    s_waitcnt lgkmcnt(0)
    s_nop 15
    """)
    stamp(a)
    dpt(a, 2)
    def lbro():
        if ONES1:
            a(f"""
            v_mov_b32 v7, v{OA+12}
            v_mov_b32 v8, v{OB+12}
            s_nop 1
            v_permlane32_swap_b32 v{OA+12}, v7
            v_permlane32_swap_b32 v{OB+12}, v8
            s_nop 1
            """)
    lbro()
    a.c("---- safety check of the unshifted softmax: l within [2^-30, 2^110], all O finite; else redo with the true max")
    a(f"""
    s_mov_b32 s30, {hex(f32bits(2.0**-30))}
    s_mov_b32 s31, {hex(f32bits(2.0**110))}
    v_mul_f32 v7, 0, v{OA}
    """)
    for i in range(1, 12):
        a(f"v_fma_f32 v7, v{OA+i}, 0, v7")
    for i in range(12):
        a(f"v_fma_f32 v7, v{OB+i}, 0, v7")
    a(f"""
    v_min_f32 v8, v{OA+12}, v{OB+12}
    v_max_f32 v9, v{OA+12}, v{OB+12}
    v_add_f32 v7, v7, v{OA+12}
    v_add_f32 v7, v7, v{OB+12}
    v_cmp_le_f32 vcc, s30, v8
    v_cmp_ge_f32 s[32:33], s31, v9
    v_cmp_o_f32 s[34:35], v7, v7
    s_nop 3
    s_and_b64 vcc, vcc, s[32:33]
    s_and_b64 vcc, vcc, s[34:35]
    s_cmp_eq_u64 vcc, -1
    s_cbranch_scc0 P2_FALLBACK
    P2_STORE:
    """)
    oaddr(a, "s3")
    a(f"""
    v_and_b32 v7, 15, v{VL}
    v_lshlrev_b32 v7, 4, v7
    v_bfe_u32 v8, v{VL}, 4, 1
    v_mul_u32_u24 v8, 20480, v8
    v_add_u32 v7, v7, v8
    v_lshrrev_b32 v8, 5, v{VL}
    v_lshl_add_u32 v8, v8, 8, v7
    v_rcp_f32 v10, v{OA+12}
    v_rcp_f32 v11, v{OB+12}
    s_add_u32 s40, s37, 40960
    s_add_u32 s41, s38, 40960
    """)
    for (o, r, t) in ((OA, 10, SA), (OB, 11, SB)):
        for i in range(12):
            a(f"v_mul_f32 v{o+i}, v{o+i}, v{r}")
        for i in range(6):
            a(f"v_cvt_pk_bf16_f32 v{t+i}, v{o+2*i}, v{o+2*i+1}")
    a(f"""
    buffer_store_dwordx4 {vr(SA,4)}, v8, s[8:11], s37 offen {STMOD}
    buffer_store_dwordx4 {vr(SB,4)}, v8, s[8:11], s40 offen {STMOD}
    s_mov_b32 exec_hi, 0
    buffer_store_dwordx2 {vr(SA+4,2)}, v7, s[8:11], s38 offen {STMOD}
    buffer_store_dwordx2 {vr(SB+4,2)}, v7, s[8:11], s41 offen {STMOD}
    s_mov_b64 exec, -1
    """)
    stamp(a)
    a("s_branch P2_DONE")
    a.c("---- fallback: textbook two-pass softmax with the true row max, K/V fragments straight from the workspace image")
    a(f"""
    P2_FALLBACK:
    v_mov_b32 v{MA}, 0xff800000
    v_mov_b32 v{MB}, 0xff800000
    v_subrev_u32 v{KH}, {8*20480}, v{KH}
    v_subrev_u32 v{VA}, {8*20480}, v{VA}
    s_mul_i32 s27, s21, {KVUNIT}
    s_add_u32 s27, s27, {WS_KV}
    s_mov_b32 s26, s27
    s_mov_b32 s20, 0
    P2_FB1:
    buffer_load_dwordx4 {vr(KLO[0],4)}, v{L16}, s[8:11], s26 offen
    buffer_load_dword v{KHI[0]}, v{KH}, s[8:11], s26 offen
    s_add_u32 s26, s26, 2560
    s_waitcnt vmcnt(0)
    {M16} {vr(SA,16)}, {vr(KLO[0],4)}, {vr(QA_LO,4)}, 0
    {M8} {vr(SA,16)}, {vr(KHI[0],2)}, {vr(QA_HI,2)}, {vr(SA,16)}
    {M16} {vr(SB,16)}, {vr(KLO[0],4)}, {vr(QB_LO,4)}, 0
    {M8} {vr(SB,16)}, {vr(KHI[0],2)}, {vr(QB_HI,2)}, {vr(SB,16)}
    s_nop 15
    """)
    for i in range(8):
        a(f"v_max3_f32 v{MA}, v{SA+2*i}, v{SA+2*i+1}, v{MA}")
        a(f"v_max3_f32 v{MB}, v{SB+2*i}, v{SB+2*i+1}, v{MB}")
    a(f"""
    s_add_u32 s20, s20, 1
    s_cmp_lt_u32 s20, 64
    s_cbranch_scc1 P2_FB1
    v_mov_b32 v7, v{MA}
    v_mov_b32 v8, v{MB}
    s_nop 1
    v_permlane32_swap_b32 v7, v{MA}
    v_permlane32_swap_b32 v8, v{MB}
    s_nop 1
    v_max_f32 v{MA}, v{MA}, v7
    v_max_f32 v{MB}, v{MB}, v8
    """)
    for i in range(32):
        a(f"v_mov_b32 v{OA+i}, 0")
    a(f"""
    s_mov_b32 s20, 0
    P2_FB2:
    buffer_load_dwordx4 {vr(KLO[0],4)}, v{L16}, s[8:11], s27 offen
    buffer_load_dword v{KHI[0]}, v{KH}, s[8:11], s27 offen
    s_mov_b64 exec, s[22:23]
    buffer_load_dwordx4 {vr(VB[0],4)}, v{VA}, s[8:11], s27 offen
    buffer_load_dwordx4 {vr(VB[0]+4,4)}, v{VA}, s[8:11], s27 offen offset:640
    s_mov_b64 exec, -1
    s_add_u32 s27, s27, 2560
    s_waitcnt vmcnt(0)
    {M16} {vr(SA,16)}, {vr(KLO[0],4)}, {vr(QA_LO,4)}, 0
    {M8} {vr(SA,16)}, {vr(KHI[0],2)}, {vr(QA_HI,2)}, {vr(SA,16)}
    {M16} {vr(SB,16)}, {vr(KLO[0],4)}, {vr(QB_LO,4)}, 0
    {M8} {vr(SB,16)}, {vr(KHI[0],2)}, {vr(QB_HI,2)}, {vr(SB,16)}
    s_nop 15
    """)
    for i in range(16):
        a(f"v_sub_f32 v{SA+i}, v{SA+i}, v{MA}")
        a(f"v_sub_f32 v{SB+i}, v{SB+i}, v{MB}")
    ex(SA, 0, 16)
    ex(SB, 0, 16)
    a(f"""
    s_nop 1
    {SM} {vr(OA,16)}, {vr(VB[0],4)}, {vr(SA,8)}, v{IDX}
    {SM} {vr(OA,16)}, {vr(VB[0]+4,4)}, {vr(SA+8,8)}, v{IDX}
    {SM} {vr(OB,16)}, {vr(VB[0],4)}, {vr(SB,8)}, v{IDX}
    {SM} {vr(OB,16)}, {vr(VB[0]+4,4)}, {vr(SB+8,8)}, v{IDX}
    s_add_u32 s20, s20, 1
    s_cmp_lt_u32 s20, 64
    s_cbranch_scc1 P2_FB2
    s_nop 15
    """)
    lbro()
    a("""
    s_branch P2_STORE
    P2_DONE:
    """)


P3_TR = 102400


def phase3(a):
    WF = [16, 36]
    ACC = 56
    OF = 96
    NR = LA + 1
    assert OF + 8 * NR <= STV
    SA_ = [6, 8, 12, 13, 14]
    a(f"""
    s_load_dwordx2 s[36:37], s[0:1], 64
    s_lshr_b32 s15, s13, 2
    s_and_b32 s20, s13, 3
    s_lshl_b32 s20, s20, 2
    s_and_b32 s21, s14, 3
    s_add_u32 s20, s20, s21
    s_lshr_b32 s21, s14, 2
    """)
    a.c("s15 br, s20 token tile(128), s21 col tile(80)")
    a(f"""
    s_mul_i32 s22, s15, {OBR}
    s_lshl_b32 s23, s20, 3
    s_lshl_b32 s24, s3, 1
    s_add_u32 s23, s23, s24
    s_mul_i32 s23, s23, 20480
    s_add_u32 s22, s22, s23
    s_add_u32 s22, s22, {WS_O}
    s_cmp_ge_u32 s21, 5
    s_cselect_b32 s25, 5, 0
    s_sub_u32 s25, s21, s25
    s_mul_i32 s25, s25, {4096*P3ROT}
    s_add_u32 s26, s22, 20480
    s_add_u32 s22, s22, s25
    s_add_u32 s23, s22, 20480
    s_mul_i32 s24, s21, 160
    s_mov_b32 s28, 0xCCCCCCCD
    s_mov_b32 s38, {2048*2560}
    s_mov_b32 s39, 0x00020000
    v_lshrrev_b32 v4, 5, v1
    v_lshlrev_b32 v4, 4, v4
    v_bfe_u32 v5, v1, 4, 1
    v_lshl_add_u32 v4, v5, 2, v4
    v_bfe_u32 v5, v1, 2, 2
    v_add_u32 v4, v4, v5
    v_mul_u32_u24 v4, 160, v4
    v_and_b32 v5, 3, v1
    v_mul_u32_u24 v5, 40, v5
    v_add_u32 v4, v4, v5
    v_add_u32 v5, {10*5120}, v4
    s_lshl_b32 s40, s20, 7
    s_lshl_b32 s41, s3, 5
    s_add_u32 s40, s40, s41
    s_mul_i32 s40, s40, 2560
    s_mul_i32 s41, s15, 1280
    s_add_u32 s40, s40, s41
    s_add_u32 s40, s40, s24
    s_mul_i32 s42, s3, 5120
    s_add_u32 s42, s42, {P3_TR}
    """)
    for t in range(5):
        a(f"""
        v_add_u32 v20, {64*t}, v1
        v_mul_hi_u32 v21, v20, s28
        v_lshrrev_b32 v21, 3, v21
        v_mul_u32_u24 v22, 10, v21
        v_sub_u32 v22, v20, v22
        v_mul_u32_u24 v21, 2560, v21
        v_lshl_add_u32 v{SA_[t]}, v22, 4, v21
        """)
    a(f"""
    v_and_b32 v3, 15, v1
    v_mul_u32_u24 v3, 160, v3
    v_lshrrev_b32 v20, 4, v1
    v_mul_u32_u24 v20, 40, v20
    v_add3_u32 v3, v3, v20, s42
    v_add_u32 v15, s42, v2
    """)
    for g in range(5):
        a(f"s_add_u32 s{60+2*g}, s22, {4096*g}")
        a(f"s_add_u32 s{61+2*g}, s23, {4096*g}")
    a("s_mov_b32 s70, 0")
    for i in range(40):
        a(f"v_mov_b32 v{ACC+i}, 0")
    a("s_waitcnt lgkmcnt(0)")
    stamp(a)
    a("s_barrier")
    a("""
    s_cmp_lt_u32 s3, 4
    s_cbranch_scc1 P3_GO
    """)
    stamp_store(a)
    a("s_endpgm")
    a("P3_GO:")

    def reads(kap, st):
        base, off = (4, kap * 5120) if kap < 10 else (5, (kap - 10) * 5120)
        return [f"ds_read_b64_tr_b16 {vr(WF[st]+4*j+2*i,2)}, v{base} offset:{off+i*1280+8*j}" for j in range(5) for i in range(2)]

    def ofr(kap, tt):
        return OF + (kap % NR) * 8 + tt * 4

    def oload(kap, tt):
        return f"buffer_load_dwordx4 {vr(ofr(kap,tt),4)}, v2, s[8:11], s{60+2*(kap>>2)+tt} offen offset:{(kap&3)*1024} sc1"
    for x in reads(0, 0):
        a(x)
    stamp(a)
    dpt(a, 3)
    issued = 0
    for k in range(LA):
        for tt in range(2):
            a(oload(k, tt))
            issued += 1
    for kap in range(20):
        st = kap & 1
        nxt = kap + 1
        o = ofr(kap, 0)
        a(f"s_waitcnt vmcnt({issued - 2*(kap+1)})")
        a(f"P3_CK{kap}:")
        a(f"""
        v_max3_u32 v7, v{o}, v{o+1}, v{o+2}
        v_max3_u32 v9, v{o+3}, v{o+4}, v{o+5}
        v_max3_u32 v7, v{o+6}, v{o+7}, v7
        v_max_u32 v7, v7, v9
        v_cmp_eq_u32 vcc, -1, v7
        """)
        if kap + LA < 20:
            for tt in range(2):
                a(oload(kap + LA, tt))
                issued += 1
        else:
            a("s_nop 1")
        a(f"s_cbranch_vccnz P3_RT{kap}")
        a(f"P3_OK{kap}:")
        a("s_waitcnt lgkmcnt(0)")
        r = reads(nxt, 1 - st) if nxt < 20 else []
        for j in range(5):
            for tt in range(2):
                d = vr(ACC + (tt * 5 + j) * 4, 4)
                a(f"{M1632} {d}, {vr(WF[st]+4*j,4)}, {vr(ofr(kap,tt),4)}, {d}")
                for _ in range(2):
                    if r:
                        a(r.pop(0))
    stamp(a)
    a.c("---- epilogue: pack, transpose through LDS so each store covers whole row segments")
    a("s_nop 7")
    for tt in range(2):
        t = 16 + tt * 10
        for j in range(5):
            b = ACC + (tt * 5 + j) * 4
            a(f"v_cvt_pk_bf16_f32 v{t+2*j}, v{b}, v{b+1}")
            a(f"v_cvt_pk_bf16_f32 v{t+2*j+1}, v{b+2}, v{b+3}")
            a(f"ds_write_b64 v3, {vr(t+2*j,2)} offset:{tt*2560+8*j}")
    a("s_waitcnt lgkmcnt(0)")
    for t in range(5):
        a(f"ds_read_b128 {vr(OF+4*t,4)}, v15 offset:{t*1024}")
    for t in range(5):
        a(f"s_waitcnt lgkmcnt({4-t})")
        a(f"buffer_store_dwordx4 {vr(OF+4*t,4)}, v{SA_[t]}, s[36:39], s40 offen {OUTMOD}")
    stamp(a)
    if STAMP:
        a("s_waitcnt vmcnt(0)")
    stamp(a)
    stamp_store(a)
    dpt(a, 4)
    dfin(a)
    a("KEND:")
    a("s_endpgm")
    a.c("some O words of this kappa are still 'not written': refresh every fragment in flight and look again (bounded)")
    for kap in range(20):
        a(f"""
        P3_RT{kap}:
        s_add_u32 s70, s70, 1
        s_cmp_ge_u32 s70, {SPIN_MAX}
        s_cbranch_scc1 P3_OK{kap}
        s_waitcnt vmcnt(0)
        s_sleep {RT_SLEEP}
        """)
        for k in range(kap, min(kap + LA, 20)):
            for tt in range(2):
                a(oload(k, tt))
        a("s_waitcnt vmcnt(0)")
        a(f"s_branch P3_CK{kap}")


def main(path):
    a = Asm()
    a.l += [
        "; Fused MHA (branch A) + MQA (branch B) attention block in one launch: 256 workgroups (one per CU) x 9 waves.",
        ";   phase 1: Q/K/V projections -> workspace images laid out as MFMA fragments",
        ";   phase 2: softmax(QK^T)V per (head, 512 queries), K/V image resident in LDS, P fed to a sparse MFMA as raw fp32",
        ";   phase 3: output projections, concatenated into d_out",
        "; Hand-offs between phases: write-through stores + one time-stamped flag line per workgroup in the workspace.",
        "; Generated by dev/gen10.py (hand-written generator).",
        f"; @launch grid=(256,1,1) block=(576,1,1) lds={LDS}",
        '.amdgcn_target "amdgcn-amd-amdhsa--gfx950"',
        ".text",
        f".globl {KN}",
        ".p2align 8",
        f".type {KN},@function",
        f"{KN}:",
    ]
    phase1(a)
    phase2(a)
    phase3(a)
    a.l += [
        '.section .rodata,"a"',
        ".p2align 6",
        f".amdhsa_kernel {KN}",
        f"  .amdhsa_next_free_vgpr {NV}",
        "  .amdhsa_next_free_sgpr 102",
        f"  .amdhsa_accum_offset {NV}",
        "  .amdhsa_group_segment_fixed_size 0",
        "  .amdhsa_kernarg_size 88",
        "  .amdhsa_user_sgpr_count 2",
        "  .amdhsa_user_sgpr_kernarg_segment_ptr 1",
        "  .amdhsa_system_sgpr_workgroup_id_x 1",
        ".end_amdhsa_kernel",
    ]
    open(path, "w").write(a.text())
    print(f"{KN} 256 576 {LDS}")


if __name__ == "__main__":
    main(sys.argv[1] if len(sys.argv) > 1 else f"cdna_kernels/{NAME}.s")
```

```python
import math, os, re, struct, sys

NAME = "concat_heads__softmax_full_mha__grouped_kv_mqa__prompt"
KN = NAME + "_kernel"

WS_Q = 0
QUNIT = 81920
WS_KV = 0x500000
KVUNIT = 163840
WS_O = 0xA40000
OBR = 0x280000
WS_FLAG = WS_O + 2 * OBR
WS_ST = 0xF80000
WS_SIZE = 0x1000000
LDS = 163840
P3_TR = 102400
NV = 168

env = lambda k, d: os.environ.get(k, d)
STAMP = int(env("STAMP", "0"))
ROT_MASK = int(env("ROT_MASK", "3"))
ROT_MUL = int(env("ROT_MUL", "10"))
ROT_P = int(env("ROT_P", "0"))
ROT_H = int(env("ROT_H", "0"))
POLL_SLEEP = int(env("POLL_SLEEP", "4"))
NPOLL = int(env("NPOLL", "1"))
LA = int(env("K3_LA", "7"))
STMOD = env("STMOD", "sc1")
OUTMOD = env("OUTMOD", "nt")
LOWJ = int(env("LOWJ", "6"))
P3ROT = int(env("P3ROT", "0"))
ONES1 = int(env("ONES1", "1"))
OLDMOD = env("OLDMOD", "")
FILLQ = int(env("FILLQ", "4"))
LA3 = int(env("LA3", "0"))
RT_SLEEP = int(env("RT_SLEEP", "2"))
RTALL = int(env("RTALL", "1"))
XMOD = env("XMOD", "")
WMOD = env("WMOD", "")
LOWY = int(env("LOWY", "0"), 0)
SPIN_MAX = 1 << 16
STV = 166
NOMORE = False


def f32bits(x):
    return struct.unpack("<I", struct.pack("<f", x))[0]


QSCALE = (20.0 ** -0.5) * math.log2(math.e)


class Asm:
    def __init__(self):
        self.l = []

    def __call__(self, s):
        for line in s.strip("\n").split("\n"):
            t = line.strip()
            if t:
                self.l.append(t if t.endswith(":") else "  " + t)

    def c(self, s):
        self.l.append("  ; " + s)

    def text(self):
        return "\n".join(self.l) + "\n"


def vr(b, n):
    return f"v[{b}:{b+n-1}]"


def stamp(a, first=False, lvl=1):
    if STAMP < lvl or (STAMP == 2 and NOMORE):
        return
    if first:
        a(f"v_mov_b32 v{STV}, 0")
        a("s_mov_b32 s91, 0")
    a(f"""
    s_memtime s[96:97]
    s_memrealtime s[98:99]
    s_waitcnt lgkmcnt(0)
    s_mov_b32 s90, m0
    s_mov_b32 m0, s91
    s_nop 0
    v_writelane_b32 v{STV}, s96, m0
    s_add_u32 m0, s91, 1
    s_nop 0
    v_writelane_b32 v{STV}, s98, m0
    s_add_u32 s91, s91, 2
    s_mov_b32 m0, s90
    """)


def stamp_store(a):
    if not STAMP:
        return
    a(f"""
    s_mov_b32 exec_lo, -1
    s_mov_b32 exec_hi, 0
    s_lshl_b32 s92, s2, 3
    s_add_u32 s92, s92, s3
    s_lshl_b32 s92, s92, 7
    s_add_u32 s92, s92, {WS_ST}
    v_mbcnt_lo_u32_b32 v{STV+1}, -1, 0
    v_lshlrev_b32 v{STV+1}, 2, v{STV+1}
    buffer_store_dword v{STV}, v{STV+1}, s[8:11], s92 offen
    """)


DIAG = env("DIAG", "")
def dpt(a, k):
    if DIAG:
        a(f"s_memrealtime s[{82+2*k}:{83+2*k}]")
        a("s_waitcnt lgkmcnt(0)")
def dfin(a):
    if not DIAG:
        return
    if DIAG == "xcc":
        a("""
        s_getreg_b32 s92, hwreg(HW_REG_XCC_ID)
        s_and_b32 s92, s92, 7
        s_and_b32 s93, s2, 7
        s_cmp_eq_u32 s92, s93
        s_cselect_b32 s92, 0, 3000
        """)
    else:
        A, B = DIAG.split("-")
        ra = "s6" if A == "s" else f"s{82+2*int(A)}"
        a(f"""
        s_or_b32 s92, s2, s3
        s_cmp_lg_u32 s92, 0
        s_cbranch_scc1 KEND
        s_sub_u32 s92, s{82+2*int(B)}, {ra}
        s_lshl_b32 s92, s92, 2
        """)
    a("""
    s_memrealtime s[94:95]
    s_waitcnt lgkmcnt(0)
    s_add_u32 s92, s92, s94
    DSPIN:
    s_memrealtime s[94:95]
    s_waitcnt lgkmcnt(0)
    s_sub_u32 s93, s94, s92
    s_cmp_lt_i32 s93, 0
    s_cbranch_scc1 DSPIN
    """)

M16 = "v_mfma_f32_32x32x16_bf16"
M8 = "v_mfma_f32_32x32x8_bf16"
SM = "v_smfmac_f32_32x32x32_bf16"
M1632 = "v_mfma_f32_16x16x32_bf16"

WOFF = 16384
EOFF = WOFF + 4 * 5184
SLOT = EOFF + 2560 + 64
NSLOT = 4
assert NSLOT * SLOT <= LDS


def phase1(a):
    a(f"""
    s_cmp_ge_u32 s2, 256
    s_cbranch_scc1 KEND
    """)
    if env("PERM", ""):
        a(f"s_mul_i32 s2, s2, {env('PERM', '')}")
        a("s_and_b32 s2, s2, 255")
    stamp(a, True)
    a(f"""
    s_load_dwordx16 s[16:31], s[0:1], 0
    s_load_dwordx2 s[8:9], s[0:1], 80
    s_memrealtime s[6:7]
    v_and_b32 v1, 63, v0
    v_lshrrev_b32 v2, 6, v0
    s_and_b32 s50, s2, 7
    v_readfirstlane_b32 s3, v2
    s_lshr_b32 s51, s2, 3
    s_and_b32 s52, s51, 7
    s_lshr_b32 s53, s51, 3
    s_and_b32 s54, s50, 1
    s_lshr_b32 s55, s50, 1
    s_lshl_b32 s56, s54, 3
    s_add_u32 s56, s56, s52
    s_mov_b32 s10, {WS_SIZE}
    s_mov_b32 s11, 0x00020000
    """)
    a.c("s3 wave, s[8:11] ws SRD, s[6:7] start time; s52 mt, s53 nt, s54 mhalf, s55 part(0 Q,1 K,2 V,3 B), s56 m tile 0..15")
    a(f"""
    s_cmp_eq_u32 s55, 3
    s_cselect_b32 s57, 1, 0
    s_mov_b32 s58, 3840
    s_cselect_b32 s58, 1280, s58
    s_cselect_b32 s59, 0, s55
    s_mul_i32 s59, s59, 1280
    s_mul_i32 s60, s53, 320
    s_add_u32 s59, s59, s60
    s_cmp_ge_u32 s3, 4
    s_cbranch_scc1 P1_LOADER
    """)
    a.c("s57 isB, s58 W row stride, s59 W col byte base")
    XA = [4, 5, 6, 7]
    WA, EA = 8, 9
    T = [10, 11, 12, 13, 14]
    XF = [16, 32]
    WF = 48
    EF = 68
    ACC = 72
    EACC = 152
    a.c("---- compute wave setup: s61 wm, s62 wn, s63 flip (B WGs with nt odd)")
    a(f"""
    s_and_b32 s61, s3, 1
    s_lshr_b32 s62, s3, 1
    s_and_b32 s63, s53, s57
    v_and_b32 v2, 15, v1
    v_lshrrev_b32 v3, 4, v1
    s_cmp_eq_u32 s55, 2
    s_cselect_b64 s[64:65], -1, 0
    v_bfe_u32 v22, v2, 1, 3
    v_bfe_u32 v23, v2, 1, 1
    v_lshrrev_b32 v24, 2, v2
    v_lshl_or_b32 v23, v24, 1, v23
    v_cndmask_b32 v22, v22, v23, s[64:65]
    v_and_b32 v23, 3, v2
    v_lshl_add_u32 v23, v24, 3, v23
    v_cndmask_b32 v23, v2, v23, s[64:65]
    s_lshl_b32 s66, s61, 13
    s_lshl_b32 s67, s63, 12
    s_add_u32 s68, s66, s67
    s_xor_b32 s67, s67, 4096
    s_add_u32 s69, s66, s67
    v_lshlrev_b32 v23, 7, v23
    """)
    for ks in range(2):
        a(f"""
        v_add_u32 v24, {4*ks}, v3
        v_xor_b32 v24, v24, v22
        v_lshl_add_u32 v24, v24, 4, v23
        v_add_u32 v{XA[2*ks]}, s68, v24
        v_add_u32 v{XA[2*ks+1]}, s69, v24
        """)
    a(f"""
    v_bfe_u32 v22, v1, 2, 2
    v_lshl_add_u32 v22, v3, 3, v22
    v_and_b32 v24, 3, v1
    v_mul_u32_u24 v{WA}, 320, v22
    v_and_b32 v25, 1, v3
    v_lshl_add_u32 v{WA}, v25, 5, v{WA}
    v_lshrrev_b32 v25, 1, v3
    v_lshl_add_u32 v{WA}, v25, 6, v{WA}
    v_mul_u32_u24 v25, 40, v24
    v_lshlrev_b32 v26, 3, v24
    v_cndmask_b32 v25, v25, v26, s[64:65]
    s_mul_i32 s66, s62, 160
    s_add_u32 s66, s66, {WOFF}
    v_add3_u32 v{WA}, v{WA}, v25, s66
    v_mul_u32_u24 v{EA}, 40, v22
    s_lshl_b32 s66, s62, 5
    s_add_u32 s66, s66, {EOFF}
    v_add3_u32 v{EA}, v{EA}, v26, s66
    """)
    for i in range(88):
        a(f"v_mov_b32 v{ACC+i}, 0")
    a.c("store geometry: s70 unit size, s71 tile size, s72/s73 soffset for slot pair 0/1, s74 extra soffset")
    a(f"""
    s_sub_u32 s66, s55, 1
    s_cmp_lt_u32 s66, 2
    s_mov_b32 s70, {QUNIT}
    s_cselect_b32 s70, {KVUNIT}, s70
    s_mov_b32 s71, 1280
    s_cselect_b32 s71, 2560, s71
    s_cselect_b32 s72, {WS_KV}, {WS_Q}
    s_lshl_b32 s66, s53, 3
    s_lshl_b32 s67, s57, 5
    s_add_u32 s66, s66, s67
    s_lshl_b32 s67, s62, 2
    s_add_u32 s66, s66, s67
    s_mul_i32 s66, s66, s70
    s_add_u32 s72, s72, s66
    s_lshl_b32 s66, s56, 2
    s_lshl_b32 s67, s61, 1
    s_add_u32 s66, s66, s67
    s_add_u32 s67, s66, s63
    s_xor_b32 s76, s63, 1
    s_add_u32 s66, s66, s76
    s_mul_i32 s76, s66, s71
    s_add_u32 s73, s72, s76
    s_mul_i32 s76, s67, s71
    s_add_u32 s72, s72, s76
    s_mul_i32 s74, s67, 2560
    s_add_u32 s74, s74, {WS_KV + 32*KVUNIT}
    v_mul_lo_u32 v22, v3, s70
    v_lshl_add_u32 v{T[0]}, v2, 4, v22
    v_lshl_add_u32 v{T[1]}, v2, 3, v22
    v_add_u32 v{T[1]}, 1024, v{T[1]}
    v_mov_b32 v{T[2]}, 0
    v_mov_b32 v{T[3]}, 0
    v_mov_b32 v{T[4]}, 0
    s_cmp_eq_u32 s55, 2
    s_cbranch_scc0 P1_SETUP_DONE
    s_mov_b32 s76, 0xCCCCCCCD
    v_lshrrev_b32 v25, 1, v3
    v_mul_u32_u24 v25, 640, v25
    v_and_b32 v26, 1, v3
    v_mul_u32_u24 v26, 320, v26
    v_add3_u32 v25, v25, v26, s71
    v_subrev_u32 v25, 1280, v25
    """)
    for n5 in range(5):
        a(f"""
        v_add_u32 v22, {16*n5}, v2
        v_mul_hi_u32 v23, v22, s76
        v_lshrrev_b32 v23, 4, v23
        v_mul_u32_u24 v24, 20, v23
        v_sub_u32 v24, v22, v24
        v_mul_lo_u32 v23, v23, s70
        v_lshl_add_u32 v23, v24, 4, v23
        v_add_u32 v{T[n5]}, v23, v25
        """)
    a("P1_SETUP_DONE:")
    a.c("s76: variant 0 QK, 1 V, 2 QK+Kextra, 3 QK+Vextra; s78 stage counter")
    a(f"""
    s_mov_b32 s76, 0
    s_cmp_eq_u32 s55, 2
    s_cselect_b32 s76, 1, s76
    s_lshr_b32 s66, s53, 1
    s_add_u32 s66, s66, 2
    s_cmp_eq_u32 s57, 1
    s_cselect_b32 s76, s66, s76
    s_mov_b32 s78, 0
    s_mov_b32 s79, {SLOT}
    s_waitcnt lgkmcnt(0)
    s_barrier
    """)
    stamp(a)

    def wreads(g, ks, orient):
        if g < 5:
            return [(f"W{g}", f"ds_read_b64_tr_b16 {vr(WF+4*g+2*i,2)}, v{WA} offset:{ks*(320*32+128)+i*1280+g*(32 if orient else 8)}") for i in range(2)]
        return [("W5", f"ds_read_b64_tr_b16 {vr(EF+2*i,2)}, v{EA} offset:{(32*ks+4*i)*40}") for i in range(2)]

    def xreads(ks, xs, orient):
        return [(f"X{xs}{s_}", f"ds_read_b128 {vr(XF[xs]+4*s_,4)}, v{XA[2*ks+(s_>>1)]} offset:{(s_&1)*(512 if orient else 2048)}") for s_ in range(4)]

    def mlist(xs, orient, extra):
        m = []
        for g in range(6 if extra else 5):
            for s_ in range(4 if g < 5 else 2):
                w, x = vr(WF+4*g if g < 5 else EF, 4), vr(XF[xs]+4*s_, 4)
                d = vr(ACC+(s_*5+g)*4 if g < 5 else EACC+4*s_, 4)
                o = orient if g < 5 else (extra == 2)
                m.append((g, (f"W{g}",) + tuple(f"X{xs}{t_}" for t_ in range(4 if s_ == 0 else 0)), f"{M1632} {d}, {x}, {w}, {d}" if o else f"{M1632} {d}, {w}, {x}, {d}"))
        return m

    def body(orient, extra):
        G = 6 if extra else 5
        items = []
        BARG = 1
        tail = []
        for half in range(2):
            ml = mlist(half, orient, extra)
            q = [("r",) + r for r in wreads(G - 1, half, orient)]
            if half == 0:
                q += [("r",) + r for r in xreads(1, 1, orient)]
            for n, (g, deps, txt) in enumerate(ml):
                items.append(("m", deps, txt))
                last = n + 1 == len(ml) or ml[n + 1][0] != g
                if last and g < G - 1:
                    if half == 0:
                        q += [("r",) + r for r in wreads(g, 1, orient)]
                    elif g == BARG:
                        assert not q
                        items.append(("bar",))
                        q += [("v", f"v_add_u32 v{r}, s77, v{r}") for r in [WA, XA[0], XA[1]]]
                        q += [("r",) + r for r in wreads(0, 0, orient) + xreads(0, 0, orient)]
                        for g2 in range(1, BARG + 1):
                            q += [("r",) + r for r in wreads(g2, 0, orient)]
                        q += [("v", f"v_add_u32 v{r}, s77, v{r}") for r in [XA[2], XA[3]] + ([EA] if extra else [])]
                    elif g > BARG:
                        q += [("r",) + r for r in wreads(g, 0, orient)]
                for _ in range(1 if (last and len(q) <= FILLQ) else 2):
                    if q:
                        it = q.pop(0)
                        items.append(it)
                        if half == 1 and it[0] == "r" and ("bar",) in items:
                            tail.append(it)
            assert not q, (half, q)
        return tail, items

    def emit_body(tail, items):
        seq = [it[1] for it in tail]
        waits = []
        for ps in range(2):
            done = 0 if ps == 0 else done
            w = []
            for it in items:
                if it[0] == "r":
                    seq.append(it[1])
                    w.append(None)
                elif it[0] == "bar":
                    done = len(seq)
                    w.append(0)
                elif it[0] == "m":
                    need = max(max(k for k, x in enumerate(seq) if x == d) for d in it[1]) + 1
                    if need > done:
                        w.append(len(seq) - need)
                        done = need
                    else:
                        w.append(None)
                else:
                    w.append(None)
            waits.append(w)
        for it, w0, w1 in zip(items, *waits):
            ws_ = [x for x in (w0, w1) if x is not None]
            if it[0] == "bar":
                a(f"""
                s_waitcnt lgkmcnt(0)
                s_barrier
                """)
                continue
            if ws_:
                assert min(ws_) <= 15
                a(f"s_waitcnt lgkmcnt({min(ws_)})")
            a(it[-1])

    variants = [(0, 0), (1, 0), (0, 1), (0, 2)]
    a(f"""
    s_cmp_eq_u32 s76, 1
    s_cbranch_scc1 P1_V1
    s_cmp_eq_u32 s76, 2
    s_cbranch_scc1 P1_V2
    s_cmp_eq_u32 s76, 3
    s_cbranch_scc1 P1_V3
    """)
    for vi, (orient, extra) in enumerate(variants):
        tail, items = body(orient, extra)
        a(f"P1_V{vi}:")
        for it in tail:
            a(it[2])
        a(f"P1_L{vi}:")
        a(f"""
        s_and_b32 s77, s78, 3
        s_cmp_eq_u32 s77, 3
        s_cselect_b32 s77, {(-3*SLOT) & 0xffffffff}, s79
        """)
        emit_body(tail, items)
        stamp(a, lvl=2)
        a(f"""
        s_add_u32 s78, s78, 1
        s_cmp_lt_u32 s78, 10
        s_cbranch_scc1 P1_L{vi}
        """)
        if vi == 1:
            a("s_branch P1_EPI_V")
        elif vi < 3:
            a("s_branch P1_EPI_QK")
    a("P1_EPI_QK:")
    stamp(a)
    a(f"""
    s_nop 7
    s_waitcnt lgkmcnt(0)
    s_cmp_eq_u32 s55, 1
    s_cbranch_scc1 P1_NOSCALE
    s_mov_b32 s80, {hex(f32bits(QSCALE))}
    s_mov_b32 s81, {hex(f32bits(QSCALE))}
    """)
    for i in range(0, 80, 2):
        a(f"v_pk_mul_f32 {vr(ACC+i,2)}, s[80:81], {vr(ACC+i,2)}")
    a("P1_NOSCALE:")
    for s_ in range(4):
        t = 16 + 12 * s_
        for n5 in range(5):
            b = ACC + (s_ * 5 + n5) * 4
            a(f"v_cvt_pk_bf16_f32 v{t+2*n5}, v{b}, v{b+1}")
            a(f"v_cvt_pk_bf16_f32 v{t+2*n5+1}, v{b+2}, v{b+3}")
        so = f"s{72+(s_>>1)}"
        a(f"buffer_store_dwordx4 {vr(t,4)}, v{T[0]}, s[8:11], {so} offen offset:{(s_&1)*256} {STMOD}")
        a(f"buffer_store_dwordx4 {vr(t+4,4)}, v{T[0]}, s[8:11], {so} offen offset:{(s_&1)*256+512} {STMOD}")
        a(f"buffer_store_dwordx2 {vr(t+8,2)}, v{T[1]}, s[8:11], {so} offen offset:{(s_&1)*128} {STMOD}")
    TX = 70
    a(f"""
    s_cmp_lt_u32 s76, 2
    s_cbranch_scc1 P1_DONE
    v_cvt_pk_bf16_f32 v64, v{EACC}, v{EACC+1}
    v_cvt_pk_bf16_f32 v65, v{EACC+2}, v{EACC+3}
    v_cvt_pk_bf16_f32 v66, v{EACC+4}, v{EACC+5}
    v_cvt_pk_bf16_f32 v67, v{EACC+6}, v{EACC+7}
    v_lshrrev_b32 v68, 1, v3
    v_and_b32 v69, 1, v3
    s_cmp_eq_u32 s76, 3
    s_cbranch_scc1 P1_EPI_VX
    s_cmp_eq_u32 s62, 1
    s_cbranch_scc1 P1_EPI_KX1
    v_lshlrev_b32 v{TX}, 9, v68
    v_lshl_add_u32 v{TX}, v69, 3, v{TX}
    v_lshl_add_u32 v{TX}, v2, 4, v{TX}
    buffer_store_dwordx2 v[64:65], v{TX}, s[8:11], s74 offen {STMOD}
    buffer_store_dwordx2 v[66:67], v{TX}, s[8:11], s74 offen offset:256 {STMOD}
    s_branch P1_DONE
    P1_EPI_KX1:
    v_lshlrev_b32 v{TX}, 3, v2
    s_mov_b32 exec_lo, 0xffff
    s_mov_b32 exec_hi, 0
    buffer_store_dwordx2 v[64:65], v{TX}, s[8:11], s74 offen offset:1024 {STMOD}
    buffer_store_dwordx2 v[66:67], v{TX}, s[8:11], s74 offen offset:1152 {STMOD}
    s_mov_b64 exec, -1
    s_branch P1_DONE
    P1_EPI_VX:
    v_mul_u32_u24 v{TX}, 320, v68
    v_lshl_add_u32 v{TX}, v69, 3, v{TX}
    v_lshl_add_u32 v{TX}, v2, 4, v{TX}
    s_lshl_b32 s66, s62, 8
    s_add_u32 s74, s74, s66
    s_cmp_eq_u32 s62, 1
    s_mov_b32 s66, 0x000f000f
    s_cselect_b32 s66, s66, -1
    s_mov_b32 exec_lo, s66
    s_mov_b32 exec_hi, s66
    buffer_store_dwordx2 v[64:65], v{TX}, s[8:11], s74 offen offset:1280 {STMOD}
    buffer_store_dwordx2 v[66:67], v{TX}, s[8:11], s74 offen offset:1920 {STMOD}
    s_mov_b64 exec, -1
    s_branch P1_DONE
    P1_EPI_V:
    """)
    stamp(a)
    a("s_nop 7")
    a("s_waitcnt lgkmcnt(0)")
    for pr in range(2):
        for n5 in range(5):
            t = 16 + 4 * (pr * 5 + n5)
            for h in range(2):
                b = ACC + ((2 * pr + h) * 5 + n5) * 4
                a(f"v_cvt_pk_bf16_f32 v{t+2*h}, v{b}, v{b+1}")
                a(f"v_cvt_pk_bf16_f32 v{t+2*h+1}, v{b+2}, v{b+3}")
            a(f"buffer_store_dwordx4 {vr(t,4)}, v{T[n5]}, s[8:11], s{72+pr} offen {STMOD}")
    a("s_branch P1_DONE")

    XO, WO, EO = 4, 5, 6
    NPS = 11
    a(f"""
    P1_LOADER:
    s_cmp_eq_u32 s3, 8
    s_cbranch_scc1 P1_IDLE
    s_sub_u32 s12, s3, 4
    s_lshl_b32 s61, s56, 7
    s_lshl_b32 s62, s12, 3
    s_add_u32 s61, s61, s62
    v_lshrrev_b32 v2, 3, v1
    v_add_u32 v2, s61, v2
    v_mul_u32_u24 v2, 1280, v2
    s_and_b32 s62, s12, 1
    s_lshl_b32 s62, s62, 2
    v_lshrrev_b32 v3, 4, v1
    v_add_u32 v3, s62, v3
    s_lshl_b32 s62, s12, 1
    v_bfe_u32 v11, v1, 4, 1
    v_or_b32 v11, s62, v11
    s_cmp_eq_u32 s55, 2
    s_cselect_b64 vcc, -1, 0
    s_lshl_b32 s65, s12, 10
    v_cndmask_b32 v3, v3, v11, vcc
    v_and_b32 v11, 7, v1
    v_xor_b32 v3, v3, v11
    v_lshl_add_u32 v{XO}, v3, 4, v2
    s_mov_b32 s72, 0xCCCCCCCD
    s_lshl_b32 s63, s12, 4
    v_mul_hi_u32 v3, v1, s72
    v_lshrrev_b32 v3, 4, v3
    v_mul_u32_u24 v11, 20, v3
    v_sub_u32 v11, v1, v11
    v_add_u32 v3, s63, v3
    v_mul_lo_u32 v3, v3, s58
    v_lshl_add_u32 v3, v11, 4, v3
    v_add_u32 v{WO}, s59, v3
    s_mul_i32 s64, s12, 640
    v_lshlrev_b32 v{EO}, 4, v1
    v_add_u32 v{EO}, s64, v{EO}
    s_mul_i32 s66, s12, 5184
    s_add_u32 s66, s66, {WOFF}
    s_add_u32 s67, s64, {EOFF}
    s_mul_i32 s68, s58, 50
    s_mul_i32 s69, s58, 3
    s_lshl_b32 s79, s58, 1
    s_add_u32 s80, s52, s53
    s_and_b32 s80, s80, {ROT_MASK}
    s_mul_i32 s80, s80, {ROT_MUL}
    s_lshr_b32 s80, s80, 2
    s_mul_i32 s81, s55, {ROT_P}
    s_add_u32 s80, s80, s81
    s_mul_i32 s81, s54, {ROT_H}
    s_add_u32 s80, s80, s81
    s_cmp_ge_u32 s80, 10
    s_cselect_b32 s81, 10, 0
    s_sub_u32 s80, s80, s81
    s_lshl_b32 s70, s80, 7
    s_lshl_b32 s71, s58, 6
    s_mul_i32 s71, s71, s80
    s_mul_i32 s73, s80, 2560
    s_mov_b32 s74, 0
    s_mov_b32 s34, {2048*1280}
    s_mov_b32 s35, 0x00020000
    s_mov_b32 s39, 0x00020000
    s_mov_b32 s43, 0x00020000
    s_mov_b32 s77, 0
    s_cmp_eq_u32 s57, 1
    s_mov_b32 s38, {640*3840}
    s_cselect_b32 s38, {640*1280}, s38
    s_cselect_b32 s42, {640*40}, 0
    s_waitcnt lgkmcnt(0)
    s_cselect_b32 s32, s22, s16
    s_cselect_b32 s33, s23, s17
    s_cselect_b32 s36, s24, s18
    s_cselect_b32 s37, s25, s19
    s_cmp_lt_u32 s53, 2
    s_cselect_b32 s40, s26, s28
    s_cselect_b32 s41, s27, s29
    """)
    a.c("k order is rotated per WG (s80) so that a cold start spreads over the whole K range")
    a.c("s65/s66/s67 LDS rel bases; s70 x soff, s71 W soff, s73 E soff, s74 slot base")
    a("P1_LP:")
    a("s_add_u32 s75, s74, s65")
    for t in range(4):
        a(f"""
        s_add_u32 m0, s75, {4096*t}
        s_add_u32 s76, s70, {40960*t}
        buffer_load_dwordx4 v{XO}, s[32:35], s76 offen {XMOD} lds
        """)
    a("s_add_u32 s75, s74, s66")
    for t, r0 in enumerate([0, 3, 6, 8, 11, 14]):
        a(f"s_add_u32 m0, s75, {320*r0 + (32 if r0 >= 8 else 0)}")
        a(f"s_mov_b32 exec_hi, {'0xff' if t % 3 == 2 else '0x0fffffff'}")
        a(f"buffer_load_dwordx4 v{WO}, s[36:39], s71 offen {WMOD} lds")
        a(f"s_add_u32 s71, s71, {'s69' if t % 3 < 2 else ('s79' if t == 2 else 's68')}")
    a(f"""
    s_add_u32 m0, s74, s67
    s_add_u32 s70, s70, 128
    buffer_load_dwordx4 v{EO}, s[40:43], s73 offen lds
    s_mov_b32 exec_hi, -1
    s_add_u32 s73, s73, 2560
    s_add_u32 s74, s74, {SLOT}
    s_cmp_eq_u32 s74, {NSLOT*SLOT}
    s_cselect_b32 s74, 0, s74
    s_cmp_eq_u32 s70, 1280
    s_cselect_b32 s70, 0, s70
    s_cselect_b32 s71, 0, s71
    s_cselect_b32 s73, 0, s73
    s_add_u32 s77, s77, 1
    """)
    if LA3:
        a(f"""
        s_bitcmp1_b32 0x0a, s77
        s_cbranch_scc1 P1_LP
        s_cmp_eq_u32 s77, 2
        s_cbranch_scc0 P1_LP2
        s_waitcnt vmcnt({NPS})
        s_barrier
        s_branch P1_LP
        P1_LP2:
        s_waitcnt vmcnt({2*NPS})
        s_barrier
        s_cmp_lt_u32 s77, 10
        s_cbranch_scc1 P1_LP
        s_waitcnt vmcnt({NPS})
        s_barrier
        s_waitcnt vmcnt(0)
        """)
    else:
        a(f"""
        s_cmp_lt_u32 s77, 2
        s_cbranch_scc1 P1_LP
        s_waitcnt vmcnt({NPS})
        s_barrier
        s_cmp_lt_u32 s77, 10
        s_cbranch_scc1 P1_LP
        s_waitcnt vmcnt(0)
        """)
    stamp(a)
    a(f"""
    s_barrier
    s_barrier
    s_branch P1_DONE
    P1_IDLE:
    s_mov_b32 s77, 0
    s_waitcnt lgkmcnt(0)
    P1_IDLE1:
    s_barrier
    s_add_u32 s77, s77, 1
    s_cmp_lt_u32 s77, 11
    s_cbranch_scc1 P1_IDLE1
    P1_DONE:
    """)
    stamp(a)
    dpt(a, 0)


def flag_prep(a, ph, delta, idcode, HT):
    a("s_memrealtime s[44:45]")
    a(idcode)
    a(f"""
    v_lshlrev_b32 v9, 7, v9
    v_lshlrev_b32 v7, 4, v1
    s_lshl_b32 s48, s2, 7
    s_add_u32 s48, s48, {WS_FLAG + ph*0x8000}
    s_mov_b32 s49, {WS_FLAG + ph*0x8000}
    s_sub_u32 s46, s6, {delta}
    s_subb_u32 s47, s7, 0
    s_waitcnt lgkmcnt(0)
    v_mov_b32 v{HT}, s44
    v_mov_b32 v{HT+1}, s45
    v_mov_b32 v{HT+2}, s44
    v_mov_b32 v{HT+3}, s45
    v_mov_b32 v11, s47
    """)


def flag_publish(a, HT):
    a(f"""
    s_mov_b64 exec, 0xff
    buffer_store_dwordx4 {vr(HT,4)}, v7, s[8:11], s48 offen sc1
    s_mov_b64 exec, -1
    """)


def flag_poll(a, tag, HT):
    P = HT + 4
    a(f"""
    s_mov_b64 exec, s[50:51]
    s_mov_b32 s48, 0
    {tag}_POLL:
    buffer_load_dwordx2 {vr(P,2)}, v9, s[8:11], s49 offen sc1
    s_add_u32 s48, s48, 1
    s_waitcnt vmcnt(0)
    v_subrev_co_u32 v10, vcc, s46, v{P}
    s_nop 1
    v_subb_co_u32 v7, vcc, v{P+1}, v11, vcc
    v_lshrrev_b32 v10, 24, v10
    v_or_b32 v10, v10, v7
    v_cmp_eq_u32 vcc, 0, v10
    s_cmp_ge_u32 s48, {SPIN_MAX}
    s_cbranch_scc1 {tag}_OUT
    s_nop 1
    s_cmp_eq_u64 vcc, s[50:51]
    s_cbranch_scc1 {tag}_OUT
    s_sleep {POLL_SLEEP}
    s_branch {tag}_POLL
    {tag}_OUT:
    s_mov_b64 exec, -1
    """)


def handoff(a, tag, ph, delta, idcode, HT):
    a(f"""
    s_cmp_lg_u32 s3, 0
    s_cbranch_scc1 {tag}_PRE
    """)
    flag_prep(a, ph, delta, idcode, HT)
    a(f"""
    {tag}_PRE:
    s_waitcnt vmcnt(0)
    """)
    stamp(a)
    a(f"""
    s_barrier
    s_cmp_lg_u32 s3, 0
    s_cbranch_scc1 {tag}_WAIT
    """)
    flag_publish(a, HT)
    flag_poll(a, tag, HT)
    a(f"{tag}_WAIT:")


def oaddr(a, wavereg):
    a(f"""
    s_mul_i32 s36, s15, {OBR}
    s_lshl_b32 s37, s18, 5
    s_lshl_b32 s38, {wavereg}, 2
    s_add_u32 s37, s37, s38
    s_mul_i32 s37, s37, 20480
    s_add_u32 s36, s36, s37
    s_add_u32 s36, s36, {WS_O}
    s_lshr_b32 s37, s17, 1
    s_lshl_b32 s37, s37, 10
    s_and_b32 s38, s17, 1
    s_lshl_b32 s38, s38, 9
    s_add_u32 s37, s37, s38
    s_add_u32 s37, s37, s36
    s_lshr_b32 s38, s17, 3
    s_lshl_b32 s38, s38, 10
    s_add_u32 s38, s38, 16384
    s_bfe_u32 s39, s17, 0x10002
    s_lshl_b32 s39, s39, 9
    s_add_u32 s38, s38, s39
    s_and_b32 s39, s17, 1
    s_lshl_b32 s39, s39, 8
    s_add_u32 s38, s38, s39
    s_bfe_u32 s39, s17, 0x10001
    s_lshl_b32 s39, s39, 3
    s_add_u32 s38, s38, s39
    s_add_u32 s38, s38, s36
    """)


def phase2(a):
    global NOMORE
    NOMORE = True
    VL, L16, KA, KH, VA, IDX = 1, 2, 3, 4, 5, 6
    QA_LO, QA_HI, QB_HI, QB_LO = 12, 16, 18, 20
    KLO = [24, 32]
    KHI = [28, 30]
    VB = [36, 44]
    SA, SB, OA, OB = 52, 68, 84, 100
    MA, MB = 116, 117
    a(f"""
    s_and_b32 s13, s2, 7
    s_lshr_b32 s14, s2, 3
    s_lshr_b32 s15, s14, 4
    s_bfe_u32 s16, s14, 0x20002
    s_lshl_b32 s17, s13, 2
    s_add_u32 s17, s17, s16
    s_and_b32 s18, s14, 3
    s_lshl_b32 s19, s15, 5
    s_add_u32 s19, s19, s17
    s_cmp_eq_u32 s15, 0
    s_cselect_b32 s21, s17, 32
    """)
    a.c("s15 br, s17 head, s18 qb, s19 unit, s21 kv unit")
    a(f"""
    s_mul_i32 s25, s19, {QUNIT}
    s_mul_i32 s26, s18, 20480
    s_add_u32 s25, s25, s26
    s_mul_i32 s26, s3, 2560
    s_add_u32 s25, s25, s26
    s_mul_i32 s27, s21, {KVUNIT}
    s_lshl_b32 s28, s3, 10
    s_add_u32 s27, s27, s28
    s_add_u32 s27, s27, {WS_KV}
    v_lshlrev_b32 v{L16}, 4, v{VL}
    s_cmp_eq_u32 s3, 8
    s_cbranch_scc1 P2_LOADER
    v_and_b32 v7, 31, v{VL}
    v_lshrrev_b32 v8, 5, v{VL}
    v_lshlrev_b32 v{KH}, 3, v7
    v_lshl_add_u32 v{KH}, v8, 2, v{KH}
    v_add_u32 v{KH}, 1024, v{KH}
    v_mul_u32_u24 v{VA}, 20, v8
    v_add_u32 v{VA}, v{VA}, v7
    v_lshlrev_b32 v{VA}, 4, v{VA}
    v_add_u32 v{VA}, 1280, v{VA}
    v_mov_b32 v{KA}, v{L16}
    v_mov_b32 v{IDX}, 0xdddddddd
    v_mov_b32 v{QA_HI+1}, 0
    v_mov_b32 v{QB_HI+1}, 0
    v_mov_b32 v{KHI[0]+1}, 0
    v_mov_b32 v{KHI[1]+1}, 0
    v_and_b32 v9, {31 if ONES1 else 27}, v7
    v_cmp_eq_u32 vcc, 24, v9
    v_mov_b32 v9, 0
    v_mov_b32 v10, 0x3f803f80
    s_mov_b32 s22, 0x000fffff
    s_mov_b32 s23, 0x000fffff
    s_cmp_lt_u32 s3, 4
    s_cselect_b32 s24, 0x92, {LOWY}
    v_cndmask_b32 v9, v9, v10, vcc
    """)
    for i in range(16):
        a(f"v_mov_b32 v{VB[0]+i}, v9")
    for i in range(16):
        a(f"v_mov_b32 v{SB+i}, 0")
    for i in range(32):
        a(f"v_mov_b32 v{OA+i}, 0")
    a.c("phase-3 scalars: s60..s69 O-image soffsets per kappa group, s71 d_out soffset, s72 transpose area")
    a(f"""
    s_lshr_b32 s73, s13, 2
    s_and_b32 s74, s13, 3
    s_lshl_b32 s74, s74, 2
    s_and_b32 s75, s14, 3
    s_add_u32 s74, s74, s75
    s_lshr_b32 s75, s14, 2
    s_mul_i32 s60, s73, {OBR}
    s_lshl_b32 s76, s74, 3
    s_lshl_b32 s77, s3, 1
    s_add_u32 s76, s76, s77
    s_mul_i32 s76, s76, 20480
    s_add_u32 s60, s60, s76
    s_add_u32 s60, s60, {WS_O}
    s_add_u32 s61, s60, 20480
    s_lshl_b32 s71, s74, 7
    s_lshl_b32 s76, s3, 5
    s_add_u32 s71, s71, s76
    s_mul_i32 s71, s71, 2560
    s_mul_i32 s76, s73, 1280
    s_add_u32 s71, s71, s76
    s_mul_i32 s76, s75, 160
    s_add_u32 s71, s71, s76
    s_mul_i32 s72, s3, 5120
    s_add_u32 s72, s72, {P3_TR}
    """)
    for g in range(1, 5):
        a(f"s_add_u32 s{60+2*g}, s60, {4096*g}")
        a(f"s_add_u32 s{61+2*g}, s61, {4096*g}")
    handoff(a, "H1", 0, 1000, f"""
    s_lshr_b32 s49, s17, 3
    s_lshl_b32 s49, s49, 6
    v_add_u32 v9, s49, v1
    v_and_b32 v10, 7, v1
    v_cmp_gt_u32 s[50:51], 6, v10
    v_lshrrev_b32 v10, 1, v1
    v_lshlrev_b32 v10, 3, v10
    v_and_b32 v11, 1, v1
    v_add3_u32 v10, v10, v11, 6
    s_cmp_eq_u32 s15, 0
    s_cselect_b64 vcc, -1, 0
    s_cselect_b64 s[50:51], s[50:51], -1
    v_cndmask_b32 v9, v10, v9, vcc
    """, 120)
    a(f"""
    s_mov_b32 m0, s28
    s_barrier
    """)
    stamp(a)
    dpt(a, 1)
    a(f"""
    buffer_load_dwordx4 v{L16}, s[8:11], s27 offen lds
    buffer_load_dwordx4 {vr(QA_LO,4)}, v{L16}, s[8:11], s25 offen
    buffer_load_dword v{QA_HI}, v{KH}, s[8:11], s25 offen
    buffer_load_dwordx4 {vr(QB_LO,4)}, v{L16}, s[8:11], s25 offen offset:1280
    buffer_load_dword v{QB_HI}, v{KH}, s[8:11], s25 offen offset:1280
    s_setprio 2
    s_mov_b64 vcc, -1
    s_mov_b32 s20, 0
    """)
    for r in range(1, 4):
        a(f"s_add_u32 m0, m0, 8192")
        a(f"s_add_u32 s27, s27, 8192")
        a(f"buffer_load_dwordx4 v{L16}, s[8:11], s27 offen lds")
    a(f"""
    s_waitcnt vmcnt(3)
    s_barrier
    """)
    stamp(a)
    a(f"""
    ds_read_b128 {vr(KLO[0],4)}, v{KA}
    ds_read_b32 v{KHI[0]}, v{KH}
    ds_read_b128 {vr(KLO[1],4)}, v{KA} offset:2560
    ds_read_b32 v{KHI[1]}, v{KH} offset:2560
    s_mov_b64 exec, s[22:23]
    ds_read_b128 {vr(VB[0],4)}, v{VA}
    ds_read_b128 {vr(VB[0]+4,4)}, v{VA} offset:640
    s_mov_b64 exec, -1
    s_waitcnt lgkmcnt(4)
    {M16} {vr(SA,16)}, {vr(KLO[0],4)}, {vr(QA_LO,4)}, 0
    {M8} {vr(SA,16)}, {vr(KHI[0],2)}, {vr(QA_HI,2)}, {vr(SA,16)}
    s_nop 15
    """)

    def ex(base, lo, hi):
        for i in range(lo, hi):
            a(f"v_exp_f32 v{base+i}, v{base+i}")

    a(".p2align 6")
    a("P2_LOOP:")
    for j in range(8):
        p = j & 1
        ex(SA, 0, 2)
        a(f"{SM} {vr(OB,16)}, {vr(VB[1-p]+4,4)}, {vr(SB+8,8)}, v{IDX}")
        ex(SA, 2, 4)
        a(f"{M16} {vr(SB,16)}, {vr(KLO[p],4)}, {vr(QB_LO,4)}, 0")
        ex(SA, 4, 8)
        a(f"{M8} {vr(SB,16)}, {vr(KHI[p],2)}, {vr(QB_HI,2)}, {vr(SB,16)}")
        a("s_waitcnt lgkmcnt(0)")
        if j in (1, 4):
            a(f"s_cbranch_vccnz P2_SY{j}")
            a(f"P2_SY{j}_RET:")
        a(f"ds_read_b128 {vr(KLO[p],4)}, v{KA} offset:{(j+2)*2560}")
        a(f"ds_read_b32 v{KHI[p]}, v{KH} offset:{(j+2)*2560}")
        if j == LOWJ:
            a("s_bitcmp1_b32 s24, s20")
            a(f"s_cbranch_scc1 P2_LOWP")
            a(f"P2_LOWP_RET:")
        ex(SA, 8, 12)
        a(f"{SM} {vr(OA,16)}, {vr(VB[p],4)}, {vr(SA,8)}, v{IDX}")
        ex(SA, 12, 16)
        ex(SB, 0, 2)
        a(f"{SM} {vr(OA,16)}, {vr(VB[p]+4,4)}, {vr(SA+8,8)}, v{IDX}")
        ex(SB, 2, 4)
        a(f"{M16} {vr(SA,16)}, {vr(KLO[1-p],4)}, {vr(QA_LO,4)}, 0")
        ex(SB, 4, 8)
        a(f"{M8} {vr(SA,16)}, {vr(KHI[1-p],2)}, {vr(QA_HI,2)}, {vr(SA,16)}")
        a("s_mov_b64 exec, s[22:23]")
        a(f"ds_read_b128 {vr(VB[1-p],4)}, v{VA} offset:{(j+1)*2560}")
        a(f"ds_read_b128 {vr(VB[1-p]+4,4)}, v{VA} offset:{(j+1)*2560+640}")
        a("s_mov_b64 exec, -1")
        ex(SB, 8, 12)
        a(f"{SM} {vr(OB,16)}, {vr(VB[p],4)}, {vr(SB,8)}, v{IDX}")
        ex(SB, 12, 16)
    stamp(a, lvl=3)
    a.c("chunk boundary: barriers before chunks 2 and 5; priority falls as a wave advances so the SIMD's two waves stay level")
    a(f"""
    v_add_u32 v{KA}, 20480, v{KA}
    v_add_u32 v{KH}, 20480, v{KH}
    v_add_u32 v{VA}, 20480, v{VA}
    s_add_u32 s20, s20, 1
    s_mov_b64 vcc, 0
    s_bitcmp1_b32 0x24, s20
    s_cbranch_scc0 P2_NOBAR
    s_barrier
    s_setprio 3
    s_branch P2_LOOP
    P2_LOWP:
    s_setprio 0
    s_branch P2_LOWP_RET
    P2_SY1:
    s_waitcnt vmcnt(2)
    s_barrier
    s_branch P2_SY1_RET
    P2_SY4:
    s_waitcnt vmcnt(0)
    s_barrier
    s_branch P2_SY4_RET
    P2_LOADER:
    """)
    a.c("wave 8: rounds 4..19 of the K/V image, then (once chunks 0-4 are dead) the phase-3 wo slice")
    a(f"""
    s_load_dwordx2 s[52:53], s[0:1], 16
    s_load_dwordx2 s[54:55], s[0:1], 56
    s_mov_b32 s60, 0xCCCCCCCD
    v_mul_hi_u32 v9, v1, s60
    v_lshrrev_b32 v9, 3, v9
    v_mul_u32_u24 v10, 10, v9
    v_sub_u32 v10, v1, v10
    v_mul_u32_u24 v9, 1280, v9
    v_lshl_add_u32 v8, v10, 4, v9
    s_lshr_b32 s56, s14, 2
    s_mul_i32 s56, s56, 160
    s_mov_b32 s34, {640*1280}
    s_mov_b32 s35, 0x00020000
    s_cmp_lt_u32 s13, 4
    s_waitcnt lgkmcnt(0)
    s_cselect_b32 s32, s52, s54
    s_cselect_b32 s33, s53, s55
    s_add_u32 s27, s27, {32768-8192}
    s_mov_b32 m0, 32768
    s_mov_b32 s20, 1
    s_barrier
    s_barrier
    s_barrier
    P2_LD1:
    """)
    for r in range(8):
        a(f"buffer_load_dwordx4 v{L16}, s[8:11], s27 offen lds")
        a(f"s_add_u32 m0, m0, 1024")
        a(f"s_add_u32 s27, s27, 1024")
    a(f"""
    s_add_u32 s20, s20, 1
    s_cmp_eq_u32 s20, 2
    s_cbranch_scc0 P2_LD2
    s_barrier
    P2_LD2:
    s_cmp_eq_u32 s20, 5
    s_cbranch_scc0 P2_LD3
    s_waitcnt vmcnt(16)
    s_barrier
    P2_LD3:
    s_cmp_lt_u32 s20, 17
    s_cbranch_scc1 P2_LD1
    s_waitcnt vmcnt(0)
    s_barrier
    """)
    a.c("mark this WG's O slots as 'not written yet' (all-ones words); phase 3 consumes the data itself as its flag")
    oaddr(a, "0")
    a(f"""
    v_and_b32 v12, 31, v1
    v_lshlrev_b32 v12, 4, v12
    v_lshrrev_b32 v13, 5, v1
    v_mul_u32_u24 v13, 20480, v13
    v_add_u32 v12, v12, v13
    v_and_b32 v13, 15, v1
    v_lshlrev_b32 v13, 4, v13
    v_lshrrev_b32 v14, 4, v1
    v_mul_u32_u24 v14, 20480, v14
    v_add_u32 v13, v13, v14
    v_mov_b32 v16, -1
    v_mov_b32 v17, -1
    v_mov_b32 v18, -1
    v_mov_b32 v19, -1
    s_mov_b32 s59, 0
    P2_PO:
    buffer_store_dwordx4 v[16:19], v12, s[8:11], s37 offen sc1
    s_add_u32 s37, s37, 40960
    buffer_store_dwordx4 v[16:19], v12, s[8:11], s37 offen sc1
    s_add_u32 s37, s37, 40960
    buffer_store_dwordx2 v[16:17], v13, s[8:11], s38 offen sc1
    s_add_u32 s38, s38, 81920
    s_add_u32 s59, s59, 1
    s_cmp_lt_u32 s59, 8
    s_cbranch_scc1 P2_PO
    """)
    flag_prep(a, 1, 0, f"""
    s_lshr_b32 s49, s13, 2
    s_lshl_b32 s49, s49, 4
    s_and_b32 s50, s13, 3
    s_add_u32 s49, s49, s50
    s_lshl_b32 s49, s49, 3
    v_bfe_u32 v10, v1, 3, 2
    v_lshlrev_b32 v10, 5, v10
    v_and_b32 v9, 7, v1
    v_add3_u32 v9, v9, v10, s49
    s_mov_b32 s50, -1
    s_mov_b32 s51, 0
    """, 20)
    a("s_waitcnt vmcnt(0)")
    flag_publish(a, 20)
    a(f"""
    s_lshr_b32 s57, s14, 2
    s_cmp_ge_u32 s57, 5
    s_cselect_b32 s58, 5, 0
    s_sub_u32 s57, s57, s58
    s_sub_u32 s57, 5, s57
    s_mul_i32 s57, s57, {20480*P3ROT}
    s_mov_b32 s59, 0
    s_cmp_ge_u32 s57, 102400
    s_cselect_b32 s57, 0, s57
    s_mov_b32 s58, s56
    """)
    flag_poll(a, "HP", 20)
    a(f"""
    s_barrier
    P2_LW1:
    """)
    rows = [0, 6, 12, 16, 22, 28]
    src = [0, 6, 12, 20, 26, 32]
    for t in range(6):
        a(f"""
        s_add_u32 m0, s57, {rows[t]*160}
        s_add_u32 s62, s58, {src[t]*1280}
        s_mov_b32 exec_hi, {'0xff' if t % 3 == 2 else '0x0fffffff'}
        buffer_load_dwordx4 v8, s[32:35], s62 offen lds
        """)
    a(f"""
    s_add_u32 s57, s57, 5120
    s_cmp_ge_u32 s57, 102400
    s_cselect_b32 s57, 0, s57
    s_add_u32 s58, s58, {40*1280}
    s_add_u32 s59, s59, 1
    s_cmp_lt_u32 s59, 16
    s_cbranch_scc1 P2_LW1
    s_add_u32 s58, s56, {16*1280}
    P2_LW2:
    s_mov_b32 m0, s57
    s_add_u32 s57, s57, 640
    buffer_load_dwordx4 v8, s[32:35], s58 offen lds
    s_add_u32 s58, s58, {20*1280}
    s_add_u32 s59, s59, 1
    s_cmp_lt_u32 s59, 48
    s_cbranch_scc1 P2_LW2
    s_waitcnt vmcnt(0)
    s_barrier
    s_endpgm
    P2_NOBAR:
    s_setprio 2
    s_bitcmp1_b32 0x48, s20
    s_cbranch_scc1 P2_LOOP
    s_setprio 1
    s_cmp_lt_u32 s20, 8
    s_cbranch_scc1 P2_LOOP
    s_setprio 0
    {SM} {vr(OB,16)}, {vr(VB[1]+4,4)}, {vr(SB+8,8)}, v{IDX}
    s_waitcnt lgkmcnt(0)
    s_nop 15
    """)
    stamp(a)
    dpt(a, 2)
    def lbro():
        if ONES1:
            a(f"""
            v_mov_b32 v7, v{OA+12}
            v_mov_b32 v8, v{OB+12}
            s_nop 1
            v_permlane32_swap_b32 v{OA+12}, v7
            v_permlane32_swap_b32 v{OB+12}, v8
            s_nop 1
            """)
    lbro()
    a.c("---- safety check of the unshifted softmax: l within [2^-30, 2^110], all O finite; else redo with the true max")
    a(f"""
    s_mov_b32 s30, {hex(f32bits(2.0**-30))}
    s_mov_b32 s31, {hex(f32bits(2.0**110))}
    v_mul_f32 v7, 0, v{OA}
    """)
    for i in range(1, 12):
        a(f"v_fma_f32 v7, v{OA+i}, 0, v7")
    for i in range(12):
        a(f"v_fma_f32 v7, v{OB+i}, 0, v7")
    a(f"""
    v_min_f32 v8, v{OA+12}, v{OB+12}
    v_max_f32 v9, v{OA+12}, v{OB+12}
    v_add_f32 v7, v7, v{OA+12}
    v_add_f32 v7, v7, v{OB+12}
    v_cmp_le_f32 vcc, s30, v8
    v_cmp_ge_f32 s[32:33], s31, v9
    v_cmp_o_f32 s[34:35], v7, v7
    s_nop 3
    s_and_b64 vcc, vcc, s[32:33]
    s_and_b64 vcc, vcc, s[34:35]
    s_cmp_eq_u64 vcc, -1
    s_cbranch_scc0 P2_FALLBACK
    P2_STORE:
    """)
    oaddr(a, "s3")
    a(f"""
    v_and_b32 v7, 15, v{VL}
    v_lshlrev_b32 v7, 4, v7
    v_bfe_u32 v8, v{VL}, 4, 1
    v_mul_u32_u24 v8, 20480, v8
    v_add_u32 v7, v7, v8
    v_lshrrev_b32 v8, 5, v{VL}
    v_lshl_add_u32 v8, v8, 8, v7
    v_rcp_f32 v10, v{OA+12}
    v_rcp_f32 v11, v{OB+12}
    s_add_u32 s40, s37, 40960
    s_add_u32 s41, s38, 40960
    """)
    for (o, r, t) in ((OA, 10, SA), (OB, 11, SB)):
        for i in range(12):
            a(f"v_mul_f32 v{o+i}, v{o+i}, v{r}")
        for i in range(6):
            a(f"v_cvt_pk_bf16_f32 v{t+i}, v{o+2*i}, v{o+2*i+1}")
    a(f"""
    buffer_store_dwordx4 {vr(SA,4)}, v8, s[8:11], s37 offen {STMOD}
    buffer_store_dwordx4 {vr(SB,4)}, v8, s[8:11], s40 offen {STMOD}
    s_mov_b32 exec_hi, 0
    buffer_store_dwordx2 {vr(SA+4,2)}, v7, s[8:11], s38 offen {STMOD}
    buffer_store_dwordx2 {vr(SB+4,2)}, v7, s[8:11], s41 offen {STMOD}
    s_mov_b64 exec, -1
    """)
    stamp(a)
    a("s_branch P2_DONE")
    a.c("---- fallback: textbook two-pass softmax with the true row max, K/V fragments straight from the workspace image")
    a(f"""
    P2_FALLBACK:
    v_mov_b32 v{MA}, 0xff800000
    v_mov_b32 v{MB}, 0xff800000
    v_subrev_u32 v{KH}, {8*20480}, v{KH}
    v_subrev_u32 v{VA}, {8*20480}, v{VA}
    s_mul_i32 s27, s21, {KVUNIT}
    s_add_u32 s27, s27, {WS_KV}
    s_mov_b32 s26, s27
    s_mov_b32 s20, 0
    P2_FB1:
    buffer_load_dwordx4 {vr(KLO[0],4)}, v{L16}, s[8:11], s26 offen
    buffer_load_dword v{KHI[0]}, v{KH}, s[8:11], s26 offen
    s_add_u32 s26, s26, 2560
    s_waitcnt vmcnt(0)
    {M16} {vr(SA,16)}, {vr(KLO[0],4)}, {vr(QA_LO,4)}, 0
    {M8} {vr(SA,16)}, {vr(KHI[0],2)}, {vr(QA_HI,2)}, {vr(SA,16)}
    {M16} {vr(SB,16)}, {vr(KLO[0],4)}, {vr(QB_LO,4)}, 0
    {M8} {vr(SB,16)}, {vr(KHI[0],2)}, {vr(QB_HI,2)}, {vr(SB,16)}
    s_nop 15
    """)
    for i in range(8):
        a(f"v_max3_f32 v{MA}, v{SA+2*i}, v{SA+2*i+1}, v{MA}")
        a(f"v_max3_f32 v{MB}, v{SB+2*i}, v{SB+2*i+1}, v{MB}")
    a(f"""
    s_add_u32 s20, s20, 1
    s_cmp_lt_u32 s20, 64
    s_cbranch_scc1 P2_FB1
    v_mov_b32 v7, v{MA}
    v_mov_b32 v8, v{MB}
    s_nop 1
    v_permlane32_swap_b32 v7, v{MA}
    v_permlane32_swap_b32 v8, v{MB}
    s_nop 1
    v_max_f32 v{MA}, v{MA}, v7
    v_max_f32 v{MB}, v{MB}, v8
    """)
    for i in range(32):
        a(f"v_mov_b32 v{OA+i}, 0")
    a(f"""
    s_mov_b32 s20, 0
    P2_FB2:
    buffer_load_dwordx4 {vr(KLO[0],4)}, v{L16}, s[8:11], s27 offen
    buffer_load_dword v{KHI[0]}, v{KH}, s[8:11], s27 offen
    s_mov_b64 exec, s[22:23]
    buffer_load_dwordx4 {vr(VB[0],4)}, v{VA}, s[8:11], s27 offen
    buffer_load_dwordx4 {vr(VB[0]+4,4)}, v{VA}, s[8:11], s27 offen offset:640
    s_mov_b64 exec, -1
    s_add_u32 s27, s27, 2560
    s_waitcnt vmcnt(0)
    {M16} {vr(SA,16)}, {vr(KLO[0],4)}, {vr(QA_LO,4)}, 0
    {M8} {vr(SA,16)}, {vr(KHI[0],2)}, {vr(QA_HI,2)}, {vr(SA,16)}
    {M16} {vr(SB,16)}, {vr(KLO[0],4)}, {vr(QB_LO,4)}, 0
    {M8} {vr(SB,16)}, {vr(KHI[0],2)}, {vr(QB_HI,2)}, {vr(SB,16)}
    s_nop 15
    """)
    for i in range(16):
        a(f"v_sub_f32 v{SA+i}, v{SA+i}, v{MA}")
        a(f"v_sub_f32 v{SB+i}, v{SB+i}, v{MB}")
    ex(SA, 0, 16)
    ex(SB, 0, 16)
    a(f"""
    s_nop 1
    {SM} {vr(OA,16)}, {vr(VB[0],4)}, {vr(SA,8)}, v{IDX}
    {SM} {vr(OA,16)}, {vr(VB[0]+4,4)}, {vr(SA+8,8)}, v{IDX}
    {SM} {vr(OB,16)}, {vr(VB[0],4)}, {vr(SB,8)}, v{IDX}
    {SM} {vr(OB,16)}, {vr(VB[0]+4,4)}, {vr(SB+8,8)}, v{IDX}
    s_add_u32 s20, s20, 1
    s_cmp_lt_u32 s20, 64
    s_cbranch_scc1 P2_FB2
    s_nop 15
    """)
    lbro()
    a("""
    s_branch P2_STORE
    P2_DONE:
    """)


def phase3(a):
    WF = [16, 36]
    ACC = 56
    OF = 96
    NR = LA + 1
    assert OF + 8 * NR <= STV
    SA_ = [6, 8, 12, 13, 14]

    def reads(kap, st):
        base, off = (4, kap * 5120) if kap < 10 else (5, (kap - 10) * 5120)
        return [f"ds_read_b64_tr_b16 {vr(WF[st]+4*j+2*i,2)}, v{base} offset:{off+i*1280+8*j}" for j in range(5) for i in range(2)]

    def ofr(kap, tt):
        return OF + (kap % NR) * 8 + tt * 4

    def oload(kap, tt):
        return f"buffer_load_dwordx4 {vr(ofr(kap,tt),4)}, v2, s[8:11], s{60+2*(kap>>2)+tt} offen offset:{(kap&3)*1024} sc1"
    stamp(a)
    a("""
    s_barrier
    s_cmp_lt_u32 s3, 4
    s_cbranch_scc1 P3_GO
    """)
    stamp_store(a)
    a("s_endpgm")
    a("P3_GO:")
    issued = 0
    for k in range(LA):
        for tt in range(2):
            a(oload(k, tt))
            issued += 1
    a(f"""
    s_load_dwordx2 s[36:37], s[0:1], 64
    s_mov_b32 s28, 0xCCCCCCCD
    s_mov_b32 s38, {2048*2560}
    s_mov_b32 s39, 0x00020000
    s_mov_b32 s70, 0
    v_lshrrev_b32 v4, 5, v1
    v_lshlrev_b32 v4, 4, v4
    v_bfe_u32 v5, v1, 4, 1
    v_lshl_add_u32 v4, v5, 2, v4
    v_bfe_u32 v5, v1, 2, 2
    v_add_u32 v4, v4, v5
    v_mul_u32_u24 v4, 160, v4
    v_and_b32 v5, 3, v1
    v_mul_u32_u24 v5, 40, v5
    v_add_u32 v4, v4, v5
    v_add_u32 v5, {10*5120}, v4
    """)
    for x in reads(0, 0):
        a(x)
    stamp(a)
    dpt(a, 3)
    for i in range(40):
        a(f"v_mov_b32 v{ACC+i}, 0")
    for t in range(5):
        a(f"""
        v_add_u32 v7, {64*t}, v1
        v_mul_hi_u32 v9, v7, s28
        v_lshrrev_b32 v9, 3, v9
        v_mul_u32_u24 v10, 10, v9
        v_sub_u32 v10, v7, v10
        v_mul_u32_u24 v9, 2560, v9
        v_lshl_add_u32 v{SA_[t]}, v10, 4, v9
        """)
    a(f"""
    v_and_b32 v3, 15, v1
    v_mul_u32_u24 v3, 160, v3
    v_lshrrev_b32 v7, 4, v1
    v_mul_u32_u24 v7, 40, v7
    v_add3_u32 v3, v3, v7, s72
    v_add_u32 v15, s72, v2
    """)
    for kap in range(20):
        st = kap & 1
        nxt = kap + 1
        o = ofr(kap, 0)
        a(f"s_waitcnt vmcnt({issued - 2*(kap+1)})")
        a(f"""
        v_max3_u32 v7, v{o}, v{o+1}, v{o+2}
        v_max3_u32 v9, v{o+3}, v{o+4}, v{o+5}
        v_max3_u32 v7, v{o+6}, v{o+7}, v7
        v_max_u32 v7, v7, v9
        v_cmp_eq_u32 vcc, -1, v7
        """)
        if kap + LA < 20:
            for tt in range(2):
                a(oload(kap + LA, tt))
                issued += 1
        else:
            a("s_nop 1")
        a(f"s_cbranch_vccnz P3_RT{kap}")
        a(f"P3_OK{kap}:")
        a("s_waitcnt lgkmcnt(0)")
        r = reads(nxt, 1 - st) if nxt < 20 else []
        for j in range(5):
            for tt in range(2):
                d = vr(ACC + (tt * 5 + j) * 4, 4)
                a(f"{M1632} {d}, {vr(WF[st]+4*j,4)}, {vr(ofr(kap,tt),4)}, {d}")
                for _ in range(2):
                    if r:
                        a(r.pop(0))
    stamp(a)
    a.c("---- epilogue: pack, transpose through LDS so each store covers whole row segments")
    a("s_nop 7")
    for tt in range(2):
        t = 16 + tt * 10
        for j in range(5):
            b = ACC + (tt * 5 + j) * 4
            a(f"v_cvt_pk_bf16_f32 v{t+2*j}, v{b}, v{b+1}")
            a(f"v_cvt_pk_bf16_f32 v{t+2*j+1}, v{b+2}, v{b+3}")
            a(f"ds_write_b64 v3, {vr(t+2*j,2)} offset:{tt*2560+8*j}")
    a("s_waitcnt lgkmcnt(0)")
    for t in range(5):
        a(f"ds_read_b128 {vr(OF+4*t,4)}, v15 offset:{t*1024}")
    for t in range(5):
        a(f"s_waitcnt lgkmcnt({4-t})")
        a(f"buffer_store_dwordx4 {vr(OF+4*t,4)}, v{SA_[t]}, s[36:39], s71 offen {OUTMOD}")
    stamp(a)
    if STAMP:
        a("s_waitcnt vmcnt(0)")
    stamp(a)
    stamp_store(a)
    dpt(a, 4)
    dfin(a)
    a("KEND:")
    a("s_endpgm")
    a.c("some O words of this kappa are still 'not written': refresh every fragment in flight and look again (bounded)")
    for kap in range(20):
        a(f"""
        P3_RT{kap}:
        s_waitcnt vmcnt(0)
        P3_RL{kap}:
        s_sleep {RT_SLEEP}
        """)
        for k in range(kap, min(kap + LA + 1, 20) if RTALL else kap + 1):
            for tt in range(2):
                a(oload(k, tt))
        a(f"""
        s_add_u32 s70, s70, 1
        s_waitcnt vmcnt(0)
        v_max3_u32 v7, v{ofr(kap,0)}, v{ofr(kap,0)+1}, v{ofr(kap,0)+2}
        v_max3_u32 v9, v{ofr(kap,0)+3}, v{ofr(kap,0)+4}, v{ofr(kap,0)+5}
        v_max3_u32 v7, v{ofr(kap,0)+6}, v{ofr(kap,0)+7}, v7
        v_max_u32 v7, v7, v9
        v_cmp_eq_u32 vcc, -1, v7
        s_cmp_ge_u32 s70, {SPIN_MAX}
        s_cbranch_scc1 P3_RD{kap}
        s_cbranch_vccnz P3_RL{kap}
        P3_RD{kap}:
        """)
        for k in range(kap + 1, min(kap + LA + 1, 20)):
            for tt in range(2):
                if not RTALL:
                    a(oload(k, tt))
        a(f"s_branch P3_OK{kap}")


def main(path):
    a = Asm()
    a.l += [
        "; Fused MHA (branch A) + MQA (branch B) attention block in one launch: 256 workgroups (one per CU) x 9 waves.",
        ";   phase 1: Q/K/V projections -> workspace images laid out as MFMA fragments",
        ";   phase 2: softmax(QK^T)V per (head, 512 queries), K/V image resident in LDS, P fed to a sparse MFMA as raw fp32",
        ";   phase 3: output projections, concatenated into d_out",
        "; Hand-offs between phases: write-through stores + one time-stamped flag line per workgroup in the workspace.",
        "; Generated by dev/gen10.py (hand-written generator).",
        f"; @launch grid=(256,1,1) block=(576,1,1) lds={LDS}",
        '.amdgcn_target "amdgcn-amd-amdhsa--gfx950"',
        ".text",
        f".globl {KN}",
        ".p2align 8",
        f".type {KN},@function",
        f"{KN}:",
    ]
    phase1(a)
    phase2(a)
    phase3(a)
    a.l += [
        '.section .rodata,"a"',
        ".p2align 6",
        f".amdhsa_kernel {KN}",
        f"  .amdhsa_next_free_vgpr {NV}",
        "  .amdhsa_next_free_sgpr 102",
        f"  .amdhsa_accum_offset {NV}",
        "  .amdhsa_group_segment_fixed_size 0",
        "  .amdhsa_kernarg_size 88",
        "  .amdhsa_user_sgpr_count 2",
        "  .amdhsa_user_sgpr_kernarg_segment_ptr 1",
        "  .amdhsa_system_sgpr_workgroup_id_x 1",
        ".end_amdhsa_kernel",
    ]
    open(path, "w").write(a.text())
    print(f"{KN} 256 576 {LDS}")


if __name__ == "__main__":
    main(sys.argv[1] if len(sys.argv) > 1 else f"cdna_kernels/{NAME}.s")
```

```python
import math, os, re, struct, sys

NAME = "concat_heads__softmax_full_mha__grouped_kv_mqa__prompt"
KN = NAME + "_kernel"

WS_Q = 0
QUNIT = 81920
WS_KV = 0x500000
KVUNIT = 163840
WS_O = 0xA40000
OBR = 0x280000
WS_FLAG = WS_O + 2 * OBR
WS_ST = 0xF80000
WS_SIZE = 0x1000000
LDS = 163840
P3_TR = 102400
NV = 168

env = lambda k, d: os.environ.get(k, d)
STAMP = int(env("STAMP", "0"))
ROT_MASK = int(env("ROT_MASK", "3"))
ROT_MUL = int(env("ROT_MUL", "10"))
ROT_P = int(env("ROT_P", "0"))
ROT_H = int(env("ROT_H", "0"))
POLL_SLEEP = int(env("POLL_SLEEP", "4"))
NPOLL = int(env("NPOLL", "1"))
LA = int(env("K3_LA", "7"))
STMOD = env("STMOD", "sc1")
OUTMOD = env("OUTMOD", "nt")
LOWJ = int(env("LOWJ", "6"))
P3ROT = int(env("P3ROT", "0"))
ONES1 = int(env("ONES1", "1"))
OLDMOD = env("OLDMOD", "")
FILLQ = int(env("FILLQ", "4"))
LA3 = int(env("LA3", "0"))
RT_SLEEP = int(env("RT_SLEEP", "2"))
RTALL = int(env("RTALL", "0"))
XMOD = env("XMOD", "")
WMOD = env("WMOD", "")
LOWY = int(env("LOWY", "0"), 0)
SPIN_MAX = 1 << 16
STV = 166
NOMORE = False


def f32bits(x):
    return struct.unpack("<I", struct.pack("<f", x))[0]


QSCALE = (20.0 ** -0.5) * math.log2(math.e)


class Asm:
    def __init__(self):
        self.l = []

    def __call__(self, s):
        for line in s.strip("\n").split("\n"):
            t = line.strip()
            if t:
                self.l.append(t if t.endswith(":") else "  " + t)

    def c(self, s):
        self.l.append("  ; " + s)

    def text(self):
        return "\n".join(self.l) + "\n"


def vr(b, n):
    return f"v[{b}:{b+n-1}]"


def stamp(a, first=False, lvl=1):
    if STAMP < lvl or (STAMP == 2 and NOMORE):
        return
    if first:
        a(f"v_mov_b32 v{STV}, 0")
        a("s_mov_b32 s91, 0")
    a(f"""
    s_memtime s[96:97]
    s_memrealtime s[98:99]
    s_waitcnt lgkmcnt(0)
    s_mov_b32 s90, m0
    s_mov_b32 m0, s91
    s_nop 0
    v_writelane_b32 v{STV}, s96, m0
    s_add_u32 m0, s91, 1
    s_nop 0
    v_writelane_b32 v{STV}, s98, m0
    s_add_u32 s91, s91, 2
    s_mov_b32 m0, s90
    """)


def stamp_store(a):
    if not STAMP:
        return
    a(f"""
    s_mov_b32 exec_lo, -1
    s_mov_b32 exec_hi, 0
    s_lshl_b32 s92, s2, 3
    s_add_u32 s92, s92, s3
    s_lshl_b32 s92, s92, 7
    s_add_u32 s92, s92, {WS_ST}
    v_mbcnt_lo_u32_b32 v{STV+1}, -1, 0
    v_lshlrev_b32 v{STV+1}, 2, v{STV+1}
    buffer_store_dword v{STV}, v{STV+1}, s[8:11], s92 offen
    """)


DIAG = env("DIAG", "")
def dpt(a, k):
    if DIAG:
        a(f"s_memrealtime s[{82+2*k}:{83+2*k}]")
        a("s_waitcnt lgkmcnt(0)")
def dfin(a):
    if not DIAG:
        return
    if DIAG == "xcc":
        a("""
        s_getreg_b32 s92, hwreg(HW_REG_XCC_ID)
        s_and_b32 s92, s92, 7
        s_and_b32 s93, s2, 7
        s_cmp_eq_u32 s92, s93
        s_cselect_b32 s92, 0, 3000
        """)
    else:
        A, B = DIAG.split("-")
        ra = "s6" if A == "s" else f"s{82+2*int(A)}"
        a(f"""
        s_or_b32 s92, s2, s3
        s_cmp_lg_u32 s92, 0
        s_cbranch_scc1 KEND
        s_sub_u32 s92, s{82+2*int(B)}, {ra}
        s_lshl_b32 s92, s92, 2
        """)
    a("""
    s_memrealtime s[94:95]
    s_waitcnt lgkmcnt(0)
    s_add_u32 s92, s92, s94
    DSPIN:
    s_memrealtime s[94:95]
    s_waitcnt lgkmcnt(0)
    s_sub_u32 s93, s94, s92
    s_cmp_lt_i32 s93, 0
    s_cbranch_scc1 DSPIN
    """)

M16 = "v_mfma_f32_32x32x16_bf16"
M8 = "v_mfma_f32_32x32x8_bf16"
SM = "v_smfmac_f32_32x32x32_bf16"
M1632 = "v_mfma_f32_16x16x32_bf16"

WOFF = 16384
EOFF = WOFF + 4 * 5184
SLOT = EOFF + 2560 + 64
NSLOT = 4
assert NSLOT * SLOT <= LDS


def phase1(a):
    a(f"""
    s_cmp_ge_u32 s2, 256
    s_cbranch_scc1 KEND
    """)
    if env("PERM", ""):
        a(f"s_mul_i32 s2, s2, {env('PERM', '')}")
        a("s_and_b32 s2, s2, 255")
    stamp(a, True)
    a(f"""
    s_load_dwordx16 s[16:31], s[0:1], 0
    s_load_dwordx2 s[8:9], s[0:1], 80
    s_memrealtime s[6:7]
    v_and_b32 v1, 63, v0
    v_lshrrev_b32 v2, 6, v0
    s_and_b32 s50, s2, 7
    v_readfirstlane_b32 s3, v2
    s_lshr_b32 s51, s2, 3
    s_and_b32 s52, s51, 7
    s_lshr_b32 s53, s51, 3
    s_and_b32 s54, s50, 1
    s_lshr_b32 s55, s50, 1
    s_lshl_b32 s56, s54, 3
    s_add_u32 s56, s56, s52
    s_mov_b32 s10, {WS_SIZE}
    s_mov_b32 s11, 0x00020000
    """)
    a.c("s3 wave, s[8:11] ws SRD, s[6:7] start time; s52 mt, s53 nt, s54 mhalf, s55 part(0 Q,1 K,2 V,3 B), s56 m tile 0..15")
    a(f"""
    s_cmp_eq_u32 s55, 3
    s_cselect_b32 s57, 1, 0
    s_mov_b32 s58, 3840
    s_cselect_b32 s58, 1280, s58
    s_cselect_b32 s59, 0, s55
    s_mul_i32 s59, s59, 1280
    s_mul_i32 s60, s53, 320
    s_add_u32 s59, s59, s60
    s_cmp_ge_u32 s3, 4
    s_cbranch_scc1 P1_LOADER
    """)
    a.c("s57 isB, s58 W row stride, s59 W col byte base")
    XA = [4, 5, 6, 7]
    WA, EA = 8, 9
    T = [10, 11, 12, 13, 14]
    XF = [16, 32]
    WF = 48
    EF = 68
    ACC = 72
    EACC = 152
    a.c("---- compute wave setup: s61 wm, s62 wn, s63 flip (B WGs with nt odd)")
    a(f"""
    s_and_b32 s61, s3, 1
    s_lshr_b32 s62, s3, 1
    s_and_b32 s63, s53, s57
    v_and_b32 v2, 15, v1
    v_lshrrev_b32 v3, 4, v1
    s_cmp_eq_u32 s55, 2
    s_cselect_b64 s[64:65], -1, 0
    v_bfe_u32 v22, v2, 1, 3
    v_bfe_u32 v23, v2, 1, 1
    v_lshrrev_b32 v24, 2, v2
    v_lshl_or_b32 v23, v24, 1, v23
    v_cndmask_b32 v22, v22, v23, s[64:65]
    v_and_b32 v23, 3, v2
    v_lshl_add_u32 v23, v24, 3, v23
    v_cndmask_b32 v23, v2, v23, s[64:65]
    s_lshl_b32 s66, s61, 13
    s_lshl_b32 s67, s63, 12
    s_add_u32 s68, s66, s67
    s_xor_b32 s67, s67, 4096
    s_add_u32 s69, s66, s67
    v_lshlrev_b32 v23, 7, v23
    """)
    for ks in range(2):
        a(f"""
        v_add_u32 v24, {4*ks}, v3
        v_xor_b32 v24, v24, v22
        v_lshl_add_u32 v24, v24, 4, v23
        v_add_u32 v{XA[2*ks]}, s68, v24
        v_add_u32 v{XA[2*ks+1]}, s69, v24
        """)
    a(f"""
    v_bfe_u32 v22, v1, 2, 2
    v_lshl_add_u32 v22, v3, 3, v22
    v_and_b32 v24, 3, v1
    v_mul_u32_u24 v{WA}, 320, v22
    v_and_b32 v25, 1, v3
    v_lshl_add_u32 v{WA}, v25, 5, v{WA}
    v_lshrrev_b32 v25, 1, v3
    v_lshl_add_u32 v{WA}, v25, 6, v{WA}
    v_mul_u32_u24 v25, 40, v24
    v_lshlrev_b32 v26, 3, v24
    v_cndmask_b32 v25, v25, v26, s[64:65]
    s_mul_i32 s66, s62, 160
    s_add_u32 s66, s66, {WOFF}
    v_add3_u32 v{WA}, v{WA}, v25, s66
    v_mul_u32_u24 v{EA}, 40, v22
    s_lshl_b32 s66, s62, 5
    s_add_u32 s66, s66, {EOFF}
    v_add3_u32 v{EA}, v{EA}, v26, s66
    """)
    for i in range(88):
        a(f"v_mov_b32 v{ACC+i}, 0")
    a.c("store geometry: s70 unit size, s71 tile size, s72/s73 soffset for slot pair 0/1, s74 extra soffset")
    a(f"""
    s_sub_u32 s66, s55, 1
    s_cmp_lt_u32 s66, 2
    s_mov_b32 s70, {QUNIT}
    s_cselect_b32 s70, {KVUNIT}, s70
    s_mov_b32 s71, 1280
    s_cselect_b32 s71, 2560, s71
    s_cselect_b32 s72, {WS_KV}, {WS_Q}
    s_lshl_b32 s66, s53, 3
    s_lshl_b32 s67, s57, 5
    s_add_u32 s66, s66, s67
    s_lshl_b32 s67, s62, 2
    s_add_u32 s66, s66, s67
    s_mul_i32 s66, s66, s70
    s_add_u32 s72, s72, s66
    s_lshl_b32 s66, s56, 2
    s_lshl_b32 s67, s61, 1
    s_add_u32 s66, s66, s67
    s_add_u32 s67, s66, s63
    s_xor_b32 s76, s63, 1
    s_add_u32 s66, s66, s76
    s_mul_i32 s76, s66, s71
    s_add_u32 s73, s72, s76
    s_mul_i32 s76, s67, s71
    s_add_u32 s72, s72, s76
    s_mul_i32 s74, s67, 2560
    s_add_u32 s74, s74, {WS_KV + 32*KVUNIT}
    v_mul_lo_u32 v22, v3, s70
    v_lshl_add_u32 v{T[0]}, v2, 4, v22
    v_lshl_add_u32 v{T[1]}, v2, 3, v22
    v_add_u32 v{T[1]}, 1024, v{T[1]}
    v_mov_b32 v{T[2]}, 0
    v_mov_b32 v{T[3]}, 0
    v_mov_b32 v{T[4]}, 0
    s_cmp_eq_u32 s55, 2
    s_cbranch_scc0 P1_SETUP_DONE
    s_mov_b32 s76, 0xCCCCCCCD
    v_lshrrev_b32 v25, 1, v3
    v_mul_u32_u24 v25, 640, v25
    v_and_b32 v26, 1, v3
    v_mul_u32_u24 v26, 320, v26
    v_add3_u32 v25, v25, v26, s71
    v_subrev_u32 v25, 1280, v25
    """)
    for n5 in range(5):
        a(f"""
        v_add_u32 v22, {16*n5}, v2
        v_mul_hi_u32 v23, v22, s76
        v_lshrrev_b32 v23, 4, v23
        v_mul_u32_u24 v24, 20, v23
        v_sub_u32 v24, v22, v24
        v_mul_lo_u32 v23, v23, s70
        v_lshl_add_u32 v23, v24, 4, v23
        v_add_u32 v{T[n5]}, v23, v25
        """)
    a("P1_SETUP_DONE:")
    a.c("s76: variant 0 QK, 1 V, 2 QK+Kextra, 3 QK+Vextra; s78 stage counter")
    a(f"""
    s_mov_b32 s76, 0
    s_cmp_eq_u32 s55, 2
    s_cselect_b32 s76, 1, s76
    s_lshr_b32 s66, s53, 1
    s_add_u32 s66, s66, 2
    s_cmp_eq_u32 s57, 1
    s_cselect_b32 s76, s66, s76
    s_mov_b32 s78, 0
    s_mov_b32 s79, {SLOT}
    s_waitcnt lgkmcnt(0)
    s_barrier
    """)
    stamp(a)

    def wreads(g, ks, orient):
        if g < 5:
            return [(f"W{g}", f"ds_read_b64_tr_b16 {vr(WF+4*g+2*i,2)}, v{WA} offset:{ks*(320*32+128)+i*1280+g*(32 if orient else 8)}") for i in range(2)]
        return [("W5", f"ds_read_b64_tr_b16 {vr(EF+2*i,2)}, v{EA} offset:{(32*ks+4*i)*40}") for i in range(2)]

    def xreads(ks, xs, orient):
        return [(f"X{xs}{s_}", f"ds_read_b128 {vr(XF[xs]+4*s_,4)}, v{XA[2*ks+(s_>>1)]} offset:{(s_&1)*(512 if orient else 2048)}") for s_ in range(4)]

    def mlist(xs, orient, extra):
        m = []
        for g in range(6 if extra else 5):
            for s_ in range(4 if g < 5 else 2):
                w, x = vr(WF+4*g if g < 5 else EF, 4), vr(XF[xs]+4*s_, 4)
                d = vr(ACC+(s_*5+g)*4 if g < 5 else EACC+4*s_, 4)
                o = orient if g < 5 else (extra == 2)
                m.append((g, (f"W{g}",) + tuple(f"X{xs}{t_}" for t_ in range(4 if s_ == 0 else 0)), f"{M1632} {d}, {x}, {w}, {d}" if o else f"{M1632} {d}, {w}, {x}, {d}"))
        return m

    def body(orient, extra):
        G = 6 if extra else 5
        items = []
        BARG = 1
        tail = []
        for half in range(2):
            ml = mlist(half, orient, extra)
            q = [("r",) + r for r in wreads(G - 1, half, orient)]
            if half == 0:
                q += [("r",) + r for r in xreads(1, 1, orient)]
            for n, (g, deps, txt) in enumerate(ml):
                items.append(("m", deps, txt))
                last = n + 1 == len(ml) or ml[n + 1][0] != g
                if last and g < G - 1:
                    if half == 0:
                        q += [("r",) + r for r in wreads(g, 1, orient)]
                    elif g == BARG:
                        assert not q
                        items.append(("bar",))
                        q += [("v", f"v_add_u32 v{r}, s77, v{r}") for r in [WA, XA[0], XA[1]]]
                        q += [("r",) + r for r in wreads(0, 0, orient) + xreads(0, 0, orient)]
                        for g2 in range(1, BARG + 1):
                            q += [("r",) + r for r in wreads(g2, 0, orient)]
                        q += [("v", f"v_add_u32 v{r}, s77, v{r}") for r in [XA[2], XA[3]] + ([EA] if extra else [])]
                    elif g > BARG:
                        q += [("r",) + r for r in wreads(g, 0, orient)]
                for _ in range(1 if (last and len(q) <= FILLQ) else 2):
                    if q:
                        it = q.pop(0)
                        items.append(it)
                        if half == 1 and it[0] == "r" and ("bar",) in items:
                            tail.append(it)
            assert not q, (half, q)
        return tail, items

    def emit_body(tail, items):
        seq = [it[1] for it in tail]
        waits = []
        for ps in range(2):
            done = 0 if ps == 0 else done
            w = []
            for it in items:
                if it[0] == "r":
                    seq.append(it[1])
                    w.append(None)
                elif it[0] == "bar":
                    done = len(seq)
                    w.append(0)
                elif it[0] == "m":
                    need = max(max(k for k, x in enumerate(seq) if x == d) for d in it[1]) + 1
                    if need > done:
                        w.append(len(seq) - need)
                        done = need
                    else:
                        w.append(None)
                else:
                    w.append(None)
            waits.append(w)
        for it, w0, w1 in zip(items, *waits):
            ws_ = [x for x in (w0, w1) if x is not None]
            if it[0] == "bar":
                a(f"""
                s_waitcnt lgkmcnt(0)
                s_barrier
                """)
                continue
            if ws_:
                assert min(ws_) <= 15
                a(f"s_waitcnt lgkmcnt({min(ws_)})")
            a(it[-1])

    variants = [(0, 0), (1, 0), (0, 1), (0, 2)]
    a(f"""
    s_cmp_eq_u32 s76, 1
    s_cbranch_scc1 P1_V1
    s_cmp_eq_u32 s76, 2
    s_cbranch_scc1 P1_V2
    s_cmp_eq_u32 s76, 3
    s_cbranch_scc1 P1_V3
    """)
    for vi, (orient, extra) in enumerate(variants):
        tail, items = body(orient, extra)
        a(f"P1_V{vi}:")
        for it in tail:
            a(it[2])
        a(f"P1_L{vi}:")
        a(f"""
        s_and_b32 s77, s78, 3
        s_cmp_eq_u32 s77, 3
        s_cselect_b32 s77, {(-3*SLOT) & 0xffffffff}, s79
        """)
        emit_body(tail, items)
        stamp(a, lvl=2)
        a(f"""
        s_add_u32 s78, s78, 1
        s_cmp_lt_u32 s78, 10
        s_cbranch_scc1 P1_L{vi}
        """)
        if vi == 1:
            a("s_branch P1_EPI_V")
        elif vi < 3:
            a("s_branch P1_EPI_QK")
    a("P1_EPI_QK:")
    stamp(a)
    a(f"""
    s_nop 7
    s_waitcnt lgkmcnt(0)
    s_cmp_eq_u32 s55, 1
    s_cbranch_scc1 P1_NOSCALE
    s_mov_b32 s80, {hex(f32bits(QSCALE))}
    s_mov_b32 s81, {hex(f32bits(QSCALE))}
    """)
    for i in range(0, 80, 2):
        a(f"v_pk_mul_f32 {vr(ACC+i,2)}, s[80:81], {vr(ACC+i,2)}")
    a("P1_NOSCALE:")
    for s_ in range(4):
        t = 16 + 12 * s_
        for n5 in range(5):
            b = ACC + (s_ * 5 + n5) * 4
            a(f"v_cvt_pk_bf16_f32 v{t+2*n5}, v{b}, v{b+1}")
            a(f"v_cvt_pk_bf16_f32 v{t+2*n5+1}, v{b+2}, v{b+3}")
        so = f"s{72+(s_>>1)}"
        a(f"buffer_store_dwordx4 {vr(t,4)}, v{T[0]}, s[8:11], {so} offen offset:{(s_&1)*256} {STMOD}")
        a(f"buffer_store_dwordx4 {vr(t+4,4)}, v{T[0]}, s[8:11], {so} offen offset:{(s_&1)*256+512} {STMOD}")
        a(f"buffer_store_dwordx2 {vr(t+8,2)}, v{T[1]}, s[8:11], {so} offen offset:{(s_&1)*128} {STMOD}")
    TX = 70
    a(f"""
    s_cmp_lt_u32 s76, 2
    s_cbranch_scc1 P1_DONE
    v_cvt_pk_bf16_f32 v64, v{EACC}, v{EACC+1}
    v_cvt_pk_bf16_f32 v65, v{EACC+2}, v{EACC+3}
    v_cvt_pk_bf16_f32 v66, v{EACC+4}, v{EACC+5}
    v_cvt_pk_bf16_f32 v67, v{EACC+6}, v{EACC+7}
    v_lshrrev_b32 v68, 1, v3
    v_and_b32 v69, 1, v3
    s_cmp_eq_u32 s76, 3
    s_cbranch_scc1 P1_EPI_VX
    s_cmp_eq_u32 s62, 1
    s_cbranch_scc1 P1_EPI_KX1
    v_lshlrev_b32 v{TX}, 9, v68
    v_lshl_add_u32 v{TX}, v69, 3, v{TX}
    v_lshl_add_u32 v{TX}, v2, 4, v{TX}
    buffer_store_dwordx2 v[64:65], v{TX}, s[8:11], s74 offen {STMOD}
    buffer_store_dwordx2 v[66:67], v{TX}, s[8:11], s74 offen offset:256 {STMOD}
    s_branch P1_DONE
    P1_EPI_KX1:
    v_lshlrev_b32 v{TX}, 3, v2
    s_mov_b32 exec_lo, 0xffff
    s_mov_b32 exec_hi, 0
    buffer_store_dwordx2 v[64:65], v{TX}, s[8:11], s74 offen offset:1024 {STMOD}
    buffer_store_dwordx2 v[66:67], v{TX}, s[8:11], s74 offen offset:1152 {STMOD}
    s_mov_b64 exec, -1
    s_branch P1_DONE
    P1_EPI_VX:
    v_mul_u32_u24 v{TX}, 320, v68
    v_lshl_add_u32 v{TX}, v69, 3, v{TX}
    v_lshl_add_u32 v{TX}, v2, 4, v{TX}
    s_lshl_b32 s66, s62, 8
    s_add_u32 s74, s74, s66
    s_cmp_eq_u32 s62, 1
    s_mov_b32 s66, 0x000f000f
    s_cselect_b32 s66, s66, -1
    s_mov_b32 exec_lo, s66
    s_mov_b32 exec_hi, s66
    buffer_store_dwordx2 v[64:65], v{TX}, s[8:11], s74 offen offset:1280 {STMOD}
    buffer_store_dwordx2 v[66:67], v{TX}, s[8:11], s74 offen offset:1920 {STMOD}
    s_mov_b64 exec, -1
    s_branch P1_DONE
    P1_EPI_V:
    """)
    stamp(a)
    a("s_nop 7")
    a("s_waitcnt lgkmcnt(0)")
    for pr in range(2):
        for n5 in range(5):
            t = 16 + 4 * (pr * 5 + n5)
            for h in range(2):
                b = ACC + ((2 * pr + h) * 5 + n5) * 4
                a(f"v_cvt_pk_bf16_f32 v{t+2*h}, v{b}, v{b+1}")
                a(f"v_cvt_pk_bf16_f32 v{t+2*h+1}, v{b+2}, v{b+3}")
            a(f"buffer_store_dwordx4 {vr(t,4)}, v{T[n5]}, s[8:11], s{72+pr} offen {STMOD}")
    a("s_branch P1_DONE")

    XO, WO, EO = 4, 5, 6
    NPS = 11
    a(f"""
    P1_LOADER:
    s_cmp_eq_u32 s3, 8
    s_cbranch_scc1 P1_IDLE
    s_sub_u32 s12, s3, 4
    s_lshl_b32 s61, s56, 7
    s_lshl_b32 s62, s12, 3
    s_add_u32 s61, s61, s62
    v_lshrrev_b32 v2, 3, v1
    v_add_u32 v2, s61, v2
    v_mul_u32_u24 v2, 1280, v2
    s_and_b32 s62, s12, 1
    s_lshl_b32 s62, s62, 2
    v_lshrrev_b32 v3, 4, v1
    v_add_u32 v3, s62, v3
    s_lshl_b32 s62, s12, 1
    v_bfe_u32 v11, v1, 4, 1
    v_or_b32 v11, s62, v11
    s_cmp_eq_u32 s55, 2
    s_cselect_b64 vcc, -1, 0
    s_lshl_b32 s65, s12, 10
    v_cndmask_b32 v3, v3, v11, vcc
    v_and_b32 v11, 7, v1
    v_xor_b32 v3, v3, v11
    v_lshl_add_u32 v{XO}, v3, 4, v2
    s_mov_b32 s72, 0xCCCCCCCD
    s_lshl_b32 s63, s12, 4
    v_mul_hi_u32 v3, v1, s72
    v_lshrrev_b32 v3, 4, v3
    v_mul_u32_u24 v11, 20, v3
    v_sub_u32 v11, v1, v11
    v_add_u32 v3, s63, v3
    v_mul_lo_u32 v3, v3, s58
    v_lshl_add_u32 v3, v11, 4, v3
    v_add_u32 v{WO}, s59, v3
    s_mul_i32 s64, s12, 640
    v_lshlrev_b32 v{EO}, 4, v1
    v_add_u32 v{EO}, s64, v{EO}
    s_mul_i32 s66, s12, 5184
    s_add_u32 s66, s66, {WOFF}
    s_add_u32 s67, s64, {EOFF}
    s_mul_i32 s68, s58, 50
    s_mul_i32 s69, s58, 3
    s_lshl_b32 s79, s58, 1
    s_add_u32 s80, s52, s53
    s_and_b32 s80, s80, {ROT_MASK}
    s_mul_i32 s80, s80, {ROT_MUL}
    s_lshr_b32 s80, s80, 2
    s_mul_i32 s81, s55, {ROT_P}
    s_add_u32 s80, s80, s81
    s_mul_i32 s81, s54, {ROT_H}
    s_add_u32 s80, s80, s81
    s_cmp_ge_u32 s80, 10
    s_cselect_b32 s81, 10, 0
    s_sub_u32 s80, s80, s81
    s_lshl_b32 s70, s80, 7
    s_lshl_b32 s71, s58, 6
    s_mul_i32 s71, s71, s80
    s_mul_i32 s73, s80, 2560
    s_mov_b32 s74, 0
    s_mov_b32 s34, {2048*1280}
    s_mov_b32 s35, 0x00020000
    s_mov_b32 s39, 0x00020000
    s_mov_b32 s43, 0x00020000
    s_mov_b32 s77, 0
    s_cmp_eq_u32 s57, 1
    s_mov_b32 s38, {640*3840}
    s_cselect_b32 s38, {640*1280}, s38
    s_cselect_b32 s42, {640*40}, 0
    s_waitcnt lgkmcnt(0)
    s_cselect_b32 s32, s22, s16
    s_cselect_b32 s33, s23, s17
    s_cselect_b32 s36, s24, s18
    s_cselect_b32 s37, s25, s19
    s_cmp_lt_u32 s53, 2
    s_cselect_b32 s40, s26, s28
    s_cselect_b32 s41, s27, s29
    """)
    a.c("k order is rotated per WG (s80) so that a cold start spreads over the whole K range")
    a.c("s65/s66/s67 LDS rel bases; s70 x soff, s71 W soff, s73 E soff, s74 slot base")
    a("P1_LP:")
    a("s_add_u32 s75, s74, s65")
    for t in range(4):
        a(f"""
        s_add_u32 m0, s75, {4096*t}
        s_add_u32 s76, s70, {40960*t}
        buffer_load_dwordx4 v{XO}, s[32:35], s76 offen {XMOD} lds
        """)
    a("s_add_u32 s75, s74, s66")
    for t, r0 in enumerate([0, 3, 6, 8, 11, 14]):
        a(f"s_add_u32 m0, s75, {320*r0 + (32 if r0 >= 8 else 0)}")
        a(f"s_mov_b32 exec_hi, {'0xff' if t % 3 == 2 else '0x0fffffff'}")
        a(f"buffer_load_dwordx4 v{WO}, s[36:39], s71 offen {WMOD} lds")
        a(f"s_add_u32 s71, s71, {'s69' if t % 3 < 2 else ('s79' if t == 2 else 's68')}")
    a(f"""
    s_add_u32 m0, s74, s67
    s_add_u32 s70, s70, 128
    buffer_load_dwordx4 v{EO}, s[40:43], s73 offen lds
    s_mov_b32 exec_hi, -1
    s_add_u32 s73, s73, 2560
    s_add_u32 s74, s74, {SLOT}
    s_cmp_eq_u32 s74, {NSLOT*SLOT}
    s_cselect_b32 s74, 0, s74
    s_cmp_eq_u32 s70, 1280
    s_cselect_b32 s70, 0, s70
    s_cselect_b32 s71, 0, s71
    s_cselect_b32 s73, 0, s73
    s_add_u32 s77, s77, 1
    """)
    if LA3:
        a(f"""
        s_bitcmp1_b32 0x0a, s77
        s_cbranch_scc1 P1_LP
        s_cmp_eq_u32 s77, 2
        s_cbranch_scc0 P1_LP2
        s_waitcnt vmcnt({NPS})
        s_barrier
        s_branch P1_LP
        P1_LP2:
        s_waitcnt vmcnt({2*NPS})
        s_barrier
        s_cmp_lt_u32 s77, 10
        s_cbranch_scc1 P1_LP
        s_waitcnt vmcnt({NPS})
        s_barrier
        s_waitcnt vmcnt(0)
        """)
    else:
        a(f"""
        s_cmp_lt_u32 s77, 2
        s_cbranch_scc1 P1_LP
        s_waitcnt vmcnt({NPS})
        s_barrier
        s_cmp_lt_u32 s77, 10
        s_cbranch_scc1 P1_LP
        s_waitcnt vmcnt(0)
        """)
    stamp(a)
    a(f"""
    s_barrier
    s_barrier
    s_branch P1_DONE
    P1_IDLE:
    s_mov_b32 s77, 0
    s_waitcnt lgkmcnt(0)
    P1_IDLE1:
    s_barrier
    s_add_u32 s77, s77, 1
    s_cmp_lt_u32 s77, 11
    s_cbranch_scc1 P1_IDLE1
    P1_DONE:
    """)
    stamp(a)
    dpt(a, 0)


def flag_prep(a, ph, delta, idcode, HT):
    a("s_memrealtime s[44:45]")
    a(idcode)
    a(f"""
    v_lshlrev_b32 v9, 7, v9
    v_lshlrev_b32 v7, 4, v1
    s_lshl_b32 s48, s2, 7
    s_add_u32 s48, s48, {WS_FLAG + ph*0x8000}
    s_mov_b32 s49, {WS_FLAG + ph*0x8000}
    s_sub_u32 s46, s6, {delta}
    s_subb_u32 s47, s7, 0
    s_waitcnt lgkmcnt(0)
    v_mov_b32 v{HT}, s44
    v_mov_b32 v{HT+1}, s45
    v_mov_b32 v{HT+2}, s44
    v_mov_b32 v{HT+3}, s45
    v_mov_b32 v11, s47
    """)


def flag_publish(a, HT):
    a(f"""
    s_mov_b64 exec, 0xff
    buffer_store_dwordx4 {vr(HT,4)}, v7, s[8:11], s48 offen sc1
    s_mov_b64 exec, -1
    """)


def flag_poll(a, tag, HT):
    P = HT + 4
    a(f"""
    s_mov_b64 exec, s[50:51]
    s_mov_b32 s48, 0
    {tag}_POLL:
    buffer_load_dwordx2 {vr(P,2)}, v9, s[8:11], s49 offen sc1
    s_add_u32 s48, s48, 1
    s_waitcnt vmcnt(0)
    v_subrev_co_u32 v10, vcc, s46, v{P}
    s_nop 1
    v_subb_co_u32 v7, vcc, v{P+1}, v11, vcc
    v_lshrrev_b32 v10, 24, v10
    v_or_b32 v10, v10, v7
    v_cmp_eq_u32 vcc, 0, v10
    s_cmp_ge_u32 s48, {SPIN_MAX}
    s_cbranch_scc1 {tag}_OUT
    s_nop 1
    s_cmp_eq_u64 vcc, s[50:51]
    s_cbranch_scc1 {tag}_OUT
    s_sleep {POLL_SLEEP}
    s_branch {tag}_POLL
    {tag}_OUT:
    s_mov_b64 exec, -1
    """)


def handoff(a, tag, ph, delta, idcode, HT):
    a(f"""
    s_cmp_lg_u32 s3, 0
    s_cbranch_scc1 {tag}_PRE
    """)
    flag_prep(a, ph, delta, idcode, HT)
    a(f"""
    {tag}_PRE:
    s_waitcnt vmcnt(0)
    """)
    stamp(a)
    a(f"""
    s_barrier
    s_cmp_lg_u32 s3, 0
    s_cbranch_scc1 {tag}_WAIT
    """)
    flag_publish(a, HT)
    flag_poll(a, tag, HT)
    a(f"{tag}_WAIT:")


def oaddr(a, wavereg):
    a(f"""
    s_mul_i32 s36, s15, {OBR}
    s_lshl_b32 s37, s18, 5
    s_lshl_b32 s38, {wavereg}, 2
    s_add_u32 s37, s37, s38
    s_mul_i32 s37, s37, 20480
    s_add_u32 s36, s36, s37
    s_add_u32 s36, s36, {WS_O}
    s_lshr_b32 s37, s17, 1
    s_lshl_b32 s37, s37, 10
    s_and_b32 s38, s17, 1
    s_lshl_b32 s38, s38, 9
    s_add_u32 s37, s37, s38
    s_add_u32 s37, s37, s36
    s_lshr_b32 s38, s17, 3
    s_lshl_b32 s38, s38, 10
    s_add_u32 s38, s38, 16384
    s_bfe_u32 s39, s17, 0x10002
    s_lshl_b32 s39, s39, 9
    s_add_u32 s38, s38, s39
    s_and_b32 s39, s17, 1
    s_lshl_b32 s39, s39, 8
    s_add_u32 s38, s38, s39
    s_bfe_u32 s39, s17, 0x10001
    s_lshl_b32 s39, s39, 3
    s_add_u32 s38, s38, s39
    s_add_u32 s38, s38, s36
    """)


def phase2(a):
    global NOMORE
    NOMORE = True
    VL, L16, KA, KH, VA, IDX = 1, 2, 3, 4, 5, 6
    QA_LO, QA_HI, QB_HI, QB_LO = 12, 16, 18, 20
    KLO = [24, 32]
    KHI = [28, 30]
    VB = [36, 44]
    SA, SB, OA, OB = 52, 68, 84, 100
    MA, MB = 116, 117
    a(f"""
    s_and_b32 s13, s2, 7
    s_lshr_b32 s14, s2, 3
    s_lshr_b32 s15, s14, 4
    s_bfe_u32 s16, s14, 0x20002
    s_lshl_b32 s17, s13, 2
    s_add_u32 s17, s17, s16
    s_and_b32 s18, s14, 3
    s_lshl_b32 s19, s15, 5
    s_add_u32 s19, s19, s17
    s_cmp_eq_u32 s15, 0
    s_cselect_b32 s21, s17, 32
    """)
    a.c("s15 br, s17 head, s18 qb, s19 unit, s21 kv unit")
    a(f"""
    s_mul_i32 s25, s19, {QUNIT}
    s_mul_i32 s26, s18, 20480
    s_add_u32 s25, s25, s26
    s_mul_i32 s26, s3, 2560
    s_add_u32 s25, s25, s26
    s_mul_i32 s27, s21, {KVUNIT}
    s_lshl_b32 s28, s3, 10
    s_add_u32 s27, s27, s28
    s_add_u32 s27, s27, {WS_KV}
    v_lshlrev_b32 v{L16}, 4, v{VL}
    s_cmp_eq_u32 s3, 8
    s_cbranch_scc1 P2_LOADER
    v_and_b32 v7, 31, v{VL}
    v_lshrrev_b32 v8, 5, v{VL}
    v_lshlrev_b32 v{KH}, 3, v7
    v_lshl_add_u32 v{KH}, v8, 2, v{KH}
    v_add_u32 v{KH}, 1024, v{KH}
    v_mul_u32_u24 v{VA}, 20, v8
    v_add_u32 v{VA}, v{VA}, v7
    v_lshlrev_b32 v{VA}, 4, v{VA}
    v_add_u32 v{VA}, 1280, v{VA}
    v_mov_b32 v{KA}, v{L16}
    v_mov_b32 v{IDX}, 0xdddddddd
    v_mov_b32 v{QA_HI+1}, 0
    v_mov_b32 v{QB_HI+1}, 0
    v_mov_b32 v{KHI[0]+1}, 0
    v_mov_b32 v{KHI[1]+1}, 0
    v_and_b32 v9, {31 if ONES1 else 27}, v7
    v_cmp_eq_u32 vcc, 24, v9
    v_mov_b32 v9, 0
    v_mov_b32 v10, 0x3f803f80
    s_mov_b32 s22, 0x000fffff
    s_mov_b32 s23, 0x000fffff
    s_cmp_lt_u32 s3, 4
    s_cselect_b32 s24, 0x92, {LOWY}
    v_cndmask_b32 v9, v9, v10, vcc
    """)
    for i in range(16):
        a(f"v_mov_b32 v{VB[0]+i}, v9")
    for i in range(16):
        a(f"v_mov_b32 v{SB+i}, 0")
    for i in range(32):
        a(f"v_mov_b32 v{OA+i}, 0")
    a.c("phase-3 scalars: s60..s69 O-image soffsets per kappa group, s71 d_out soffset, s72 transpose area")
    a(f"""
    s_lshr_b32 s73, s13, 2
    s_and_b32 s74, s13, 3
    s_lshl_b32 s74, s74, 2
    s_and_b32 s75, s14, 3
    s_add_u32 s74, s74, s75
    s_lshr_b32 s75, s14, 2
    s_mul_i32 s60, s73, {OBR}
    s_lshl_b32 s76, s74, 3
    s_lshl_b32 s77, s3, 1
    s_add_u32 s76, s76, s77
    s_mul_i32 s76, s76, 20480
    s_add_u32 s60, s60, s76
    s_add_u32 s60, s60, {WS_O}
    s_add_u32 s61, s60, 20480
    s_lshl_b32 s71, s74, 7
    s_lshl_b32 s76, s3, 5
    s_add_u32 s71, s71, s76
    s_mul_i32 s71, s71, 2560
    s_mul_i32 s76, s73, 1280
    s_add_u32 s71, s71, s76
    s_mul_i32 s76, s75, 160
    s_add_u32 s71, s71, s76
    s_mul_i32 s72, s3, 5120
    s_add_u32 s72, s72, {P3_TR}
    """)
    for g in range(1, 5):
        a(f"s_add_u32 s{60+2*g}, s60, {4096*g}")
        a(f"s_add_u32 s{61+2*g}, s61, {4096*g}")
    handoff(a, "H1", 0, 1000, f"""
    s_lshr_b32 s49, s17, 3
    s_lshl_b32 s49, s49, 6
    v_add_u32 v9, s49, v1
    v_and_b32 v10, 7, v1
    v_cmp_gt_u32 s[50:51], 6, v10
    v_lshrrev_b32 v10, 1, v1
    v_lshlrev_b32 v10, 3, v10
    v_and_b32 v11, 1, v1
    v_add3_u32 v10, v10, v11, 6
    s_cmp_eq_u32 s15, 0
    s_cselect_b64 vcc, -1, 0
    s_cselect_b64 s[50:51], s[50:51], -1
    v_cndmask_b32 v9, v10, v9, vcc
    """, 120)
    a(f"""
    s_mov_b32 m0, s28
    s_barrier
    """)
    stamp(a)
    dpt(a, 1)
    a(f"""
    buffer_load_dwordx4 v{L16}, s[8:11], s27 offen lds
    buffer_load_dwordx4 {vr(QA_LO,4)}, v{L16}, s[8:11], s25 offen
    buffer_load_dword v{QA_HI}, v{KH}, s[8:11], s25 offen
    buffer_load_dwordx4 {vr(QB_LO,4)}, v{L16}, s[8:11], s25 offen offset:1280
    buffer_load_dword v{QB_HI}, v{KH}, s[8:11], s25 offen offset:1280
    s_setprio 2
    s_mov_b64 vcc, -1
    s_mov_b32 s20, 0
    """)
    for r in range(1, 4):
        a(f"s_add_u32 m0, m0, 8192")
        a(f"s_add_u32 s27, s27, 8192")
        a(f"buffer_load_dwordx4 v{L16}, s[8:11], s27 offen lds")
    a(f"""
    s_waitcnt vmcnt(3)
    s_barrier
    """)
    stamp(a)
    a(f"""
    ds_read_b128 {vr(KLO[0],4)}, v{KA}
    ds_read_b32 v{KHI[0]}, v{KH}
    ds_read_b128 {vr(KLO[1],4)}, v{KA} offset:2560
    ds_read_b32 v{KHI[1]}, v{KH} offset:2560
    s_mov_b64 exec, s[22:23]
    ds_read_b128 {vr(VB[0],4)}, v{VA}
    ds_read_b128 {vr(VB[0]+4,4)}, v{VA} offset:640
    s_mov_b64 exec, -1
    s_waitcnt lgkmcnt(4)
    {M16} {vr(SA,16)}, {vr(KLO[0],4)}, {vr(QA_LO,4)}, 0
    {M8} {vr(SA,16)}, {vr(KHI[0],2)}, {vr(QA_HI,2)}, {vr(SA,16)}
    s_nop 15
    """)

    def ex(base, lo, hi):
        for i in range(lo, hi):
            a(f"v_exp_f32 v{base+i}, v{base+i}")

    a(".p2align 6")
    a("P2_LOOP:")
    for j in range(8):
        p = j & 1
        ex(SA, 0, 2)
        a(f"{SM} {vr(OB,16)}, {vr(VB[1-p]+4,4)}, {vr(SB+8,8)}, v{IDX}")
        ex(SA, 2, 4)
        a(f"{M16} {vr(SB,16)}, {vr(KLO[p],4)}, {vr(QB_LO,4)}, 0")
        ex(SA, 4, 8)
        a(f"{M8} {vr(SB,16)}, {vr(KHI[p],2)}, {vr(QB_HI,2)}, {vr(SB,16)}")
        a("s_waitcnt lgkmcnt(0)")
        if j in (1, 4):
            a(f"s_cbranch_vccnz P2_SY{j}")
            a(f"P2_SY{j}_RET:")
        a(f"ds_read_b128 {vr(KLO[p],4)}, v{KA} offset:{(j+2)*2560}")
        a(f"ds_read_b32 v{KHI[p]}, v{KH} offset:{(j+2)*2560}")
        if j == LOWJ:
            a("s_bitcmp1_b32 s24, s20")
            a(f"s_cbranch_scc1 P2_LOWP")
            a(f"P2_LOWP_RET:")
        ex(SA, 8, 12)
        a(f"{SM} {vr(OA,16)}, {vr(VB[p],4)}, {vr(SA,8)}, v{IDX}")
        ex(SA, 12, 16)
        ex(SB, 0, 2)
        a(f"{SM} {vr(OA,16)}, {vr(VB[p]+4,4)}, {vr(SA+8,8)}, v{IDX}")
        ex(SB, 2, 4)
        a(f"{M16} {vr(SA,16)}, {vr(KLO[1-p],4)}, {vr(QA_LO,4)}, 0")
        ex(SB, 4, 8)
        a(f"{M8} {vr(SA,16)}, {vr(KHI[1-p],2)}, {vr(QA_HI,2)}, {vr(SA,16)}")
        a("s_mov_b64 exec, s[22:23]")
        a(f"ds_read_b128 {vr(VB[1-p],4)}, v{VA} offset:{(j+1)*2560}")
        a(f"ds_read_b128 {vr(VB[1-p]+4,4)}, v{VA} offset:{(j+1)*2560+640}")
        a("s_mov_b64 exec, -1")
        ex(SB, 8, 12)
        a(f"{SM} {vr(OB,16)}, {vr(VB[p],4)}, {vr(SB,8)}, v{IDX}")
        ex(SB, 12, 16)
    stamp(a, lvl=3)
    a.c("chunk boundary: barriers before chunks 2 and 5; priority falls as a wave advances so the SIMD's two waves stay level")
    a(f"""
    v_add_u32 v{KA}, 20480, v{KA}
    v_add_u32 v{KH}, 20480, v{KH}
    v_add_u32 v{VA}, 20480, v{VA}
    s_add_u32 s20, s20, 1
    s_mov_b64 vcc, 0
    s_bitcmp1_b32 0x24, s20
    s_cbranch_scc0 P2_NOBAR
    s_barrier
    s_setprio 3
    s_branch P2_LOOP
    P2_LOWP:
    s_setprio 0
    s_branch P2_LOWP_RET
    P2_SY1:
    s_waitcnt vmcnt(2)
    s_barrier
    s_branch P2_SY1_RET
    P2_SY4:
    s_waitcnt vmcnt(0)
    s_barrier
    s_branch P2_SY4_RET
    P2_LOADER:
    """)
    a.c("wave 8: rounds 4..19 of the K/V image, then (once chunks 0-4 are dead) the phase-3 wo slice")
    a(f"""
    s_load_dwordx2 s[52:53], s[0:1], 16
    s_load_dwordx2 s[54:55], s[0:1], 56
    s_mov_b32 s60, 0xCCCCCCCD
    v_mul_hi_u32 v9, v1, s60
    v_lshrrev_b32 v9, 3, v9
    v_mul_u32_u24 v10, 10, v9
    v_sub_u32 v10, v1, v10
    v_mul_u32_u24 v9, 1280, v9
    v_lshl_add_u32 v8, v10, 4, v9
    s_lshr_b32 s56, s14, 2
    s_mul_i32 s56, s56, 160
    s_mov_b32 s34, {640*1280}
    s_mov_b32 s35, 0x00020000
    s_cmp_lt_u32 s13, 4
    s_waitcnt lgkmcnt(0)
    s_cselect_b32 s32, s52, s54
    s_cselect_b32 s33, s53, s55
    s_add_u32 s27, s27, {32768-8192}
    s_mov_b32 m0, 32768
    s_mov_b32 s20, 1
    s_barrier
    s_barrier
    s_barrier
    P2_LD1:
    """)
    for r in range(8):
        a(f"buffer_load_dwordx4 v{L16}, s[8:11], s27 offen lds")
        a(f"s_add_u32 m0, m0, 1024")
        a(f"s_add_u32 s27, s27, 1024")
    a(f"""
    s_add_u32 s20, s20, 1
    s_cmp_eq_u32 s20, 2
    s_cbranch_scc0 P2_LD2
    s_barrier
    P2_LD2:
    s_cmp_eq_u32 s20, 5
    s_cbranch_scc0 P2_LD3
    s_waitcnt vmcnt(16)
    s_barrier
    P2_LD3:
    s_cmp_lt_u32 s20, 17
    s_cbranch_scc1 P2_LD1
    s_waitcnt vmcnt(0)
    s_barrier
    """)
    a.c("mark this WG's O slots as 'not written yet' (all-ones words); phase 3 consumes the data itself as its flag")
    oaddr(a, "0")
    a(f"""
    v_and_b32 v12, 31, v1
    v_lshlrev_b32 v12, 4, v12
    v_lshrrev_b32 v13, 5, v1
    v_mul_u32_u24 v13, 20480, v13
    v_add_u32 v12, v12, v13
    v_and_b32 v13, 15, v1
    v_lshlrev_b32 v13, 4, v13
    v_lshrrev_b32 v14, 4, v1
    v_mul_u32_u24 v14, 20480, v14
    v_add_u32 v13, v13, v14
    v_mov_b32 v16, -1
    v_mov_b32 v17, -1
    v_mov_b32 v18, -1
    v_mov_b32 v19, -1
    s_mov_b32 s59, 0
    P2_PO:
    buffer_store_dwordx4 v[16:19], v12, s[8:11], s37 offen sc1
    s_add_u32 s37, s37, 40960
    buffer_store_dwordx4 v[16:19], v12, s[8:11], s37 offen sc1
    s_add_u32 s37, s37, 40960
    buffer_store_dwordx2 v[16:17], v13, s[8:11], s38 offen sc1
    s_add_u32 s38, s38, 81920
    s_add_u32 s59, s59, 1
    s_cmp_lt_u32 s59, 8
    s_cbranch_scc1 P2_PO
    """)
    flag_prep(a, 1, 0, f"""
    s_lshr_b32 s49, s13, 2
    s_lshl_b32 s49, s49, 4
    s_and_b32 s50, s13, 3
    s_add_u32 s49, s49, s50
    s_lshl_b32 s49, s49, 3
    v_bfe_u32 v10, v1, 3, 2
    v_lshlrev_b32 v10, 5, v10
    v_and_b32 v9, 7, v1
    v_add3_u32 v9, v9, v10, s49
    s_mov_b32 s50, -1
    s_mov_b32 s51, 0
    """, 20)
    a("s_waitcnt vmcnt(0)")
    flag_publish(a, 20)
    a(f"""
    s_lshr_b32 s57, s14, 2
    s_cmp_ge_u32 s57, 5
    s_cselect_b32 s58, 5, 0
    s_sub_u32 s57, s57, s58
    s_sub_u32 s57, 5, s57
    s_mul_i32 s57, s57, {20480*P3ROT}
    s_mov_b32 s59, 0
    s_cmp_ge_u32 s57, 102400
    s_cselect_b32 s57, 0, s57
    s_mov_b32 s58, s56
    """)
    flag_poll(a, "HP", 20)
    a(f"""
    s_barrier
    P2_LW1:
    """)
    rows = [0, 6, 12, 16, 22, 28]
    src = [0, 6, 12, 20, 26, 32]
    for t in range(6):
        a(f"""
        s_add_u32 m0, s57, {rows[t]*160}
        s_add_u32 s62, s58, {src[t]*1280}
        s_mov_b32 exec_hi, {'0xff' if t % 3 == 2 else '0x0fffffff'}
        buffer_load_dwordx4 v8, s[32:35], s62 offen lds
        """)
    a(f"""
    s_add_u32 s57, s57, 5120
    s_cmp_ge_u32 s57, 102400
    s_cselect_b32 s57, 0, s57
    s_add_u32 s58, s58, {40*1280}
    s_add_u32 s59, s59, 1
    s_cmp_lt_u32 s59, 16
    s_cbranch_scc1 P2_LW1
    s_add_u32 s58, s56, {16*1280}
    P2_LW2:
    s_mov_b32 m0, s57
    s_add_u32 s57, s57, 640
    buffer_load_dwordx4 v8, s[32:35], s58 offen lds
    s_add_u32 s58, s58, {20*1280}
    s_add_u32 s59, s59, 1
    s_cmp_lt_u32 s59, 48
    s_cbranch_scc1 P2_LW2
    s_waitcnt vmcnt(0)
    s_barrier
    s_endpgm
    P2_NOBAR:
    s_setprio 2
    s_bitcmp1_b32 0x48, s20
    s_cbranch_scc1 P2_LOOP
    s_setprio 1
    s_cmp_lt_u32 s20, 8
    s_cbranch_scc1 P2_LOOP
    s_setprio 0
    {SM} {vr(OB,16)}, {vr(VB[1]+4,4)}, {vr(SB+8,8)}, v{IDX}
    s_waitcnt lgkmcnt(0)
    s_nop 15
    """)
    stamp(a)
    dpt(a, 2)
    def lbro():
        if ONES1:
            a(f"""
            v_mov_b32 v7, v{OA+12}
            v_mov_b32 v8, v{OB+12}
            s_nop 1
            v_permlane32_swap_b32 v{OA+12}, v7
            v_permlane32_swap_b32 v{OB+12}, v8
            s_nop 1
            """)
    lbro()
    a.c("---- safety check of the unshifted softmax: l within [2^-30, 2^110], all O finite; else redo with the true max")
    a(f"""
    s_mov_b32 s30, {hex(f32bits(2.0**-30))}
    s_mov_b32 s31, {hex(f32bits(2.0**110))}
    v_mul_f32 v7, 0, v{OA}
    """)
    for i in range(1, 12):
        a(f"v_fma_f32 v7, v{OA+i}, 0, v7")
    for i in range(12):
        a(f"v_fma_f32 v7, v{OB+i}, 0, v7")
    a(f"""
    v_min_f32 v8, v{OA+12}, v{OB+12}
    v_max_f32 v9, v{OA+12}, v{OB+12}
    v_add_f32 v7, v7, v{OA+12}
    v_add_f32 v7, v7, v{OB+12}
    v_cmp_le_f32 vcc, s30, v8
    v_cmp_ge_f32 s[32:33], s31, v9
    v_cmp_o_f32 s[34:35], v7, v7
    s_nop 3
    s_and_b64 vcc, vcc, s[32:33]
    s_and_b64 vcc, vcc, s[34:35]
    s_cmp_eq_u64 vcc, -1
    s_cbranch_scc0 P2_FALLBACK
    P2_STORE:
    """)
    oaddr(a, "s3")
    a(f"""
    v_and_b32 v7, 15, v{VL}
    v_lshlrev_b32 v7, 4, v7
    v_bfe_u32 v8, v{VL}, 4, 1
    v_mul_u32_u24 v8, 20480, v8
    v_add_u32 v7, v7, v8
    v_lshrrev_b32 v8, 5, v{VL}
    v_lshl_add_u32 v8, v8, 8, v7
    v_rcp_f32 v10, v{OA+12}
    v_rcp_f32 v11, v{OB+12}
    s_add_u32 s40, s37, 40960
    s_add_u32 s41, s38, 40960
    """)
    for (o, r, t) in ((OA, 10, SA), (OB, 11, SB)):
        for i in range(12):
            a(f"v_mul_f32 v{o+i}, v{o+i}, v{r}")
        for i in range(6):
            a(f"v_cvt_pk_bf16_f32 v{t+i}, v{o+2*i}, v{o+2*i+1}")
    a(f"""
    buffer_store_dwordx4 {vr(SA,4)}, v8, s[8:11], s37 offen {STMOD}
    buffer_store_dwordx4 {vr(SB,4)}, v8, s[8:11], s40 offen {STMOD}
    s_mov_b32 exec_hi, 0
    buffer_store_dwordx2 {vr(SA+4,2)}, v7, s[8:11], s38 offen {STMOD}
    buffer_store_dwordx2 {vr(SB+4,2)}, v7, s[8:11], s41 offen {STMOD}
    s_mov_b64 exec, -1
    """)
    stamp(a)
    a("s_branch P2_DONE")
    a.c("---- fallback: textbook two-pass softmax with the true row max, K/V fragments straight from the workspace image")
    a(f"""
    P2_FALLBACK:
    v_mov_b32 v{MA}, 0xff800000
    v_mov_b32 v{MB}, 0xff800000
    v_subrev_u32 v{KH}, {8*20480}, v{KH}
    v_subrev_u32 v{VA}, {8*20480}, v{VA}
    s_mul_i32 s27, s21, {KVUNIT}
    s_add_u32 s27, s27, {WS_KV}
    s_mov_b32 s26, s27
    s_mov_b32 s20, 0
    P2_FB1:
    buffer_load_dwordx4 {vr(KLO[0],4)}, v{L16}, s[8:11], s26 offen
    buffer_load_dword v{KHI[0]}, v{KH}, s[8:11], s26 offen
    s_add_u32 s26, s26, 2560
    s_waitcnt vmcnt(0)
    {M16} {vr(SA,16)}, {vr(KLO[0],4)}, {vr(QA_LO,4)}, 0
    {M8} {vr(SA,16)}, {vr(KHI[0],2)}, {vr(QA_HI,2)}, {vr(SA,16)}
    {M16} {vr(SB,16)}, {vr(KLO[0],4)}, {vr(QB_LO,4)}, 0
    {M8} {vr(SB,16)}, {vr(KHI[0],2)}, {vr(QB_HI,2)}, {vr(SB,16)}
    s_nop 15
    """)
    for i in range(8):
        a(f"v_max3_f32 v{MA}, v{SA+2*i}, v{SA+2*i+1}, v{MA}")
        a(f"v_max3_f32 v{MB}, v{SB+2*i}, v{SB+2*i+1}, v{MB}")
    a(f"""
    s_add_u32 s20, s20, 1
    s_cmp_lt_u32 s20, 64
    s_cbranch_scc1 P2_FB1
    v_mov_b32 v7, v{MA}
    v_mov_b32 v8, v{MB}
    s_nop 1
    v_permlane32_swap_b32 v7, v{MA}
    v_permlane32_swap_b32 v8, v{MB}
    s_nop 1
    v_max_f32 v{MA}, v{MA}, v7
    v_max_f32 v{MB}, v{MB}, v8
    """)
    for i in range(32):
        a(f"v_mov_b32 v{OA+i}, 0")
    a(f"""
    s_mov_b32 s20, 0
    P2_FB2:
    buffer_load_dwordx4 {vr(KLO[0],4)}, v{L16}, s[8:11], s27 offen
    buffer_load_dword v{KHI[0]}, v{KH}, s[8:11], s27 offen
    s_mov_b64 exec, s[22:23]
    buffer_load_dwordx4 {vr(VB[0],4)}, v{VA}, s[8:11], s27 offen
    buffer_load_dwordx4 {vr(VB[0]+4,4)}, v{VA}, s[8:11], s27 offen offset:640
    s_mov_b64 exec, -1
    s_add_u32 s27, s27, 2560
    s_waitcnt vmcnt(0)
    {M16} {vr(SA,16)}, {vr(KLO[0],4)}, {vr(QA_LO,4)}, 0
    {M8} {vr(SA,16)}, {vr(KHI[0],2)}, {vr(QA_HI,2)}, {vr(SA,16)}
    {M16} {vr(SB,16)}, {vr(KLO[0],4)}, {vr(QB_LO,4)}, 0
    {M8} {vr(SB,16)}, {vr(KHI[0],2)}, {vr(QB_HI,2)}, {vr(SB,16)}
    s_nop 15
    """)
    for i in range(16):
        a(f"v_sub_f32 v{SA+i}, v{SA+i}, v{MA}")
        a(f"v_sub_f32 v{SB+i}, v{SB+i}, v{MB}")
    ex(SA, 0, 16)
    ex(SB, 0, 16)
    a(f"""
    s_nop 1
    {SM} {vr(OA,16)}, {vr(VB[0],4)}, {vr(SA,8)}, v{IDX}
    {SM} {vr(OA,16)}, {vr(VB[0]+4,4)}, {vr(SA+8,8)}, v{IDX}
    {SM} {vr(OB,16)}, {vr(VB[0],4)}, {vr(SB,8)}, v{IDX}
    {SM} {vr(OB,16)}, {vr(VB[0]+4,4)}, {vr(SB+8,8)}, v{IDX}
    s_add_u32 s20, s20, 1
    s_cmp_lt_u32 s20, 64
    s_cbranch_scc1 P2_FB2
    s_nop 15
    """)
    lbro()
    a("""
    s_branch P2_STORE
    P2_DONE:
    """)


def phase3(a):
    WF = [16, 36]
    ACC = 56
    OF = 96
    NR = LA + 1
    assert OF + 8 * NR <= STV
    SA_ = [6, 8, 12, 13, 14]

    def reads(kap, st):
        base, off = (4, kap * 5120) if kap < 10 else (5, (kap - 10) * 5120)
        return [f"ds_read_b64_tr_b16 {vr(WF[st]+4*j+2*i,2)}, v{base} offset:{off+i*1280+8*j}" for j in range(5) for i in range(2)]

    def ofr(kap, tt):
        return OF + (kap % NR) * 8 + tt * 4

    def oload(kap, tt):
        return f"buffer_load_dwordx4 {vr(ofr(kap,tt),4)}, v2, s[8:11], s{60+2*(kap>>2)+tt} offen offset:{(kap&3)*1024} sc1"
    stamp(a)
    a("""
    s_barrier
    s_cmp_lt_u32 s3, 4
    s_cbranch_scc1 P3_GO
    """)
    stamp_store(a)
    a("s_endpgm")
    a("P3_GO:")
    issued = 0
    for k in range(LA):
        for tt in range(2):
            a(oload(k, tt))
            issued += 1
    a(f"""
    s_load_dwordx2 s[36:37], s[0:1], 64
    s_mov_b32 s28, 0xCCCCCCCD
    s_mov_b32 s38, {2048*2560}
    s_mov_b32 s39, 0x00020000
    s_mov_b32 s70, 0
    v_lshrrev_b32 v4, 5, v1
    v_lshlrev_b32 v4, 4, v4
    v_bfe_u32 v5, v1, 4, 1
    v_lshl_add_u32 v4, v5, 2, v4
    v_bfe_u32 v5, v1, 2, 2
    v_add_u32 v4, v4, v5
    v_mul_u32_u24 v4, 160, v4
    v_and_b32 v5, 3, v1
    v_mul_u32_u24 v5, 40, v5
    v_add_u32 v4, v4, v5
    v_add_u32 v5, {10*5120}, v4
    """)
    for x in reads(0, 0):
        a(x)
    stamp(a)
    dpt(a, 3)
    for i in range(40):
        a(f"v_mov_b32 v{ACC+i}, 0")
    for t in range(5):
        a(f"""
        v_add_u32 v7, {64*t}, v1
        v_mul_hi_u32 v9, v7, s28
        v_lshrrev_b32 v9, 3, v9
        v_mul_u32_u24 v10, 10, v9
        v_sub_u32 v10, v7, v10
        v_mul_u32_u24 v9, 2560, v9
        v_lshl_add_u32 v{SA_[t]}, v10, 4, v9
        """)
    a(f"""
    v_and_b32 v3, 15, v1
    v_mul_u32_u24 v3, 160, v3
    v_lshrrev_b32 v7, 4, v1
    v_mul_u32_u24 v7, 40, v7
    v_add3_u32 v3, v3, v7, s72
    v_add_u32 v15, s72, v2
    """)
    for kap in range(20):
        st = kap & 1
        nxt = kap + 1
        o = ofr(kap, 0)
        a(f"s_waitcnt vmcnt({issued - 2*(kap+1)})")
        a(f"""
        v_max3_u32 v7, v{o}, v{o+1}, v{o+2}
        v_max3_u32 v9, v{o+3}, v{o+4}, v{o+5}
        v_max3_u32 v7, v{o+6}, v{o+7}, v7
        v_max_u32 v7, v7, v9
        v_cmp_eq_u32 vcc, -1, v7
        """)
        if kap + LA < 20:
            for tt in range(2):
                a(oload(kap + LA, tt))
                issued += 1
        else:
            a("s_nop 1")
        a(f"s_cbranch_vccnz P3_RT{kap}")
        a(f"P3_OK{kap}:")
        a("s_waitcnt lgkmcnt(0)")
        r = reads(nxt, 1 - st) if nxt < 20 else []
        for j in range(5):
            for tt in range(2):
                d = vr(ACC + (tt * 5 + j) * 4, 4)
                a(f"{M1632} {d}, {vr(WF[st]+4*j,4)}, {vr(ofr(kap,tt),4)}, {d}")
                for _ in range(2):
                    if r:
                        a(r.pop(0))
    stamp(a)
    a.c("---- epilogue: pack, transpose through LDS so each store covers whole row segments")
    a("s_nop 7")
    for tt in range(2):
        t = 16 + tt * 10
        for j in range(5):
            b = ACC + (tt * 5 + j) * 4
            a(f"v_cvt_pk_bf16_f32 v{t+2*j}, v{b}, v{b+1}")
            a(f"v_cvt_pk_bf16_f32 v{t+2*j+1}, v{b+2}, v{b+3}")
            a(f"ds_write_b64 v3, {vr(t+2*j,2)} offset:{tt*2560+8*j}")
    a("s_waitcnt lgkmcnt(0)")
    for t in range(5):
        a(f"ds_read_b128 {vr(OF+4*t,4)}, v15 offset:{t*1024}")
    for t in range(5):
        a(f"s_waitcnt lgkmcnt({4-t})")
        a(f"buffer_store_dwordx4 {vr(OF+4*t,4)}, v{SA_[t]}, s[36:39], s71 offen {OUTMOD}")
    stamp(a)
    if STAMP:
        a("s_waitcnt vmcnt(0)")
    stamp(a)
    stamp_store(a)
    dpt(a, 4)
    dfin(a)
    a("KEND:")
    a("s_endpgm")
    a.c("some O words of this kappa are still 'not written': refresh every fragment in flight and look again (bounded)")
    for kap in range(20):
        a(f"""
        P3_RT{kap}:
        s_waitcnt vmcnt(0)
        P3_RL{kap}:
        s_sleep {RT_SLEEP}
        """)
        for k in range(kap, min(kap + LA + 1, 20) if RTALL else kap + 1):
            for tt in range(2):
                a(oload(k, tt))
        a(f"""
        s_add_u32 s70, s70, 1
        s_waitcnt vmcnt(0)
        v_max3_u32 v7, v{ofr(kap,0)}, v{ofr(kap,0)+1}, v{ofr(kap,0)+2}
        v_max3_u32 v9, v{ofr(kap,0)+3}, v{ofr(kap,0)+4}, v{ofr(kap,0)+5}
        v_max3_u32 v7, v{ofr(kap,0)+6}, v{ofr(kap,0)+7}, v7
        v_max_u32 v7, v7, v9
        v_cmp_eq_u32 vcc, -1, v7
        s_cmp_ge_u32 s70, {SPIN_MAX}
        s_cbranch_scc1 P3_RD{kap}
        s_cbranch_vccnz P3_RL{kap}
        P3_RD{kap}:
        """)
        for k in range(kap + 1, min(kap + LA + 1, 20)):
            for tt in range(2):
                if not RTALL:
                    a(oload(k, tt))
        a(f"s_branch P3_OK{kap}")


def main(path):
    a = Asm()
    a.l += [
        "; Fused MHA (branch A) + MQA (branch B) attention block in one launch: 256 workgroups (one per CU) x 9 waves.",
        ";   phase 1: Q/K/V projections -> workspace images laid out as MFMA fragments",
        ";   phase 2: softmax(QK^T)V per (head, 512 queries), K/V image resident in LDS, P fed to a sparse MFMA as raw fp32",
        ";   phase 3: output projections, concatenated into d_out",
        "; Hand-offs: 1->2 write-through stores + one time-stamped flag line per workgroup; 2->3 the O words themselves",
        ";   (pre-marked 'not written' by their producer earlier in the launch, re-read until valid, all accesses sc1).",
        "; Softmax runs unshifted; a run-time check on the row sums / accumulators falls back to the true-max two-pass form.",
        "; Generated by dev/gen10.py (hand-written generator).",
        f"; @launch grid=(256,1,1) block=(576,1,1) lds={LDS}",
        '.amdgcn_target "amdgcn-amd-amdhsa--gfx950"',
        ".text",
        f".globl {KN}",
        ".p2align 8",
        f".type {KN},@function",
        f"{KN}:",
    ]
    phase1(a)
    phase2(a)
    phase3(a)
    a.l += [
        '.section .rodata,"a"',
        ".p2align 6",
        f".amdhsa_kernel {KN}",
        f"  .amdhsa_next_free_vgpr {NV}",
        "  .amdhsa_next_free_sgpr 102",
        f"  .amdhsa_accum_offset {NV}",
        "  .amdhsa_group_segment_fixed_size 0",
        "  .amdhsa_kernarg_size 88",
        "  .amdhsa_user_sgpr_count 2",
        "  .amdhsa_user_sgpr_kernarg_segment_ptr 1",
        "  .amdhsa_system_sgpr_workgroup_id_x 1",
        ".end_amdhsa_kernel",
    ]
    open(path, "w").write(a.text())
    print(f"{KN} 256 576 {LDS}")


if __name__ == "__main__":
    main(sys.argv[1] if len(sys.argv) > 1 else f"cdna_kernels/{NAME}.s")
```

```python
import math, os, re, struct, sys

NAME = "concat_heads__softmax_full_mha__grouped_kv_mqa__prompt"
KN = NAME + "_kernel"

WS_Q = 0
QUNIT = 81920
WS_KV = 0x500000
KVUNIT = 163840
WS_O = 0xA40000
OBR = 0x280000
WS_FLAG = WS_O + 2 * OBR
WS_ST = 0xF80000
WS_SIZE = 0x1000000
LDS = 163840
P3_TR = 102400
NV = 168

env = lambda k, d: os.environ.get(k, d)
STAMP = int(env("STAMP", "0"))
ROT_MASK = int(env("ROT_MASK", "3"))
ROT_MUL = int(env("ROT_MUL", "10"))
ROT_P = int(env("ROT_P", "0"))
ROT_H = int(env("ROT_H", "0"))
POLL_SLEEP = int(env("POLL_SLEEP", "4"))
NPOLL = int(env("NPOLL", "1"))
LA = int(env("K3_LA", "7"))
STMOD = env("STMOD", "sc1")
OUTMOD = env("OUTMOD", "nt")
LOWJ = int(env("LOWJ", "6"))
P3ROT = int(env("P3ROT", "0"))
ONES1 = int(env("ONES1", "1"))
OLDMOD = env("OLDMOD", "")
FILLQ = int(env("FILLQ", "4"))
LA3 = int(env("LA3", "0"))
RT_SLEEP = int(env("RT_SLEEP", "2"))
RTALL = int(env("RTALL", "0"))
TLBSH = int(env("TLBSH", "0"))
XMOD = env("XMOD", "")
WMOD = env("WMOD", "")
LOWY = int(env("LOWY", "0"), 0)
SPIN_MAX = 1 << 16
STV = 166
NOMORE = False


def f32bits(x):
    return struct.unpack("<I", struct.pack("<f", x))[0]


QSCALE = (20.0 ** -0.5) * math.log2(math.e)


class Asm:
    def __init__(self):
        self.l = []

    def __call__(self, s):
        for line in s.strip("\n").split("\n"):
            t = line.strip()
            if t:
                self.l.append(t if t.endswith(":") else "  " + t)

    def c(self, s):
        self.l.append("  ; " + s)

    def text(self):
        return "\n".join(self.l) + "\n"


def vr(b, n):
    return f"v[{b}:{b+n-1}]"


def stamp(a, first=False, lvl=1):
    if STAMP < lvl or (STAMP == 2 and NOMORE):
        return
    if first:
        a(f"v_mov_b32 v{STV}, 0")
        a("s_mov_b32 s91, 0")
    a(f"""
    s_memtime s[96:97]
    s_memrealtime s[98:99]
    s_waitcnt lgkmcnt(0)
    s_mov_b32 s90, m0
    s_mov_b32 m0, s91
    s_nop 0
    v_writelane_b32 v{STV}, s96, m0
    s_add_u32 m0, s91, 1
    s_nop 0
    v_writelane_b32 v{STV}, s98, m0
    s_add_u32 s91, s91, 2
    s_mov_b32 m0, s90
    """)


def stamp_store(a):
    if not STAMP:
        return
    a(f"""
    s_mov_b32 exec_lo, -1
    s_mov_b32 exec_hi, 0
    s_lshl_b32 s92, s2, 3
    s_add_u32 s92, s92, s3
    s_lshl_b32 s92, s92, 7
    s_add_u32 s92, s92, {WS_ST}
    v_mbcnt_lo_u32_b32 v{STV+1}, -1, 0
    v_lshlrev_b32 v{STV+1}, 2, v{STV+1}
    buffer_store_dword v{STV}, v{STV+1}, s[8:11], s92 offen
    """)


DIAG = env("DIAG", "")
def dpt(a, k):
    if DIAG:
        a(f"s_memrealtime s[{82+2*k}:{83+2*k}]")
        a("s_waitcnt lgkmcnt(0)")
def dfin(a):
    if not DIAG:
        return
    if DIAG == "xcc":
        a("""
        s_getreg_b32 s92, hwreg(HW_REG_XCC_ID)
        s_and_b32 s92, s92, 7
        s_and_b32 s93, s2, 7
        s_cmp_eq_u32 s92, s93
        s_cselect_b32 s92, 0, 3000
        """)
    else:
        A, B = DIAG.split("-")
        ra = "s6" if A == "s" else f"s{82+2*int(A)}"
        a(f"""
        s_or_b32 s92, s2, s3
        s_cmp_lg_u32 s92, 0
        s_cbranch_scc1 KEND
        s_sub_u32 s92, s{82+2*int(B)}, {ra}
        s_lshl_b32 s92, s92, 2
        """)
    a("""
    s_memrealtime s[94:95]
    s_waitcnt lgkmcnt(0)
    s_add_u32 s92, s92, s94
    DSPIN:
    s_memrealtime s[94:95]
    s_waitcnt lgkmcnt(0)
    s_sub_u32 s93, s94, s92
    s_cmp_lt_i32 s93, 0
    s_cbranch_scc1 DSPIN
    """)

M16 = "v_mfma_f32_32x32x16_bf16"
M8 = "v_mfma_f32_32x32x8_bf16"
SM = "v_smfmac_f32_32x32x32_bf16"
M1632 = "v_mfma_f32_16x16x32_bf16"

WOFF = 16384
EOFF = WOFF + 4 * 5184
SLOT = EOFF + 2560 + 64
NSLOT = 4
assert NSLOT * SLOT <= LDS


def phase1(a):
    a(f"""
    s_cmp_ge_u32 s2, 256
    s_cbranch_scc1 KEND
    """)
    if env("PERM", ""):
        a(f"s_mul_i32 s2, s2, {env('PERM', '')}")
        a("s_and_b32 s2, s2, 255")
    stamp(a, True)
    a(f"""
    s_load_dwordx16 s[16:31], s[0:1], 0
    s_load_dwordx2 s[8:9], s[0:1], 80
    s_memrealtime s[6:7]
    v_and_b32 v1, 63, v0
    v_lshrrev_b32 v2, 6, v0
    s_and_b32 s50, s2, 7
    v_readfirstlane_b32 s3, v2
    s_lshr_b32 s51, s2, 3
    s_and_b32 s52, s51, 7
    s_lshr_b32 s53, s51, 3
    s_and_b32 s54, s50, 1
    s_lshr_b32 s55, s50, 1
    s_lshl_b32 s56, s54, 3
    s_add_u32 s56, s56, s52
    s_mov_b32 s10, {WS_SIZE}
    s_mov_b32 s11, 0x00020000
    """)
    a.c("s3 wave, s[8:11] ws SRD, s[6:7] start time; s52 mt, s53 nt, s54 mhalf, s55 part(0 Q,1 K,2 V,3 B), s56 m tile 0..15")
    a(f"""
    s_cmp_eq_u32 s55, 3
    s_cselect_b32 s57, 1, 0
    s_mov_b32 s58, 3840
    s_cselect_b32 s58, 1280, s58
    s_cselect_b32 s59, 0, s55
    s_mul_i32 s59, s59, 1280
    s_mul_i32 s60, s53, 320
    s_add_u32 s59, s59, s60
    s_cmp_ge_u32 s3, 4
    s_cbranch_scc1 P1_LOADER
    """)
    a.c("s57 isB, s58 W row stride, s59 W col byte base")
    XA = [4, 5, 6, 7]
    WA, EA = 8, 9
    T = [10, 11, 12, 13, 14]
    XF = [16, 32]
    WF = 48
    EF = 68
    ACC = 72
    EACC = 152
    a.c("---- compute wave setup: s61 wm, s62 wn, s63 flip (B WGs with nt odd)")
    a(f"""
    s_and_b32 s61, s3, 1
    s_lshr_b32 s62, s3, 1
    s_and_b32 s63, s53, s57
    v_and_b32 v2, 15, v1
    v_lshrrev_b32 v3, 4, v1
    s_cmp_eq_u32 s55, 2
    s_cselect_b64 s[64:65], -1, 0
    v_bfe_u32 v22, v2, 1, 3
    v_bfe_u32 v23, v2, 1, 1
    v_lshrrev_b32 v24, 2, v2
    v_lshl_or_b32 v23, v24, 1, v23
    v_cndmask_b32 v22, v22, v23, s[64:65]
    v_and_b32 v23, 3, v2
    v_lshl_add_u32 v23, v24, 3, v23
    v_cndmask_b32 v23, v2, v23, s[64:65]
    s_lshl_b32 s66, s61, 13
    s_lshl_b32 s67, s63, 12
    s_add_u32 s68, s66, s67
    s_xor_b32 s67, s67, 4096
    s_add_u32 s69, s66, s67
    v_lshlrev_b32 v23, 7, v23
    """)
    for ks in range(2):
        a(f"""
        v_add_u32 v24, {4*ks}, v3
        v_xor_b32 v24, v24, v22
        v_lshl_add_u32 v24, v24, 4, v23
        v_add_u32 v{XA[2*ks]}, s68, v24
        v_add_u32 v{XA[2*ks+1]}, s69, v24
        """)
    a(f"""
    v_bfe_u32 v22, v1, 2, 2
    v_lshl_add_u32 v22, v3, 3, v22
    v_and_b32 v24, 3, v1
    v_mul_u32_u24 v{WA}, 320, v22
    v_and_b32 v25, 1, v3
    v_lshl_add_u32 v{WA}, v25, 5, v{WA}
    v_lshrrev_b32 v25, 1, v3
    v_lshl_add_u32 v{WA}, v25, 6, v{WA}
    v_mul_u32_u24 v25, 40, v24
    v_lshlrev_b32 v26, 3, v24
    v_cndmask_b32 v25, v25, v26, s[64:65]
    s_mul_i32 s66, s62, 160
    s_add_u32 s66, s66, {WOFF}
    v_add3_u32 v{WA}, v{WA}, v25, s66
    v_mul_u32_u24 v{EA}, 40, v22
    s_lshl_b32 s66, s62, 5
    s_add_u32 s66, s66, {EOFF}
    v_add3_u32 v{EA}, v{EA}, v26, s66
    """)
    for i in range(88):
        a(f"v_mov_b32 v{ACC+i}, 0")
    a.c("store geometry: s70 unit size, s71 tile size, s72/s73 soffset for slot pair 0/1, s74 extra soffset")
    a(f"""
    s_sub_u32 s66, s55, 1
    s_cmp_lt_u32 s66, 2
    s_mov_b32 s70, {QUNIT}
    s_cselect_b32 s70, {KVUNIT}, s70
    s_mov_b32 s71, 1280
    s_cselect_b32 s71, 2560, s71
    s_cselect_b32 s72, {WS_KV}, {WS_Q}
    s_lshl_b32 s66, s53, 3
    s_lshl_b32 s67, s57, 5
    s_add_u32 s66, s66, s67
    s_lshl_b32 s67, s62, 2
    s_add_u32 s66, s66, s67
    s_mul_i32 s66, s66, s70
    s_add_u32 s72, s72, s66
    s_lshl_b32 s66, s56, 2
    s_lshl_b32 s67, s61, 1
    s_add_u32 s66, s66, s67
    s_add_u32 s67, s66, s63
    s_xor_b32 s76, s63, 1
    s_add_u32 s66, s66, s76
    s_mul_i32 s76, s66, s71
    s_add_u32 s73, s72, s76
    s_mul_i32 s76, s67, s71
    s_add_u32 s72, s72, s76
    s_mul_i32 s74, s67, 2560
    s_add_u32 s74, s74, {WS_KV + 32*KVUNIT}
    v_mul_lo_u32 v22, v3, s70
    v_lshl_add_u32 v{T[0]}, v2, 4, v22
    v_lshl_add_u32 v{T[1]}, v2, 3, v22
    v_add_u32 v{T[1]}, 1024, v{T[1]}
    v_mov_b32 v{T[2]}, 0
    v_mov_b32 v{T[3]}, 0
    v_mov_b32 v{T[4]}, 0
    s_cmp_eq_u32 s55, 2
    s_cbranch_scc0 P1_SETUP_DONE
    s_mov_b32 s76, 0xCCCCCCCD
    v_lshrrev_b32 v25, 1, v3
    v_mul_u32_u24 v25, 640, v25
    v_and_b32 v26, 1, v3
    v_mul_u32_u24 v26, 320, v26
    v_add3_u32 v25, v25, v26, s71
    v_subrev_u32 v25, 1280, v25
    """)
    for n5 in range(5):
        a(f"""
        v_add_u32 v22, {16*n5}, v2
        v_mul_hi_u32 v23, v22, s76
        v_lshrrev_b32 v23, 4, v23
        v_mul_u32_u24 v24, 20, v23
        v_sub_u32 v24, v22, v24
        v_mul_lo_u32 v23, v23, s70
        v_lshl_add_u32 v23, v24, 4, v23
        v_add_u32 v{T[n5]}, v23, v25
        """)
    a("P1_SETUP_DONE:")
    a.c("s76: variant 0 QK, 1 V, 2 QK+Kextra, 3 QK+Vextra; s78 stage counter")
    a(f"""
    s_mov_b32 s76, 0
    s_cmp_eq_u32 s55, 2
    s_cselect_b32 s76, 1, s76
    s_lshr_b32 s66, s53, 1
    s_add_u32 s66, s66, 2
    s_cmp_eq_u32 s57, 1
    s_cselect_b32 s76, s66, s76
    s_mov_b32 s78, 0
    s_mov_b32 s79, {SLOT}
    s_waitcnt lgkmcnt(0)
    s_barrier
    """)
    stamp(a)

    def wreads(g, ks, orient):
        if g < 5:
            return [(f"W{g}", f"ds_read_b64_tr_b16 {vr(WF+4*g+2*i,2)}, v{WA} offset:{ks*(320*32+128)+i*1280+g*(32 if orient else 8)}") for i in range(2)]
        return [("W5", f"ds_read_b64_tr_b16 {vr(EF+2*i,2)}, v{EA} offset:{(32*ks+4*i)*40}") for i in range(2)]

    def xreads(ks, xs, orient):
        return [(f"X{xs}{s_}", f"ds_read_b128 {vr(XF[xs]+4*s_,4)}, v{XA[2*ks+(s_>>1)]} offset:{(s_&1)*(512 if orient else 2048)}") for s_ in range(4)]

    def mlist(xs, orient, extra):
        m = []
        for g in range(6 if extra else 5):
            for s_ in range(4 if g < 5 else 2):
                w, x = vr(WF+4*g if g < 5 else EF, 4), vr(XF[xs]+4*s_, 4)
                d = vr(ACC+(s_*5+g)*4 if g < 5 else EACC+4*s_, 4)
                o = orient if g < 5 else (extra == 2)
                m.append((g, (f"W{g}",) + tuple(f"X{xs}{t_}" for t_ in range(4 if s_ == 0 else 0)), f"{M1632} {d}, {x}, {w}, {d}" if o else f"{M1632} {d}, {w}, {x}, {d}"))
        return m

    def body(orient, extra):
        G = 6 if extra else 5
        items = []
        BARG = 1
        tail = []
        for half in range(2):
            ml = mlist(half, orient, extra)
            q = [("r",) + r for r in wreads(G - 1, half, orient)]
            if half == 0:
                q += [("r",) + r for r in xreads(1, 1, orient)]
            for n, (g, deps, txt) in enumerate(ml):
                items.append(("m", deps, txt))
                last = n + 1 == len(ml) or ml[n + 1][0] != g
                if last and g < G - 1:
                    if half == 0:
                        q += [("r",) + r for r in wreads(g, 1, orient)]
                    elif g == BARG:
                        assert not q
                        items.append(("bar",))
                        q += [("v", f"v_add_u32 v{r}, s77, v{r}") for r in [WA, XA[0], XA[1]]]
                        q += [("r",) + r for r in wreads(0, 0, orient) + xreads(0, 0, orient)]
                        for g2 in range(1, BARG + 1):
                            q += [("r",) + r for r in wreads(g2, 0, orient)]
                        q += [("v", f"v_add_u32 v{r}, s77, v{r}") for r in [XA[2], XA[3]] + ([EA] if extra else [])]
                    elif g > BARG:
                        q += [("r",) + r for r in wreads(g, 0, orient)]
                for _ in range(1 if (last and len(q) <= FILLQ) else 2):
                    if q:
                        it = q.pop(0)
                        items.append(it)
                        if half == 1 and it[0] == "r" and ("bar",) in items:
                            tail.append(it)
            assert not q, (half, q)
        return tail, items

    def emit_body(tail, items):
        seq = [it[1] for it in tail]
        waits = []
        for ps in range(2):
            done = 0 if ps == 0 else done
            w = []
            for it in items:
                if it[0] == "r":
                    seq.append(it[1])
                    w.append(None)
                elif it[0] == "bar":
                    done = len(seq)
                    w.append(0)
                elif it[0] == "m":
                    need = max(max(k for k, x in enumerate(seq) if x == d) for d in it[1]) + 1
                    if need > done:
                        w.append(len(seq) - need)
                        done = need
                    else:
                        w.append(None)
                else:
                    w.append(None)
            waits.append(w)
        for it, w0, w1 in zip(items, *waits):
            ws_ = [x for x in (w0, w1) if x is not None]
            if it[0] == "bar":
                a(f"""
                s_waitcnt lgkmcnt(0)
                s_barrier
                """)
                continue
            if ws_:
                assert min(ws_) <= 15
                a(f"s_waitcnt lgkmcnt({min(ws_)})")
            a(it[-1])

    variants = [(0, 0), (1, 0), (0, 1), (0, 2)]
    a(f"""
    s_cmp_eq_u32 s76, 1
    s_cbranch_scc1 P1_V1
    s_cmp_eq_u32 s76, 2
    s_cbranch_scc1 P1_V2
    s_cmp_eq_u32 s76, 3
    s_cbranch_scc1 P1_V3
    """)
    for vi, (orient, extra) in enumerate(variants):
        tail, items = body(orient, extra)
        a(f"P1_V{vi}:")
        for it in tail:
            a(it[2])
        a(f"P1_L{vi}:")
        a(f"""
        s_and_b32 s77, s78, 3
        s_cmp_eq_u32 s77, 3
        s_cselect_b32 s77, {(-3*SLOT) & 0xffffffff}, s79
        """)
        emit_body(tail, items)
        stamp(a, lvl=2)
        a(f"""
        s_add_u32 s78, s78, 1
        s_cmp_lt_u32 s78, 10
        s_cbranch_scc1 P1_L{vi}
        """)
        if vi == 1:
            a("s_branch P1_EPI_V")
        elif vi < 3:
            a("s_branch P1_EPI_QK")
    a("P1_EPI_QK:")
    stamp(a)
    a(f"""
    s_nop 7
    s_waitcnt lgkmcnt(0)
    s_cmp_eq_u32 s55, 1
    s_cbranch_scc1 P1_NOSCALE
    s_mov_b32 s80, {hex(f32bits(QSCALE))}
    s_mov_b32 s81, {hex(f32bits(QSCALE))}
    """)
    for i in range(0, 80, 2):
        a(f"v_pk_mul_f32 {vr(ACC+i,2)}, s[80:81], {vr(ACC+i,2)}")
    a("P1_NOSCALE:")
    for s_ in range(4):
        t = 16 + 12 * s_
        for n5 in range(5):
            b = ACC + (s_ * 5 + n5) * 4
            a(f"v_cvt_pk_bf16_f32 v{t+2*n5}, v{b}, v{b+1}")
            a(f"v_cvt_pk_bf16_f32 v{t+2*n5+1}, v{b+2}, v{b+3}")
        so = f"s{72+(s_>>1)}"
        a(f"buffer_store_dwordx4 {vr(t,4)}, v{T[0]}, s[8:11], {so} offen offset:{(s_&1)*256} {STMOD}")
        a(f"buffer_store_dwordx4 {vr(t+4,4)}, v{T[0]}, s[8:11], {so} offen offset:{(s_&1)*256+512} {STMOD}")
        a(f"buffer_store_dwordx2 {vr(t+8,2)}, v{T[1]}, s[8:11], {so} offen offset:{(s_&1)*128} {STMOD}")
    TX = 70
    a(f"""
    s_cmp_lt_u32 s76, 2
    s_cbranch_scc1 P1_DONE
    v_cvt_pk_bf16_f32 v64, v{EACC}, v{EACC+1}
    v_cvt_pk_bf16_f32 v65, v{EACC+2}, v{EACC+3}
    v_cvt_pk_bf16_f32 v66, v{EACC+4}, v{EACC+5}
    v_cvt_pk_bf16_f32 v67, v{EACC+6}, v{EACC+7}
    v_lshrrev_b32 v68, 1, v3
    v_and_b32 v69, 1, v3
    s_cmp_eq_u32 s76, 3
    s_cbranch_scc1 P1_EPI_VX
    s_cmp_eq_u32 s62, 1
    s_cbranch_scc1 P1_EPI_KX1
    v_lshlrev_b32 v{TX}, 9, v68
    v_lshl_add_u32 v{TX}, v69, 3, v{TX}
    v_lshl_add_u32 v{TX}, v2, 4, v{TX}
    buffer_store_dwordx2 v[64:65], v{TX}, s[8:11], s74 offen {STMOD}
    buffer_store_dwordx2 v[66:67], v{TX}, s[8:11], s74 offen offset:256 {STMOD}
    s_branch P1_DONE
    P1_EPI_KX1:
    v_lshlrev_b32 v{TX}, 3, v2
    s_mov_b32 exec_lo, 0xffff
    s_mov_b32 exec_hi, 0
    buffer_store_dwordx2 v[64:65], v{TX}, s[8:11], s74 offen offset:1024 {STMOD}
    buffer_store_dwordx2 v[66:67], v{TX}, s[8:11], s74 offen offset:1152 {STMOD}
    s_mov_b64 exec, -1
    s_branch P1_DONE
    P1_EPI_VX:
    v_mul_u32_u24 v{TX}, 320, v68
    v_lshl_add_u32 v{TX}, v69, 3, v{TX}
    v_lshl_add_u32 v{TX}, v2, 4, v{TX}
    s_lshl_b32 s66, s62, 8
    s_add_u32 s74, s74, s66
    s_cmp_eq_u32 s62, 1
    s_mov_b32 s66, 0x000f000f
    s_cselect_b32 s66, s66, -1
    s_mov_b32 exec_lo, s66
    s_mov_b32 exec_hi, s66
    buffer_store_dwordx2 v[64:65], v{TX}, s[8:11], s74 offen offset:1280 {STMOD}
    buffer_store_dwordx2 v[66:67], v{TX}, s[8:11], s74 offen offset:1920 {STMOD}
    s_mov_b64 exec, -1
    s_branch P1_DONE
    P1_EPI_V:
    """)
    stamp(a)
    a("s_nop 7")
    a("s_waitcnt lgkmcnt(0)")
    for pr in range(2):
        for n5 in range(5):
            t = 16 + 4 * (pr * 5 + n5)
            for h in range(2):
                b = ACC + ((2 * pr + h) * 5 + n5) * 4
                a(f"v_cvt_pk_bf16_f32 v{t+2*h}, v{b}, v{b+1}")
                a(f"v_cvt_pk_bf16_f32 v{t+2*h+1}, v{b+2}, v{b+3}")
            a(f"buffer_store_dwordx4 {vr(t,4)}, v{T[n5]}, s[8:11], s{72+pr} offen {STMOD}")
    a("s_branch P1_DONE")

    XO, WO, EO = 4, 5, 6
    NPS = 11
    a(f"""
    P1_LOADER:
    s_cmp_eq_u32 s3, 8
    s_cbranch_scc1 P1_IDLE
    s_sub_u32 s12, s3, 4
    s_lshl_b32 s61, s56, 7
    s_lshl_b32 s62, s12, 3
    s_add_u32 s61, s61, s62
    v_lshrrev_b32 v2, 3, v1
    v_add_u32 v2, s61, v2
    v_mul_u32_u24 v2, 1280, v2
    s_and_b32 s62, s12, 1
    s_lshl_b32 s62, s62, 2
    v_lshrrev_b32 v3, 4, v1
    v_add_u32 v3, s62, v3
    s_lshl_b32 s62, s12, 1
    v_bfe_u32 v11, v1, 4, 1
    v_or_b32 v11, s62, v11
    s_cmp_eq_u32 s55, 2
    s_cselect_b64 vcc, -1, 0
    s_lshl_b32 s65, s12, 10
    v_cndmask_b32 v3, v3, v11, vcc
    v_and_b32 v11, 7, v1
    v_xor_b32 v3, v3, v11
    v_lshl_add_u32 v{XO}, v3, 4, v2
    s_mov_b32 s72, 0xCCCCCCCD
    s_lshl_b32 s63, s12, 4
    v_mul_hi_u32 v3, v1, s72
    v_lshrrev_b32 v3, 4, v3
    v_mul_u32_u24 v11, 20, v3
    v_sub_u32 v11, v1, v11
    v_add_u32 v3, s63, v3
    v_mul_lo_u32 v3, v3, s58
    v_lshl_add_u32 v3, v11, 4, v3
    v_add_u32 v{WO}, s59, v3
    s_mul_i32 s64, s12, 640
    v_lshlrev_b32 v{EO}, 4, v1
    v_add_u32 v{EO}, s64, v{EO}
    s_mul_i32 s66, s12, 5184
    s_add_u32 s66, s66, {WOFF}
    s_add_u32 s67, s64, {EOFF}
    s_mul_i32 s68, s58, 50
    s_mul_i32 s69, s58, 3
    s_lshl_b32 s79, s58, 1
    s_add_u32 s80, s52, s53
    s_and_b32 s80, s80, {ROT_MASK}
    s_mul_i32 s80, s80, {ROT_MUL}
    s_lshr_b32 s80, s80, 2
    s_mul_i32 s81, s55, {ROT_P}
    s_add_u32 s80, s80, s81
    s_mul_i32 s81, s54, {ROT_H}
    s_add_u32 s80, s80, s81
    s_cmp_ge_u32 s80, 10
    s_cselect_b32 s81, 10, 0
    s_sub_u32 s80, s80, s81
    s_lshl_b32 s70, s80, 7
    s_lshl_b32 s71, s58, 6
    s_mul_i32 s71, s71, s80
    s_mul_i32 s73, s80, 2560
    s_mov_b32 s74, 0
    s_mov_b32 s34, {2048*1280}
    s_mov_b32 s35, 0x00020000
    s_mov_b32 s39, 0x00020000
    s_mov_b32 s43, 0x00020000
    s_mov_b32 s77, 0
    s_cmp_eq_u32 s57, 1
    s_mov_b32 s38, {640*3840}
    s_cselect_b32 s38, {640*1280}, s38
    s_cselect_b32 s42, {640*40}, 0
    s_waitcnt lgkmcnt(0)
    s_cselect_b32 s32, s22, s16
    s_cselect_b32 s33, s23, s17
    s_cselect_b32 s36, s24, s18
    s_cselect_b32 s37, s25, s19
    s_cmp_lt_u32 s53, 2
    s_cselect_b32 s40, s26, s28
    s_cselect_b32 s41, s27, s29
    """)
    a.c("k order is rotated per WG (s80) so that a cold start spreads over the whole K range")
    a.c("s65/s66/s67 LDS rel bases; s70 x soff, s71 W soff, s73 E soff, s74 slot base")
    a("P1_LP:")
    a("s_add_u32 s75, s74, s65")
    for t in range(4):
        a(f"""
        s_add_u32 m0, s75, {4096*t}
        s_add_u32 s76, s70, {40960*t}
        buffer_load_dwordx4 v{XO}, s[32:35], s76 offen {XMOD} lds
        """)
    a("s_add_u32 s75, s74, s66")
    for t, r0 in enumerate([0, 3, 6, 8, 11, 14]):
        a(f"s_add_u32 m0, s75, {320*r0 + (32 if r0 >= 8 else 0)}")
        a(f"s_mov_b32 exec_hi, {'0xff' if t % 3 == 2 else '0x0fffffff'}")
        a(f"buffer_load_dwordx4 v{WO}, s[36:39], s71 offen {WMOD} lds")
        a(f"s_add_u32 s71, s71, {'s69' if t % 3 < 2 else ('s79' if t == 2 else 's68')}")
    a(f"""
    s_add_u32 m0, s74, s67
    s_add_u32 s70, s70, 128
    buffer_load_dwordx4 v{EO}, s[40:43], s73 offen lds
    s_mov_b32 exec_hi, -1
    s_add_u32 s73, s73, 2560
    s_add_u32 s74, s74, {SLOT}
    s_cmp_eq_u32 s74, {NSLOT*SLOT}
    s_cselect_b32 s74, 0, s74
    s_cmp_eq_u32 s70, 1280
    s_cselect_b32 s70, 0, s70
    s_cselect_b32 s71, 0, s71
    s_cselect_b32 s73, 0, s73
    s_add_u32 s77, s77, 1
    """)
    if LA3:
        a(f"""
        s_bitcmp1_b32 0x0a, s77
        s_cbranch_scc1 P1_LP
        s_cmp_eq_u32 s77, 2
        s_cbranch_scc0 P1_LP2
        s_waitcnt vmcnt({NPS})
        s_barrier
        s_branch P1_LP
        P1_LP2:
        s_waitcnt vmcnt({2*NPS})
        s_barrier
        s_cmp_lt_u32 s77, 10
        s_cbranch_scc1 P1_LP
        s_waitcnt vmcnt({NPS})
        s_barrier
        s_waitcnt vmcnt(0)
        """)
    else:
        a(f"""
        s_cmp_lt_u32 s77, 2
        s_cbranch_scc1 P1_LP
        s_waitcnt vmcnt({NPS})
        s_barrier
        s_cmp_lt_u32 s77, 10
        s_cbranch_scc1 P1_LP
        s_waitcnt vmcnt(0)
        """)
    stamp(a)
    a(f"""
    s_barrier
    s_barrier
    s_branch P1_DONE
    P1_IDLE:
    s_mov_b32 s77, 0
    s_load_dwordx2 s[36:37], s[0:1], 64
    s_mov_b32 s38, {2048*2560}
    s_mov_b32 s39, 0x00020000
    v_lshlrev_b32 v4, {TLBSH}, v1
    s_waitcnt lgkmcnt(0)
    """)
    if TLBSH:
        a(f"""
        buffer_load_dword v5, v4, s[8:11], 0 offen
        buffer_load_dword v6, v4, s[36:39], 0 offen
        """)
    a(f"""
    P1_IDLE1:
    s_barrier
    s_add_u32 s77, s77, 1
    s_cmp_lt_u32 s77, 11
    s_cbranch_scc1 P1_IDLE1
    s_waitcnt vmcnt(0)
    P1_DONE:
    """)
    stamp(a)
    dpt(a, 0)


def flag_prep(a, ph, delta, idcode, HT):
    a("s_memrealtime s[44:45]")
    a(idcode)
    a(f"""
    v_lshlrev_b32 v9, 7, v9
    v_lshlrev_b32 v7, 4, v1
    s_lshl_b32 s48, s2, 7
    s_add_u32 s48, s48, {WS_FLAG + ph*0x8000}
    s_mov_b32 s49, {WS_FLAG + ph*0x8000}
    s_sub_u32 s46, s6, {delta}
    s_subb_u32 s47, s7, 0
    s_waitcnt lgkmcnt(0)
    v_mov_b32 v{HT}, s44
    v_mov_b32 v{HT+1}, s45
    v_mov_b32 v{HT+2}, s44
    v_mov_b32 v{HT+3}, s45
    v_mov_b32 v11, s47
    """)


def flag_publish(a, HT):
    a(f"""
    s_mov_b64 exec, 0xff
    buffer_store_dwordx4 {vr(HT,4)}, v7, s[8:11], s48 offen sc1
    s_mov_b64 exec, -1
    """)


def flag_poll(a, tag, HT):
    P = HT + 4
    a(f"""
    s_mov_b64 exec, s[50:51]
    s_mov_b32 s48, 0
    {tag}_POLL:
    buffer_load_dwordx2 {vr(P,2)}, v9, s[8:11], s49 offen sc1
    s_add_u32 s48, s48, 1
    s_waitcnt vmcnt(0)
    v_subrev_co_u32 v10, vcc, s46, v{P}
    s_nop 1
    v_subb_co_u32 v7, vcc, v{P+1}, v11, vcc
    v_lshrrev_b32 v10, 24, v10
    v_or_b32 v10, v10, v7
    v_cmp_eq_u32 vcc, 0, v10
    s_cmp_ge_u32 s48, {SPIN_MAX}
    s_cbranch_scc1 {tag}_OUT
    s_nop 1
    s_cmp_eq_u64 vcc, s[50:51]
    s_cbranch_scc1 {tag}_OUT
    s_sleep {POLL_SLEEP}
    s_branch {tag}_POLL
    {tag}_OUT:
    s_mov_b64 exec, -1
    """)


def handoff(a, tag, ph, delta, idcode, HT):
    a(f"""
    s_cmp_lg_u32 s3, 0
    s_cbranch_scc1 {tag}_PRE
    """)
    flag_prep(a, ph, delta, idcode, HT)
    a(f"""
    {tag}_PRE:
    {"" if env("UNSAFE", "") else "s_waitcnt vmcnt(0)"}
    """)
    stamp(a)
    a(f"""
    s_barrier
    s_cmp_lg_u32 s3, 0
    s_cbranch_scc1 {tag}_WAIT
    """)
    flag_publish(a, HT)
    flag_poll(a, tag, HT)
    a(f"{tag}_WAIT:")


def oaddr(a, wavereg):
    a(f"""
    s_mul_i32 s36, s15, {OBR}
    s_lshl_b32 s37, s18, 5
    s_lshl_b32 s38, {wavereg}, 2
    s_add_u32 s37, s37, s38
    s_mul_i32 s37, s37, 20480
    s_add_u32 s36, s36, s37
    s_add_u32 s36, s36, {WS_O}
    s_lshr_b32 s37, s17, 1
    s_lshl_b32 s37, s37, 10
    s_and_b32 s38, s17, 1
    s_lshl_b32 s38, s38, 9
    s_add_u32 s37, s37, s38
    s_add_u32 s37, s37, s36
    s_lshr_b32 s38, s17, 3
    s_lshl_b32 s38, s38, 10
    s_add_u32 s38, s38, 16384
    s_bfe_u32 s39, s17, 0x10002
    s_lshl_b32 s39, s39, 9
    s_add_u32 s38, s38, s39
    s_and_b32 s39, s17, 1
    s_lshl_b32 s39, s39, 8
    s_add_u32 s38, s38, s39
    s_bfe_u32 s39, s17, 0x10001
    s_lshl_b32 s39, s39, 3
    s_add_u32 s38, s38, s39
    s_add_u32 s38, s38, s36
    """)


def phase2(a):
    global NOMORE
    NOMORE = True
    VL, L16, KA, KH, VA, IDX = 1, 2, 3, 4, 5, 6
    QA_LO, QA_HI, QB_HI, QB_LO = 12, 16, 18, 20
    KLO = [24, 32]
    KHI = [28, 30]
    VB = [36, 44]
    SA, SB, OA, OB = 52, 68, 84, 100
    MA, MB = 116, 117
    a(f"""
    s_and_b32 s13, s2, 7
    s_lshr_b32 s14, s2, 3
    s_lshr_b32 s15, s14, 4
    s_bfe_u32 s16, s14, 0x20002
    s_lshl_b32 s17, s13, 2
    s_add_u32 s17, s17, s16
    s_and_b32 s18, s14, 3
    s_lshl_b32 s19, s15, 5
    s_add_u32 s19, s19, s17
    s_cmp_eq_u32 s15, 0
    s_cselect_b32 s21, s17, 32
    """)
    a.c("s15 br, s17 head, s18 qb, s19 unit, s21 kv unit")
    a(f"""
    s_mul_i32 s25, s19, {QUNIT}
    s_mul_i32 s26, s18, 20480
    s_add_u32 s25, s25, s26
    s_mul_i32 s26, s3, 2560
    s_add_u32 s25, s25, s26
    s_mul_i32 s27, s21, {KVUNIT}
    s_lshl_b32 s28, s3, 10
    s_add_u32 s27, s27, s28
    s_add_u32 s27, s27, {WS_KV}
    v_lshlrev_b32 v{L16}, 4, v{VL}
    s_cmp_eq_u32 s3, 8
    s_cbranch_scc1 P2_LOADER
    v_and_b32 v7, 31, v{VL}
    v_lshrrev_b32 v8, 5, v{VL}
    v_lshlrev_b32 v{KH}, 3, v7
    v_lshl_add_u32 v{KH}, v8, 2, v{KH}
    v_add_u32 v{KH}, 1024, v{KH}
    v_mul_u32_u24 v{VA}, 20, v8
    v_add_u32 v{VA}, v{VA}, v7
    v_lshlrev_b32 v{VA}, 4, v{VA}
    v_add_u32 v{VA}, 1280, v{VA}
    v_mov_b32 v{KA}, v{L16}
    v_mov_b32 v{IDX}, 0xdddddddd
    v_mov_b32 v{QA_HI+1}, 0
    v_mov_b32 v{QB_HI+1}, 0
    v_mov_b32 v{KHI[0]+1}, 0
    v_mov_b32 v{KHI[1]+1}, 0
    v_and_b32 v9, {31 if ONES1 else 27}, v7
    v_cmp_eq_u32 vcc, 24, v9
    v_mov_b32 v9, 0
    v_mov_b32 v10, 0x3f803f80
    s_mov_b32 s22, 0x000fffff
    s_mov_b32 s23, 0x000fffff
    s_cmp_lt_u32 s3, 4
    s_cselect_b32 s24, 0x92, {LOWY}
    v_cndmask_b32 v9, v9, v10, vcc
    """)
    for i in range(16):
        a(f"v_mov_b32 v{VB[0]+i}, v9")
    for i in range(16):
        a(f"v_mov_b32 v{SB+i}, 0")
    for i in range(32):
        a(f"v_mov_b32 v{OA+i}, 0")
    a.c("phase-3 scalars: s60..s69 O-image soffsets per kappa group, s71 d_out soffset, s72 transpose area")
    a(f"""
    s_lshr_b32 s73, s13, 2
    s_and_b32 s74, s13, 3
    s_lshl_b32 s74, s74, 2
    s_and_b32 s75, s14, 3
    s_add_u32 s74, s74, s75
    s_lshr_b32 s75, s14, 2
    s_mul_i32 s60, s73, {OBR}
    s_lshl_b32 s76, s74, 3
    s_lshl_b32 s77, s3, 1
    s_add_u32 s76, s76, s77
    s_mul_i32 s76, s76, 20480
    s_add_u32 s60, s60, s76
    s_add_u32 s60, s60, {WS_O}
    s_add_u32 s61, s60, 20480
    s_lshl_b32 s71, s74, 7
    s_lshl_b32 s76, s3, 5
    s_add_u32 s71, s71, s76
    s_mul_i32 s71, s71, 2560
    s_mul_i32 s76, s73, 1280
    s_add_u32 s71, s71, s76
    s_mul_i32 s76, s75, 160
    s_add_u32 s71, s71, s76
    s_mul_i32 s72, s3, 5120
    s_add_u32 s72, s72, {P3_TR}
    """)
    for g in range(1, 5):
        a(f"s_add_u32 s{60+2*g}, s60, {4096*g}")
        a(f"s_add_u32 s{61+2*g}, s61, {4096*g}")
    handoff(a, "H1", 0, 1000, f"""
    s_lshr_b32 s49, s17, 3
    s_lshl_b32 s49, s49, 6
    v_add_u32 v9, s49, v1
    v_and_b32 v10, 7, v1
    v_cmp_gt_u32 s[50:51], 6, v10
    v_lshrrev_b32 v10, 1, v1
    v_lshlrev_b32 v10, 3, v10
    v_and_b32 v11, 1, v1
    v_add3_u32 v10, v10, v11, 6
    s_cmp_eq_u32 s15, 0
    s_cselect_b64 vcc, -1, 0
    s_cselect_b64 s[50:51], s[50:51], -1
    v_cndmask_b32 v9, v10, v9, vcc
    """, 120)
    a(f"""
    s_mov_b32 m0, s28
    s_barrier
    """)
    stamp(a)
    dpt(a, 1)
    a(f"""
    buffer_load_dwordx4 v{L16}, s[8:11], s27 offen lds
    buffer_load_dwordx4 {vr(QA_LO,4)}, v{L16}, s[8:11], s25 offen
    buffer_load_dword v{QA_HI}, v{KH}, s[8:11], s25 offen
    buffer_load_dwordx4 {vr(QB_LO,4)}, v{L16}, s[8:11], s25 offen offset:1280
    buffer_load_dword v{QB_HI}, v{KH}, s[8:11], s25 offen offset:1280
    s_setprio 2
    s_mov_b64 vcc, -1
    s_mov_b32 s20, 0
    """)
    for r in range(1, 4):
        a(f"s_add_u32 m0, m0, 8192")
        a(f"s_add_u32 s27, s27, 8192")
        a(f"buffer_load_dwordx4 v{L16}, s[8:11], s27 offen lds")
    a(f"""
    s_waitcnt vmcnt(3)
    s_barrier
    """)
    stamp(a)
    a(f"""
    ds_read_b128 {vr(KLO[0],4)}, v{KA}
    ds_read_b32 v{KHI[0]}, v{KH}
    ds_read_b128 {vr(KLO[1],4)}, v{KA} offset:2560
    ds_read_b32 v{KHI[1]}, v{KH} offset:2560
    s_mov_b64 exec, s[22:23]
    ds_read_b128 {vr(VB[0],4)}, v{VA}
    ds_read_b128 {vr(VB[0]+4,4)}, v{VA} offset:640
    s_mov_b64 exec, -1
    s_waitcnt lgkmcnt(4)
    {M16} {vr(SA,16)}, {vr(KLO[0],4)}, {vr(QA_LO,4)}, 0
    {M8} {vr(SA,16)}, {vr(KHI[0],2)}, {vr(QA_HI,2)}, {vr(SA,16)}
    s_nop 15
    """)

    def ex(base, lo, hi):
        for i in range(lo, hi):
            a(f"v_exp_f32 v{base+i}, v{base+i}")

    a(".p2align 6")
    a("P2_LOOP:")
    for j in range(8):
        p = j & 1
        ex(SA, 0, 2)
        a(f"{SM} {vr(OB,16)}, {vr(VB[1-p]+4,4)}, {vr(SB+8,8)}, v{IDX}")
        ex(SA, 2, 4)
        a(f"{M16} {vr(SB,16)}, {vr(KLO[p],4)}, {vr(QB_LO,4)}, 0")
        ex(SA, 4, 8)
        a(f"{M8} {vr(SB,16)}, {vr(KHI[p],2)}, {vr(QB_HI,2)}, {vr(SB,16)}")
        a("s_waitcnt lgkmcnt(0)")
        if j in (1, 4):
            a(f"s_cbranch_vccnz P2_SY{j}")
            a(f"P2_SY{j}_RET:")
        a(f"ds_read_b128 {vr(KLO[p],4)}, v{KA} offset:{(j+2)*2560}")
        a(f"ds_read_b32 v{KHI[p]}, v{KH} offset:{(j+2)*2560}")
        if j == LOWJ:
            a("s_bitcmp1_b32 s24, s20")
            a(f"s_cbranch_scc1 P2_LOWP")
            a(f"P2_LOWP_RET:")
        ex(SA, 8, 12)
        a(f"{SM} {vr(OA,16)}, {vr(VB[p],4)}, {vr(SA,8)}, v{IDX}")
        ex(SA, 12, 16)
        ex(SB, 0, 2)
        a(f"{SM} {vr(OA,16)}, {vr(VB[p]+4,4)}, {vr(SA+8,8)}, v{IDX}")
        ex(SB, 2, 4)
        a(f"{M16} {vr(SA,16)}, {vr(KLO[1-p],4)}, {vr(QA_LO,4)}, 0")
        ex(SB, 4, 8)
        a(f"{M8} {vr(SA,16)}, {vr(KHI[1-p],2)}, {vr(QA_HI,2)}, {vr(SA,16)}")
        a("s_mov_b64 exec, s[22:23]")
        a(f"ds_read_b128 {vr(VB[1-p],4)}, v{VA} offset:{(j+1)*2560}")
        a(f"ds_read_b128 {vr(VB[1-p]+4,4)}, v{VA} offset:{(j+1)*2560+640}")
        a("s_mov_b64 exec, -1")
        ex(SB, 8, 12)
        a(f"{SM} {vr(OB,16)}, {vr(VB[p],4)}, {vr(SB,8)}, v{IDX}")
        ex(SB, 12, 16)
    stamp(a, lvl=3)
    a.c("chunk boundary: barriers before chunks 2 and 5; priority falls as a wave advances so the SIMD's two waves stay level")
    a(f"""
    v_add_u32 v{KA}, 20480, v{KA}
    v_add_u32 v{KH}, 20480, v{KH}
    v_add_u32 v{VA}, 20480, v{VA}
    s_add_u32 s20, s20, 1
    s_mov_b64 vcc, 0
    s_bitcmp1_b32 0x24, s20
    s_cbranch_scc0 P2_NOBAR
    s_barrier
    s_setprio 3
    s_branch P2_LOOP
    P2_LOWP:
    s_setprio 0
    s_branch P2_LOWP_RET
    P2_SY1:
    s_waitcnt vmcnt(2)
    s_barrier
    s_branch P2_SY1_RET
    P2_SY4:
    s_waitcnt vmcnt(0)
    s_barrier
    s_branch P2_SY4_RET
    P2_LOADER:
    """)
    a.c("wave 8: rounds 4..19 of the K/V image, then (once chunks 0-4 are dead) the phase-3 wo slice")
    a(f"""
    s_load_dwordx2 s[52:53], s[0:1], 16
    s_load_dwordx2 s[54:55], s[0:1], 56
    s_mov_b32 s60, 0xCCCCCCCD
    v_mul_hi_u32 v9, v1, s60
    v_lshrrev_b32 v9, 3, v9
    v_mul_u32_u24 v10, 10, v9
    v_sub_u32 v10, v1, v10
    v_mul_u32_u24 v9, 1280, v9
    v_lshl_add_u32 v8, v10, 4, v9
    s_lshr_b32 s56, s14, 2
    s_mul_i32 s56, s56, 160
    s_mov_b32 s34, {640*1280}
    s_mov_b32 s35, 0x00020000
    s_cmp_lt_u32 s13, 4
    s_waitcnt lgkmcnt(0)
    s_cselect_b32 s32, s52, s54
    s_cselect_b32 s33, s53, s55
    s_add_u32 s27, s27, {32768-8192}
    s_mov_b32 m0, 32768
    s_mov_b32 s20, 1
    s_barrier
    s_barrier
    s_barrier
    P2_LD1:
    """)
    for r in range(8):
        a(f"buffer_load_dwordx4 v{L16}, s[8:11], s27 offen lds")
        a(f"s_add_u32 m0, m0, 1024")
        a(f"s_add_u32 s27, s27, 1024")
    a(f"""
    s_add_u32 s20, s20, 1
    s_cmp_eq_u32 s20, 2
    s_cbranch_scc0 P2_LD2
    s_barrier
    P2_LD2:
    s_cmp_eq_u32 s20, 5
    s_cbranch_scc0 P2_LD3
    s_waitcnt vmcnt(16)
    s_barrier
    P2_LD3:
    s_cmp_lt_u32 s20, 17
    s_cbranch_scc1 P2_LD1
    s_waitcnt vmcnt(0)
    s_barrier
    """)
    a.c("mark this WG's O slots as 'not written yet' (all-ones words); phase 3 consumes the data itself as its flag")
    oaddr(a, "0")
    a(f"""
    v_and_b32 v12, 31, v1
    v_lshlrev_b32 v12, 4, v12
    v_lshrrev_b32 v13, 5, v1
    v_mul_u32_u24 v13, 20480, v13
    v_add_u32 v12, v12, v13
    v_and_b32 v13, 15, v1
    v_lshlrev_b32 v13, 4, v13
    v_lshrrev_b32 v14, 4, v1
    v_mul_u32_u24 v14, 20480, v14
    v_add_u32 v13, v13, v14
    v_mov_b32 v16, -1
    v_mov_b32 v17, -1
    v_mov_b32 v18, -1
    v_mov_b32 v19, -1
    s_mov_b32 s59, 0
    P2_PO:
    buffer_store_dwordx4 v[16:19], v12, s[8:11], s37 offen sc1
    s_add_u32 s37, s37, 40960
    buffer_store_dwordx4 v[16:19], v12, s[8:11], s37 offen sc1
    s_add_u32 s37, s37, 40960
    buffer_store_dwordx2 v[16:17], v13, s[8:11], s38 offen sc1
    s_add_u32 s38, s38, 81920
    s_add_u32 s59, s59, 1
    s_cmp_lt_u32 s59, 8
    s_cbranch_scc1 P2_PO
    """)
    flag_prep(a, 1, 0, f"""
    s_lshr_b32 s49, s13, 2
    s_lshl_b32 s49, s49, 4
    s_and_b32 s50, s13, 3
    s_add_u32 s49, s49, s50
    s_lshl_b32 s49, s49, 3
    v_bfe_u32 v10, v1, 3, 2
    v_lshlrev_b32 v10, 5, v10
    v_and_b32 v9, 7, v1
    v_add3_u32 v9, v9, v10, s49
    s_mov_b32 s50, -1
    s_mov_b32 s51, 0
    """, 20)
    a("s_waitcnt vmcnt(0)")
    flag_publish(a, 20)
    a(f"""
    s_lshr_b32 s57, s14, 2
    s_cmp_ge_u32 s57, 5
    s_cselect_b32 s58, 5, 0
    s_sub_u32 s57, s57, s58
    s_sub_u32 s57, 5, s57
    s_mul_i32 s57, s57, {20480*P3ROT}
    s_mov_b32 s59, 0
    s_cmp_ge_u32 s57, 102400
    s_cselect_b32 s57, 0, s57
    s_mov_b32 s58, s56
    """)
    flag_poll(a, "HP", 20)
    a(f"""
    s_barrier
    P2_LW1:
    """)
    rows = [0, 6, 12, 16, 22, 28]
    src = [0, 6, 12, 20, 26, 32]
    for t in range(6):
        a(f"""
        s_add_u32 m0, s57, {rows[t]*160}
        s_add_u32 s62, s58, {src[t]*1280}
        s_mov_b32 exec_hi, {'0xff' if t % 3 == 2 else '0x0fffffff'}
        buffer_load_dwordx4 v8, s[32:35], s62 offen lds
        """)
    a(f"""
    s_add_u32 s57, s57, 5120
    s_cmp_ge_u32 s57, 102400
    s_cselect_b32 s57, 0, s57
    s_add_u32 s58, s58, {40*1280}
    s_add_u32 s59, s59, 1
    s_cmp_lt_u32 s59, 16
    s_cbranch_scc1 P2_LW1
    s_add_u32 s58, s56, {16*1280}
    P2_LW2:
    s_mov_b32 m0, s57
    s_add_u32 s57, s57, 640
    buffer_load_dwordx4 v8, s[32:35], s58 offen lds
    s_add_u32 s58, s58, {20*1280}
    s_add_u32 s59, s59, 1
    s_cmp_lt_u32 s59, 48
    s_cbranch_scc1 P2_LW2
    s_waitcnt vmcnt(0)
    s_barrier
    s_endpgm
    P2_NOBAR:
    s_setprio 2
    s_bitcmp1_b32 0x48, s20
    s_cbranch_scc1 P2_LOOP
    s_setprio 1
    s_cmp_lt_u32 s20, 8
    s_cbranch_scc1 P2_LOOP
    s_setprio 0
    {SM} {vr(OB,16)}, {vr(VB[1]+4,4)}, {vr(SB+8,8)}, v{IDX}
    s_waitcnt lgkmcnt(0)
    s_nop 15
    """)
    stamp(a)
    dpt(a, 2)
    def lbro():
        if ONES1:
            a(f"""
            v_mov_b32 v7, v{OA+12}
            v_mov_b32 v8, v{OB+12}
            s_nop 1
            v_permlane32_swap_b32 v{OA+12}, v7
            v_permlane32_swap_b32 v{OB+12}, v8
            s_nop 1
            """)
    lbro()
    a.c("---- safety check of the unshifted softmax: l within [2^-30, 2^110], all O finite; else redo with the true max")
    a(f"""
    s_mov_b32 s30, {hex(f32bits(2.0**-30))}
    s_mov_b32 s31, {hex(f32bits(2.0**110))}
    v_mul_f32 v7, 0, v{OA}
    """)
    for i in range(1, 12):
        a(f"v_fma_f32 v7, v{OA+i}, 0, v7")
    for i in range(12):
        a(f"v_fma_f32 v7, v{OB+i}, 0, v7")
    a(f"""
    v_min_f32 v8, v{OA+12}, v{OB+12}
    v_max_f32 v9, v{OA+12}, v{OB+12}
    v_add_f32 v7, v7, v{OA+12}
    v_add_f32 v7, v7, v{OB+12}
    v_cmp_le_f32 vcc, s30, v8
    v_cmp_ge_f32 s[32:33], s31, v9
    v_cmp_o_f32 s[34:35], v7, v7
    s_nop 3
    s_and_b64 vcc, vcc, s[32:33]
    s_and_b64 vcc, vcc, s[34:35]
    s_cmp_eq_u64 vcc, -1
    s_cbranch_scc0 P2_FALLBACK
    P2_STORE:
    """)
    oaddr(a, "s3")
    a(f"""
    v_and_b32 v7, 15, v{VL}
    v_lshlrev_b32 v7, 4, v7
    v_bfe_u32 v8, v{VL}, 4, 1
    v_mul_u32_u24 v8, 20480, v8
    v_add_u32 v7, v7, v8
    v_lshrrev_b32 v8, 5, v{VL}
    v_lshl_add_u32 v8, v8, 8, v7
    v_rcp_f32 v10, v{OA+12}
    v_rcp_f32 v11, v{OB+12}
    s_add_u32 s40, s37, 40960
    s_add_u32 s41, s38, 40960
    """)
    for (o, r, t) in ((OA, 10, SA), (OB, 11, SB)):
        for i in range(12):
            a(f"v_mul_f32 v{o+i}, v{o+i}, v{r}")
        for i in range(6):
            a(f"v_cvt_pk_bf16_f32 v{t+i}, v{o+2*i}, v{o+2*i+1}")
    a(f"""
    buffer_store_dwordx4 {vr(SA,4)}, v8, s[8:11], s37 offen {STMOD}
    buffer_store_dwordx4 {vr(SB,4)}, v8, s[8:11], s40 offen {STMOD}
    s_mov_b32 exec_hi, 0
    buffer_store_dwordx2 {vr(SA+4,2)}, v7, s[8:11], s38 offen {STMOD}
    buffer_store_dwordx2 {vr(SB+4,2)}, v7, s[8:11], s41 offen {STMOD}
    s_mov_b64 exec, -1
    """)
    stamp(a)
    a("s_branch P2_DONE")
    a.c("---- fallback: textbook two-pass softmax with the true row max, K/V fragments straight from the workspace image")
    a(f"""
    P2_FALLBACK:
    v_mov_b32 v{MA}, 0xff800000
    v_mov_b32 v{MB}, 0xff800000
    v_subrev_u32 v{KH}, {8*20480}, v{KH}
    v_subrev_u32 v{VA}, {8*20480}, v{VA}
    s_mul_i32 s27, s21, {KVUNIT}
    s_add_u32 s27, s27, {WS_KV}
    s_mov_b32 s26, s27
    s_mov_b32 s20, 0
    P2_FB1:
    buffer_load_dwordx4 {vr(KLO[0],4)}, v{L16}, s[8:11], s26 offen
    buffer_load_dword v{KHI[0]}, v{KH}, s[8:11], s26 offen
    s_add_u32 s26, s26, 2560
    s_waitcnt vmcnt(0)
    {M16} {vr(SA,16)}, {vr(KLO[0],4)}, {vr(QA_LO,4)}, 0
    {M8} {vr(SA,16)}, {vr(KHI[0],2)}, {vr(QA_HI,2)}, {vr(SA,16)}
    {M16} {vr(SB,16)}, {vr(KLO[0],4)}, {vr(QB_LO,4)}, 0
    {M8} {vr(SB,16)}, {vr(KHI[0],2)}, {vr(QB_HI,2)}, {vr(SB,16)}
    s_nop 15
    """)
    for i in range(8):
        a(f"v_max3_f32 v{MA}, v{SA+2*i}, v{SA+2*i+1}, v{MA}")
        a(f"v_max3_f32 v{MB}, v{SB+2*i}, v{SB+2*i+1}, v{MB}")
    a(f"""
    s_add_u32 s20, s20, 1
    s_cmp_lt_u32 s20, 64
    s_cbranch_scc1 P2_FB1
    v_mov_b32 v7, v{MA}
    v_mov_b32 v8, v{MB}
    s_nop 1
    v_permlane32_swap_b32 v7, v{MA}
    v_permlane32_swap_b32 v8, v{MB}
    s_nop 1
    v_max_f32 v{MA}, v{MA}, v7
    v_max_f32 v{MB}, v{MB}, v8
    """)
    for i in range(32):
        a(f"v_mov_b32 v{OA+i}, 0")
    a(f"""
    s_mov_b32 s20, 0
    P2_FB2:
    buffer_load_dwordx4 {vr(KLO[0],4)}, v{L16}, s[8:11], s27 offen
    buffer_load_dword v{KHI[0]}, v{KH}, s[8:11], s27 offen
    s_mov_b64 exec, s[22:23]
    buffer_load_dwordx4 {vr(VB[0],4)}, v{VA}, s[8:11], s27 offen
    buffer_load_dwordx4 {vr(VB[0]+4,4)}, v{VA}, s[8:11], s27 offen offset:640
    s_mov_b64 exec, -1
    s_add_u32 s27, s27, 2560
    s_waitcnt vmcnt(0)
    {M16} {vr(SA,16)}, {vr(KLO[0],4)}, {vr(QA_LO,4)}, 0
    {M8} {vr(SA,16)}, {vr(KHI[0],2)}, {vr(QA_HI,2)}, {vr(SA,16)}
    {M16} {vr(SB,16)}, {vr(KLO[0],4)}, {vr(QB_LO,4)}, 0
    {M8} {vr(SB,16)}, {vr(KHI[0],2)}, {vr(QB_HI,2)}, {vr(SB,16)}
    s_nop 15
    """)
    for i in range(16):
        a(f"v_sub_f32 v{SA+i}, v{SA+i}, v{MA}")
        a(f"v_sub_f32 v{SB+i}, v{SB+i}, v{MB}")
    ex(SA, 0, 16)
    ex(SB, 0, 16)
    a(f"""
    s_nop 1
    {SM} {vr(OA,16)}, {vr(VB[0],4)}, {vr(SA,8)}, v{IDX}
    {SM} {vr(OA,16)}, {vr(VB[0]+4,4)}, {vr(SA+8,8)}, v{IDX}
    {SM} {vr(OB,16)}, {vr(VB[0],4)}, {vr(SB,8)}, v{IDX}
    {SM} {vr(OB,16)}, {vr(VB[0]+4,4)}, {vr(SB+8,8)}, v{IDX}
    s_add_u32 s20, s20, 1
    s_cmp_lt_u32 s20, 64
    s_cbranch_scc1 P2_FB2
    s_nop 15
    """)
    lbro()
    a("""
    s_branch P2_STORE
    P2_DONE:
    """)


def phase3(a):
    WF = [16, 36]
    ACC = 56
    OF = 96
    NR = LA + 1
    assert OF + 8 * NR <= STV
    SA_ = [6, 8, 12, 13, 14]

    def reads(kap, st):
        base, off = (4, kap * 5120) if kap < 10 else (5, (kap - 10) * 5120)
        return [f"ds_read_b64_tr_b16 {vr(WF[st]+4*j+2*i,2)}, v{base} offset:{off+i*1280+8*j}" for j in range(5) for i in range(2)]

    def ofr(kap, tt):
        return OF + (kap % NR) * 8 + tt * 4

    def oload(kap, tt):
        return f"buffer_load_dwordx4 {vr(ofr(kap,tt),4)}, v2, s[8:11], s{60+2*(kap>>2)+tt} offen offset:{(kap&3)*1024} sc1"
    stamp(a)
    a("""
    s_barrier
    s_cmp_lt_u32 s3, 4
    s_cbranch_scc1 P3_GO
    """)
    stamp_store(a)
    a("s_endpgm")
    a("P3_GO:")
    issued = 0
    for k in range(LA):
        for tt in range(2):
            a(oload(k, tt))
            issued += 1
    a(f"""
    s_load_dwordx2 s[36:37], s[0:1], 64
    s_mov_b32 s28, 0xCCCCCCCD
    s_mov_b32 s38, {2048*2560}
    s_mov_b32 s39, 0x00020000
    s_mov_b32 s70, 0
    v_lshrrev_b32 v4, 5, v1
    v_lshlrev_b32 v4, 4, v4
    v_bfe_u32 v5, v1, 4, 1
    v_lshl_add_u32 v4, v5, 2, v4
    v_bfe_u32 v5, v1, 2, 2
    v_add_u32 v4, v4, v5
    v_mul_u32_u24 v4, 160, v4
    v_and_b32 v5, 3, v1
    v_mul_u32_u24 v5, 40, v5
    v_add_u32 v4, v4, v5
    v_add_u32 v5, {10*5120}, v4
    """)
    for x in reads(0, 0):
        a(x)
    stamp(a)
    dpt(a, 3)
    for i in range(40):
        a(f"v_mov_b32 v{ACC+i}, 0")
    for t in range(5):
        a(f"""
        v_add_u32 v7, {64*t}, v1
        v_mul_hi_u32 v9, v7, s28
        v_lshrrev_b32 v9, 3, v9
        v_mul_u32_u24 v10, 10, v9
        v_sub_u32 v10, v7, v10
        v_mul_u32_u24 v9, 2560, v9
        v_lshl_add_u32 v{SA_[t]}, v10, 4, v9
        """)
    a(f"""
    v_and_b32 v3, 15, v1
    v_mul_u32_u24 v3, 160, v3
    v_lshrrev_b32 v7, 4, v1
    v_mul_u32_u24 v7, 40, v7
    v_add3_u32 v3, v3, v7, s72
    v_add_u32 v15, s72, v2
    """)
    for kap in range(20):
        st = kap & 1
        nxt = kap + 1
        o = ofr(kap, 0)
        a(f"s_waitcnt vmcnt({issued - 2*(kap+1)})")
        a(f"""
        v_max3_u32 v7, v{o}, v{o+1}, v{o+2}
        v_max3_u32 v9, v{o+3}, v{o+4}, v{o+5}
        v_max3_u32 v7, v{o+6}, v{o+7}, v7
        v_max_u32 v7, v7, v9
        v_cmp_eq_u32 vcc, -1, v7
        """)
        if kap + LA < 20:
            for tt in range(2):
                a(oload(kap + LA, tt))
                issued += 1
        else:
            a("s_nop 1")
        a(f"s_cbranch_vccnz P3_RT{kap}")
        a(f"P3_OK{kap}:")
        a("s_waitcnt lgkmcnt(0)")
        r = reads(nxt, 1 - st) if nxt < 20 else []
        for j in range(5):
            for tt in range(2):
                d = vr(ACC + (tt * 5 + j) * 4, 4)
                a(f"{M1632} {d}, {vr(WF[st]+4*j,4)}, {vr(ofr(kap,tt),4)}, {d}")
                for _ in range(2):
                    if r:
                        a(r.pop(0))
    stamp(a)
    a.c("---- epilogue: pack, transpose through LDS so each store covers whole row segments")
    a("s_nop 7")
    for tt in range(2):
        t = 16 + tt * 10
        for j in range(5):
            b = ACC + (tt * 5 + j) * 4
            a(f"v_cvt_pk_bf16_f32 v{t+2*j}, v{b}, v{b+1}")
            a(f"v_cvt_pk_bf16_f32 v{t+2*j+1}, v{b+2}, v{b+3}")
            a(f"ds_write_b64 v3, {vr(t+2*j,2)} offset:{tt*2560+8*j}")
    a("s_waitcnt lgkmcnt(0)")
    for t in range(5):
        a(f"ds_read_b128 {vr(OF+4*t,4)}, v15 offset:{t*1024}")
    for t in range(5):
        a(f"s_waitcnt lgkmcnt({4-t})")
        a(f"buffer_store_dwordx4 {vr(OF+4*t,4)}, v{SA_[t]}, s[36:39], s71 offen {OUTMOD}")
    stamp(a)
    if STAMP:
        a("s_waitcnt vmcnt(0)")
    stamp(a)
    stamp_store(a)
    dpt(a, 4)
    dfin(a)
    a("KEND:")
    a("s_endpgm")
    a.c("some O words of this kappa are still 'not written': refresh every fragment in flight and look again (bounded)")
    for kap in range(20):
        a(f"""
        P3_RT{kap}:
        s_waitcnt vmcnt(0)
        P3_RL{kap}:
        s_sleep {RT_SLEEP}
        """)
        for k in range(kap, min(kap + LA + 1, 20) if RTALL else kap + 1):
            for tt in range(2):
                a(oload(k, tt))
        a(f"""
        s_add_u32 s70, s70, 1
        s_waitcnt vmcnt(0)
        v_max3_u32 v7, v{ofr(kap,0)}, v{ofr(kap,0)+1}, v{ofr(kap,0)+2}
        v_max3_u32 v9, v{ofr(kap,0)+3}, v{ofr(kap,0)+4}, v{ofr(kap,0)+5}
        v_max3_u32 v7, v{ofr(kap,0)+6}, v{ofr(kap,0)+7}, v7
        v_max_u32 v7, v7, v9
        v_cmp_eq_u32 vcc, -1, v7
        s_cmp_ge_u32 s70, {SPIN_MAX}
        s_cbranch_scc1 P3_RD{kap}
        s_cbranch_vccnz P3_RL{kap}
        P3_RD{kap}:
        """)
        for k in range(kap + 1, min(kap + LA + 1, 20)):
            for tt in range(2):
                if not RTALL:
                    a(oload(k, tt))
        a(f"s_branch P3_OK{kap}")


def main(path):
    a = Asm()
    a.l += [
        "; Fused MHA (branch A) + MQA (branch B) attention block in one launch: 256 workgroups (one per CU) x 9 waves.",
        ";   phase 1: Q/K/V projections -> workspace images laid out as MFMA fragments",
        ";   phase 2: softmax(QK^T)V per (head, 512 queries), K/V image resident in LDS, P fed to a sparse MFMA as raw fp32",
        ";   phase 3: output projections, concatenated into d_out",
        "; Hand-offs: 1->2 write-through stores + one time-stamped flag line per workgroup; 2->3 the O words themselves",
        ";   (pre-marked 'not written' by their producer earlier in the launch, re-read until valid, all accesses sc1).",
        "; Softmax runs unshifted; a run-time check on the row sums / accumulators falls back to the true-max two-pass form.",
        "; Generated by dev/gen10.py (hand-written generator).",
        f"; @launch grid=(256,1,1) block=(576,1,1) lds={LDS}",
        '.amdgcn_target "amdgcn-amd-amdhsa--gfx950"',
        ".text",
        f".globl {KN}",
        ".p2align 8",
        f".type {KN},@function",
        f"{KN}:",
    ]
    phase1(a)
    phase2(a)
    phase3(a)
    a.l += [
        '.section .rodata,"a"',
        ".p2align 6",
        f".amdhsa_kernel {KN}",
        f"  .amdhsa_next_free_vgpr {NV}",
        "  .amdhsa_next_free_sgpr 102",
        f"  .amdhsa_accum_offset {NV}",
        "  .amdhsa_group_segment_fixed_size 0",
        "  .amdhsa_kernarg_size 88",
        "  .amdhsa_user_sgpr_count 2",
        "  .amdhsa_user_sgpr_kernarg_segment_ptr 1",
        "  .amdhsa_system_sgpr_workgroup_id_x 1",
        ".end_amdhsa_kernel",
    ]
    open(path, "w").write(a.text())
    print(f"{KN} 256 576 {LDS}")


if __name__ == "__main__":
    main(sys.argv[1] if len(sys.argv) > 1 else f"cdna_kernels/{NAME}.s")
```
